```python
import torch

def _softmax(x, axis=-1):
    return torch.softmax(x, dim=axis)
def _gelu(x):
    return torch.nn.functional.gelu(x, approximate="tanh")
def _silu(x):
    return torch.nn.functional.silu(x)
def _sigmoid(x):
    return torch.sigmoid(x)
def _layernorm(x, axis=-1, eps=1e-5):
    m = x.mean(dim=axis, keepdim=True)
    v = x.var(dim=axis, keepdim=True, unbiased=False)
    return (x - m) / torch.sqrt(v + eps)
def _scatter_add(tgt, idx, src, axis=0):
    return tgt.clone().index_add_(axis, idx, src)
def _segment_sum(src, seg, n):
    out = torch.zeros((n,) + src.shape[1:], dtype=src.dtype)
    return out.index_add_(0, seg, src)
def _pad(x, pw):
    flat = tuple(v for pair in reversed(pw) for v in pair)
    return torch.nn.functional.pad(x, flat)

kernel_name = 'concat_heads__gqa_block_cached__gqa_block_cached__decode'

def setup_inputs():

    _w = (lambda a: (lambda t: t.to(torch.bfloat16) if t.is_floating_point() else t)(torch.as_tensor(a)))
    def _A_setup():
        B, Sq, D = 8, 1, 512
        Hq, Hkv, Sk, Dh = 32, 8, 8192, 128
        assert Hq % Hkv == 0, (Hq, Hkv)
        return {
            "x": _w((lambda *s: torch.randn(*s, dtype=torch.bfloat16) * 0.8)(B, Sq, D)),
            "k_cache": _w((lambda *s: torch.randn(*s, dtype=torch.bfloat16) * 0.8)(B, Hkv, Sk, Dh)),
            "v_cache": _w((lambda *s: torch.randn(*s, dtype=torch.bfloat16) * 0.05)(B, Hkv, Sk, Dh)),
            "wq": _w((lambda *s: torch.randn(*s, dtype=torch.bfloat16) * 0.8)(D, Hq * Dh) * (D ** -0.5)),
            "wo": _w((lambda *s: torch.randn(*s, dtype=torch.bfloat16) * 0.05)(Hq * Dh, D) * ((Hq * Dh) ** -0.5)),
        }
    _A_in = _A_setup()

    def _B_setup():
        B, Sq, D = 8, 1, 512
        Hq, Hkv, Sk, Dh = 32, 8, 8192, 128
        assert Hq % Hkv == 0, (Hq, Hkv)
        return {
            "x": _w((lambda *s: torch.randn(*s, dtype=torch.bfloat16) * 0.8)(B, Sq, D)),
            "k_cache": _w((lambda *s: torch.randn(*s, dtype=torch.bfloat16) * 0.8)(B, Hkv, Sk, Dh)),
            "v_cache": _w((lambda *s: torch.randn(*s, dtype=torch.bfloat16) * 0.05)(B, Hkv, Sk, Dh)),
            "wq": _w((lambda *s: torch.randn(*s, dtype=torch.bfloat16) * 0.8)(D, Hq * Dh) * (D ** -0.5)),
            "wo": _w((lambda *s: torch.randn(*s, dtype=torch.bfloat16) * 0.05)(Hq * Dh, D) * ((Hq * Dh) ** -0.5)),
        }
    _B_in = _B_setup()

    return {
        "A_x": _A_in["x"],
        "A_k_cache": _A_in["k_cache"],
        "A_v_cache": _A_in["v_cache"],
        "A_wq": _A_in["wq"],
        "A_wo": _A_in["wo"],
        "B_x": _B_in["x"],
        "B_k_cache": _B_in["k_cache"],
        "B_v_cache": _B_in["v_cache"],
        "B_wq": _B_in["wq"],
        "B_wo": _B_in["wo"],
    }

def reference(A_x, A_k_cache, A_v_cache, A_wq, A_wo, B_x, B_k_cache, B_v_cache, B_wq, B_wo):
    def _A_ref(x, k_cache, v_cache, wq, wo):
        B, Sq, D = x.shape
        Hq, Dh = 32, 128
        Hkv = k_cache.shape[1]
        rep = Hq // Hkv
        q = (lambda x, *d: x.permute(*d))((x @ wq).reshape(B, Sq, Hq, Dh), 0, 2, 1, 3)
        k = (lambda x, n, axis: torch.repeat_interleave(x, n, dim=axis))(k_cache, rep, axis=1)
        v = (lambda x, n, axis: torch.repeat_interleave(x, n, dim=axis))(v_cache, rep, axis=1)
        scores = torch.einsum("bhqd,bhkd->bhqk", q, k) * (Dh ** -0.5)
        p = _softmax(scores, axis=-1)
        o = torch.einsum("bhqk,bhkd->bhqd", p, v)
        return (lambda x, *d: x.permute(*d))(o, 0, 2, 1, 3).reshape(B, Sq, Hq * Dh) @ wo

    def _B_ref(x, k_cache, v_cache, wq, wo):
        B, Sq, D = x.shape
        Hq, Dh = 32, 128
        Hkv = k_cache.shape[1]
        rep = Hq // Hkv
        q = (lambda x, *d: x.permute(*d))((x @ wq).reshape(B, Sq, Hq, Dh), 0, 2, 1, 3)
        k = (lambda x, n, axis: torch.repeat_interleave(x, n, dim=axis))(k_cache, rep, axis=1)
        v = (lambda x, n, axis: torch.repeat_interleave(x, n, dim=axis))(v_cache, rep, axis=1)
        scores = torch.einsum("bhqd,bhkd->bhqk", q, k) * (Dh ** -0.5)
        p = _softmax(scores, axis=-1)
        o = torch.einsum("bhqk,bhkd->bhqd", p, v)
        return (lambda x, *d: x.permute(*d))(o, 0, 2, 1, 3).reshape(B, Sq, Hq * Dh) @ wo

    a = _A_ref(A_x, A_k_cache, A_v_cache, A_wq, A_wo)
    b = _B_ref(B_x, B_k_cache, B_v_cache, B_wq, B_wo)
    return torch.concatenate([a, b], axis=-1)
```

```python
import math, struct, sys

NAME = "concat_heads__gqa_block_cached__gqa_block_cached__decode"

def f32bits(x):
    return struct.unpack("<I", struct.pack("<f", x))[0]

C_SCALE = (128.0 ** -0.5) * math.log2(math.e)
C_BITS = f32bits(C_SCALE)

WS_Q = 0
WS_PO = 0x40000
WS_PML = 0xC0000
WS_POUT = 0x100000
WS_SIZE = 0x200000

class Asm:
    def __init__(self):
        self.lines = []
    def __call__(self, s):
        for ln in s.strip("\n").split("\n"):
            self.lines.append(ln)
    def text(self):
        return "\n".join(self.lines) + "\n"

def kernel_header(a, name):
    a(f""".globl {name}
.p2align 8
.type {name},@function
{name}:""")

def kernel_desc(a, name, vgpr, sgpr=96):
    acc = (vgpr + 3) // 4 * 4
    a(f""".p2align 6
.amdhsa_kernel {name}
  .amdhsa_next_free_vgpr {vgpr}
  .amdhsa_next_free_sgpr {sgpr}
  .amdhsa_accum_offset {acc}
  .amdhsa_group_segment_fixed_size 0
  .amdhsa_kernarg_size 104
  .amdhsa_user_sgpr_count 2
  .amdhsa_user_sgpr_kernarg_segment_ptr 1
  .amdhsa_system_sgpr_workgroup_id_x 1
.end_amdhsa_kernel""")

def srd(a, d, lo, hi, size):
    a(f"""  s_mov_b32 s{d}, s{lo}
  s_and_b32 s{d+1}, s{hi}, 0xffff
  s_mov_b32 s{d+2}, {size:#x}
  s_mov_b32 s{d+3}, 0x00020000""")

SEL_LO = 0x05040100
SEL_HI = 0x07060302

def gen_qproj(a):
    name = "qproj_kernel"
    kernel_header(a, name)
    a(f"""  s_cmp_ge_u32 s2, 128
  s_cbranch_scc1 L_q_end
  s_load_dwordx2 s[4:5], s[0:1], 0
  s_load_dwordx2 s[6:7], s[0:1], 24
  s_load_dwordx2 s[8:9], s[0:1], 40
  s_load_dwordx2 s[10:11], s[0:1], 64
  s_load_dwordx2 s[12:13], s[0:1], 96
  v_and_b32 v1, 63, v0
  v_lshrrev_b32 v5, 6, v0
  v_and_b32 v2, 15, v1            ; n
  v_lshrrev_b32 v3, 4, v1         ; g
  v_readfirstlane_b32 s30, v5
  s_lshr_b32 s28, s2, 6           ; p
  s_and_b32 s29, s2, 63           ; slab
  s_mov_b32 s40, {SEL_LO:#x}
  s_mov_b32 s41, {SEL_HI:#x}
  v_lshlrev_b32 v6, 16, v3        ; g*65536
  v_lshl_add_u32 v6, v2, 3, v6    ; + n*8  -> voffset W
  v_lshlrev_b32 v7, 10, v2        ; n*1024
  v_lshl_add_u32 v7, v3, 4, v7    ; + g*16 -> voffset x
  s_waitcnt lgkmcnt(0)
  s_cmp_eq_u32 s28, 0
  s_cselect_b32 s4, s4, s8
  s_cselect_b32 s5, s5, s9
  s_cselect_b32 s6, s6, s10
  s_cselect_b32 s7, s7, s11""")
    srd(a, 16, 4, 5, 8192)
    srd(a, 20, 6, 7, 512 * 4096 * 2)
    srd(a, 24, 12, 13, WS_SIZE)
    a(f"""  s_lshl_b32 s31, s30, 19
  s_lshl_b32 s32, s29, 7
  s_add_u32 s31, s31, s32
  s_lshl_b32 s33, s30, 7          ; x soffset = w*64*2""")
    for i in range(16):
        a(f"""  s_add_u32 s34, s31, {((i>>3)*32+(i&7))*8192:#x}
  buffer_load_dwordx2 v[{16+2*i}:{17+2*i}], v6, s[20:23], s34 offen""")
    a(f"""  buffer_load_dwordx4 v[48:51], v7, s[16:19], s33 offen
  buffer_load_dwordx4 v[52:55], v7, s[16:19], s33 offen offset:64
  s_waitcnt vmcnt(0)""")
    for grp in range(2):
        wb = 16 + 16 * grp
        for e in range(4):
            sel = "s40" if (e & 1) == 0 else "s41"
            for q in range(4):
                lo = wb + 2 * (2 * q) + (e >> 1)
                hi = wb + 2 * (2 * q + 1) + (e >> 1)
                a(f"  v_perm_b32 v{56+4*e+q}, v{hi}, v{lo}, {sel}")
        a("  s_nop 1")
        for e in range(4):
            c = "0" if grp == 0 else f"v[{72+4*e}:{75+4*e}]"
            a(f"  v_mfma_f32_16x16x32_bf16 v[{72+4*e}:{75+4*e}], v[{48+4*grp}:{51+4*grp}], v[{56+4*e}:{59+4*e}], {c}")
    a(f"""  s_nop 7
  s_nop 7
  v_lshlrev_b32 v8, 10, v3        ; g*1024
  v_lshl_add_u32 v8, v2, 4, v8    ; + n*16
  v_lshl_add_u32 v8, v5, 11, v8   ; + w*2048
  v_cmp_gt_u32 vcc, 32, v1
  s_and_saveexec_b64 s[36:37], vcc""")
    for e in range(4):
        for r in range(4):
            a(f"  ds_write_b32 v8, v{72+4*e+r} offset:{r*256+e*4}")
    a(f"""  s_mov_b64 exec, s[36:37]
  s_waitcnt lgkmcnt(0)
  s_barrier
  v_lshlrev_b32 v9, 2, v0         ; t*4 = b*256 + col*4""")
    for w in range(8):
        a(f"  ds_read_b32 v{16+w}, v9 offset:{w*2048}")
    a(f"""  s_waitcnt lgkmcnt(0)
  v_add_f32 v16, v16, v17
  v_add_f32 v18, v18, v19
  v_add_f32 v20, v20, v21
  v_add_f32 v22, v22, v23
  v_add_f32 v16, v16, v18
  v_add_f32 v20, v20, v22
  v_add_f32 v16, v16, v20
  v_cvt_pk_bf16_f32 v16, v16, v16
  v_lshlrev_b32 v10, 13, v5
  v_lshl_add_u32 v10, v1, 1, v10
  s_lshl_b32 s34, s28, 16
  s_lshl_b32 s35, s29, 7
  s_add_u32 s34, s34, s35
  buffer_store_short v16, v10, s[24:27], s34 offen
L_q_end:
  s_endpgm""")
    return name, 96

def gen_attn(a, opts):
    name = "attn_kernel"
    kernel_header(a, name)
    NIT = 16
    ldflags = opts.get("ldflags", "")
    Q0 = 4; K0 = 20; V0 = 52; O0 = 84; S0 = 116; S1 = 120; P0 = 124; A0 = 128
    MRUN = 140; MC = 141; L = 142; T0 = 143; T1 = 144; MX = 145; AL = 146
    a(f"""  s_cmp_ge_u32 s2, 256
  s_cbranch_scc1 L_a_end
  s_load_dwordx4 s[4:7], s[0:1], 8      ; A_k, A_v
  s_load_dwordx4 s[8:11], s[0:1], 48    ; B_k, B_v
  s_load_dwordx2 s[12:13], s[0:1], 96   ; ws
  v_and_b32 v1, 63, v0
  v_lshrrev_b32 v3, 6, v0
  v_and_b32 v147, 15, v1          ; n / h
  v_lshrrev_b32 v148, 4, v1       ; g
  v_readfirstlane_b32 s30, v3
  s_lshr_b32 s28, s2, 7           ; p
  s_lshr_b32 s29, s2, 1
  s_and_b32 s29, s29, 63
  s_and_b32 s43, s2, 1            ; split
  s_mov_b32 s40, {SEL_LO:#x}
  s_mov_b32 s41, {SEL_HI:#x}
  s_mov_b32 s42, {C_BITS:#x}
  v_lshlrev_b32 v1, 8, v147
  v_lshl_add_u32 v1, v148, 4, v1  ; voffK = n*256 + g*16
  v_lshlrev_b32 v2, 10, v148
  v_lshl_add_u32 v2, v147, 4, v2  ; voffV = g*1024 + n*16
  v_lshlrev_b32 v149, 8, v147
  v_lshl_add_u32 v149, v148, 4, v149  ; voffQ = n*256 + g*16""")
    for i in range(16):
        a(f"  v_mov_b32 v{Q0+i}, 0")
    for i in range(32):
        a(f"  v_mov_b32 v{O0+i}, 0")
    a(f"""  v_mov_b32 v{MRUN}, 0xff800000
  v_mov_b32 v{MC}, 0xff800000
  v_mov_b32 v{L}, 0
  s_waitcnt lgkmcnt(0)
  s_cmp_eq_u32 s28, 0
  s_cselect_b32 s4, s4, s8
  s_cselect_b32 s5, s5, s9
  s_cselect_b32 s6, s6, s10
  s_cselect_b32 s7, s7, s11""")
    srd(a, 16, 4, 5, 0x8000000)
    srd(a, 20, 6, 7, 0x8000000)
    srd(a, 24, 12, 13, WS_SIZE)
    a(f"""  s_lshl_b32 s31, s28, 16
  s_lshl_b32 s32, s29, 10
  s_add_u32 s31, s31, s32
  v_cmp_gt_u32 vcc, 4, v147
  s_and_saveexec_b64 s[36:37], vcc""")
    for j in range(4):
        a(f"  buffer_load_dwordx4 v[{Q0+4*j}:{Q0+4*j+3}], v149, s[24:27], s31 offen offset:{j*64}")
    a(f"""  s_mov_b64 exec, s[36:37]
  s_lshl_b32 s33, s29, 21
  s_lshl_b32 s34, s43, 20
  s_add_u32 s33, s33, s34
  s_lshl_b32 s34, s30, 17
  s_add_u32 s33, s33, s34
  s_add_u32 s34, s33, 4096
  s_mov_b32 s35, 0                ; iteration""")

    def kloads():
        for t in range(2):
            for j in range(4):
                r = K0 + (t * 4 + j) * 4
                a(f"  buffer_load_dwordx4 v[{r}:{r+3}], v1, s[16:19], s{33+t} offen offset:{j*64} {ldflags}")
    def vloads():
        for i in range(8):
            r = V0 + i * 4
            a(f"  buffer_load_dwordx4 v[{r}:{r+3}], v2, s[20:23], s{33+(i>>2)} offen offset:{(i&3)*256} {ldflags}")

    kloads()
    vloads()

    def body(last, tag):
        a("  s_waitcnt vmcnt(8)")
        for t in range(2):
            sreg = S0 if t == 0 else S1
            for j in range(4):
                r = K0 + (t * 4 + j) * 4
                c = "0" if j == 0 else f"v[{sreg}:{sreg+3}]"
                a(f"  v_mfma_f32_16x16x32_bf16 v[{sreg}:{sreg+3}], v[{r}:{r+3}], v[{Q0+4*j}:{Q0+4*j+3}], {c}")
        if not last:
            a("""  s_add_u32 s33, s33, 8192
  s_add_u32 s34, s34, 8192""")
            kloads()
        else:
            a("  s_nop 7")
        a(f"""  s_nop 1
  v_max3_f32 v{MX}, v{S0}, v{S0+1}, v{S0+2}
  v_max3_f32 v{MX}, v{MX}, v{S0+3}, v{S1}
  v_max3_f32 v{MX}, v{MX}, v{S1+1}, v{S1+2}
  v_max_f32 v{MX}, v{MX}, v{S1+3}
  v_cmp_gt_f32 vcc, v{MX}, v{MRUN}
  s_cbranch_vccz L_fast_{tag}
  v_mov_b32 v{T0}, v{MX}
  s_nop 1
  v_permlane16_swap_b32 v{MX}, v{T0}
  v_max_f32 v{MX}, v{MX}, v{T0}
  v_mov_b32 v{T0}, v{MX}
  s_nop 1
  v_permlane32_swap_b32 v{MX}, v{T0}
  v_max_f32 v{MX}, v{MX}, v{T0}
  v_max_f32 v{MX}, v{MX}, v{MRUN}      ; m_new
  v_sub_f32 v{T0}, v{MRUN}, v{MX}
  v_mul_f32 v{T0}, s42, v{T0}
  v_exp_f32 v{AL}, v{T0}
  v_mov_b32 v{MRUN}, v{MX}
  v_mul_f32 v{MC}, s42, v{MX}
  v_mul_f32 v{L}, v{L}, v{AL}""")
        for i in range(32):
            a(f"  v_mul_f32 v{O0+i}, v{O0+i}, v{AL}")
        a(f"L_fast_{tag}:")
        for i in range(8):
            a(f"  v_fma_f32 v{S0+i}, v{S0+i}, s42, -v{MC}")
        for i in range(8):
            a(f"  v_exp_f32 v{S0+i}, v{S0+i}")
        a(f"""  s_nop 0
  v_add_f32 v{T0}, v{S0}, v{S0+1}
  v_add_f32 v{T1}, v{S0+2}, v{S0+3}
  v_add_f32 v{L}, v{L}, v{T0}
  v_add_f32 v{L}, v{L}, v{T1}
  v_add_f32 v{T0}, v{S0+4}, v{S0+5}
  v_add_f32 v{T1}, v{S0+6}, v{S0+7}
  v_add_f32 v{L}, v{L}, v{T0}
  v_add_f32 v{L}, v{L}, v{T1}""")
        for q in range(4):
            a(f"  v_cvt_pk_bf16_f32 v{P0+q}, v{S0+2*q}, v{S0+2*q+1}")
        a("  s_waitcnt vmcnt(0)" if last else "  s_waitcnt vmcnt(8)")
        def perms(e):
            sel = "s40" if (e & 1) == 0 else "s41"
            base = A0 + 4 * (e % 3)
            for q in range(4):
                lo = V0 + 4 * (2 * q) + (e >> 1)
                hi = V0 + 4 * (2 * q + 1) + (e >> 1)
                a(f"  v_perm_b32 v{base+q}, v{hi}, v{lo}, {sel}")
        def pv(e):
            base = A0 + 4 * (e % 3)
            o = O0 + 4 * e
            a(f"  v_mfma_f32_16x16x32_bf16 v[{o}:{o+3}], v[{base}:{base+3}], v[{P0}:{P0+3}], v[{o}:{o+3}]")
        perms(0)
        for e in range(8):
            if e + 1 < 8:
                perms(e + 1)
            else:
                a("  s_nop 1")
            pv(e)
        if not last:
            vloads()

    a("L_a_loop:")
    body(False, "m")
    a(f"""  s_add_u32 s35, s35, 1
  s_cmp_lt_u32 s35, {NIT-1}
  s_cbranch_scc1 L_a_loop""")
    body(True, "l")
    a(f"""  s_nop 7
  s_nop 7
  ; vaddr = w*2048 + h*512 + g*128
  v_lshlrev_b32 v150, 11, v3
  v_lshl_add_u32 v150, v147, 9, v150
  v_lshl_add_u32 v150, v148, 7, v150
  v_lshlrev_b32 v151, 6, v3
  v_lshl_add_u32 v151, v147, 4, v151
  v_lshl_add_u32 v151, v148, 2, v151
  v_lshlrev_b32 v152, 4, v3
  v_lshl_add_u32 v152, v147, 2, v152
  v_cmp_gt_u32 vcc, 4, v147
  s_and_saveexec_b64 s[36:37], vcc""")
    for e in range(8):
        for r in range(4):
            a(f"  ds_write_b32 v150, v{O0+4*e+r} offset:{r*32+e*4}")
    a(f"""  ds_write_b32 v151, v{L} offset:16384
  ds_write_b32 v152, v{MRUN} offset:16896
  s_mov_b64 exec, s[36:37]
  s_waitcnt lgkmcnt(0)
  s_barrier
  v_lshrrev_b32 v4, 7, v0         ; h
  v_lshlrev_b32 v5, 2, v4         ; h*4
  v_lshlrev_b32 v6, 4, v4         ; h*16
  v_lshlrev_b32 v7, 2, v0         ; t*4 = h*512+dim*4""")
    for w in range(8):
        a(f"  ds_read_b32 v{20+w}, v5 offset:{16896+w*16}")
    for w in range(8):
        a(f"  ds_read_b128 v[{32+4*w}:{35+4*w}], v6 offset:{16384+w*64}")
    for w in range(8):
        a(f"  ds_read_b32 v{64+w}, v7 offset:{w*2048}")
    a(f"""  s_waitcnt lgkmcnt(0)
  v_max3_f32 v8, v20, v21, v22
  v_max3_f32 v8, v8, v23, v24
  v_max3_f32 v8, v8, v25, v26
  v_max_f32 v8, v8, v27""")
    for w in range(8):
        a(f"  v_sub_f32 v{20+w}, v{20+w}, v8")
    for w in range(8):
        a(f"  v_mul_f32 v{20+w}, s42, v{20+w}")
    for w in range(8):
        a(f"  v_exp_f32 v{20+w}, v{20+w}")
    a("""  s_nop 0
  v_mov_b32 v9, 0
  v_mov_b32 v10, 0""")
    for w in range(8):
        b = 32 + 4 * w
        a(f"""  v_add_f32 v{b}, v{b}, v{b+1}
  v_add_f32 v{b+2}, v{b+2}, v{b+3}
  v_add_f32 v{b}, v{b}, v{b+2}
  v_fmac_f32 v9, v{20+w}, v{b}
  v_fmac_f32 v10, v{20+w}, v{64+w}""")
    a(f"""  ; store O: WS_PO + wg*2048 + t*4
  s_lshl_b32 s31, s2, 11
  s_add_u32 s31, s31, {WS_PO:#x}
  buffer_store_dword v10, v7, s[24:27], s31 offen
  v_and_b32 v11, 127, v0
  v_cmp_eq_u32 vcc, 0, v11
  v_lshlrev_b32 v12, 3, v4
  s_lshl_b32 s31, s2, 5
  s_add_u32 s31, s31, {WS_PML:#x}
  s_and_saveexec_b64 s[36:37], vcc
  buffer_store_dwordx2 v[8:9], v12, s[24:27], s31 offen
  s_mov_b64 exec, s[36:37]
L_a_end:
  s_endpgm""")
    return name, 160

def gen_oproj(a):
    name = "oproj_kernel"
    kernel_header(a, name)
    a(f"""  s_cmp_ge_u32 s2, 256
  s_cbranch_scc1 L_o_end
  s_load_dwordx2 s[4:5], s[0:1], 32     ; A_wo
  s_load_dwordx2 s[8:9], s[0:1], 72     ; B_wo
  s_load_dwordx2 s[12:13], s[0:1], 96   ; ws
  v_and_b32 v1, 63, v0
  v_lshrrev_b32 v5, 6, v0
  v_and_b32 v2, 15, v1            ; n
  v_lshrrev_b32 v3, 4, v1         ; g
  v_readfirstlane_b32 s30, v5
  s_lshr_b32 s28, s2, 7           ; p
  s_lshr_b32 s29, s2, 3
  s_and_b32 s29, s29, 15          ; ks
  s_and_b32 s43, s2, 7            ; slab
  s_mov_b32 s40, {SEL_LO:#x}
  s_mov_b32 s41, {SEL_HI:#x}
  s_mov_b32 s42, {C_BITS:#x}
  v_lshlrev_b32 v6, 13, v3        ; g*8192
  v_lshl_add_u32 v6, v2, 3, v6    ; + n*8
  s_waitcnt lgkmcnt(0)
  s_cmp_eq_u32 s28, 0
  s_cselect_b32 s4, s4, s8
  s_cselect_b32 s5, s5, s9""")
    srd(a, 20, 4, 5, 4096 * 512 * 2)
    srd(a, 24, 12, 13, WS_SIZE)
    a(f"""  ; wo soffset = (ks*256 + w*32)*1024 + slab*128
  s_lshl_b32 s31, s29, 18
  s_lshl_b32 s32, s30, 15
  s_add_u32 s31, s31, s32
  s_lshl_b32 s32, s43, 7
  s_add_u32 s31, s31, s32
  s_add_u32 s32, s31, 4096""")
    for i in range(8):
        a(f"  buffer_load_dwordx2 v[{16+2*i}:{17+2*i}], v6, s[20:23], s{31+(i>>2)} offen offset:{(i&3)*1024}")
    a(f"""  v_lshrrev_b32 v7, 5, v1         ; hi
  v_and_b32 v8, 31, v1
  v_lshlrev_b32 v9, 9, v7         ; hi*512
  v_lshl_add_u32 v9, v8, 4, v9
  v_lshlrev_b32 v10, 3, v7        ; hi*8
  s_lshl_b32 s33, s28, 6
  s_lshl_b32 s34, s30, 3
  s_add_u32 s33, s33, s34
  s_lshr_b32 s34, s29, 1
  s_add_u32 s33, s33, s34         ; unit
  s_and_b32 s35, s29, 1           ; ks&1
  s_lshl_b32 s36, s33, 12         ; unit*2*2048
  s_lshl_b32 s37, s35, 10         ; (ks&1)*2*512
  s_add_u32 s36, s36, s37
  s_add_u32 s36, s36, {WS_PO:#x}
  s_lshl_b32 s38, s33, 6          ; unit*2*32
  s_lshl_b32 s37, s35, 4
  s_add_u32 s38, s38, s37
  s_add_u32 s38, s38, {WS_PML:#x}
  buffer_load_dwordx4 v[32:35], v9, s[24:27], s36 offen
  buffer_load_dwordx4 v[36:39], v9, s[24:27], s36 offen offset:2048
  buffer_load_dwordx2 v[40:41], v10, s[24:27], s38 offen
  buffer_load_dwordx2 v[42:43], v10, s[24:27], s38 offen offset:32
  s_waitcnt vmcnt(0)
  v_max_f32 v44, v40, v42
  v_sub_f32 v40, v40, v44
  v_sub_f32 v42, v42, v44
  v_mul_f32 v40, s42, v40
  v_mul_f32 v42, s42, v42
  v_exp_f32 v40, v40
  v_exp_f32 v42, v42
  s_nop 0
  v_mul_f32 v45, v40, v41
  v_fmac_f32 v45, v42, v43
  v_rcp_f32 v45, v45
  s_nop 0
  v_mul_f32 v40, v40, v45
  v_mul_f32 v42, v42, v45""")
    for i in range(4):
        a(f"""  v_mul_f32 v{32+i}, v{32+i}, v40
  v_fmac_f32 v{32+i}, v{36+i}, v42""")
    a(f"""  v_cvt_pk_bf16_f32 v32, v32, v33
  v_cvt_pk_bf16_f32 v33, v34, v35
  v_lshlrev_b32 v11, 9, v5
  v_lshl_add_u32 v11, v1, 3, v11
  ds_write_b64 v11, v[32:33]
  s_waitcnt lgkmcnt(0)
  s_barrier
  v_lshlrev_b32 v11, 9, v2
  v_lshl_add_u32 v11, v5, 6, v11
  v_lshl_add_u32 v11, v3, 4, v11
  ds_read_b128 v[48:51], v11""")
    for e in range(4):
        sel = "s40" if (e & 1) == 0 else "s41"
        for q in range(4):
            lo = 16 + 2 * (2 * q) + (e >> 1)
            hi = 16 + 2 * (2 * q + 1) + (e >> 1)
            a(f"  v_perm_b32 v{56+4*e+q}, v{hi}, v{lo}, {sel}")
    a("  s_waitcnt lgkmcnt(0)")
    a("  s_nop 1")
    for e in range(4):
        a(f"  v_mfma_f32_16x16x32_bf16 v[{72+4*e}:{75+4*e}], v[48:51], v[{56+4*e}:{59+4*e}], 0")
    a(f"""  s_nop 7
  s_nop 7
  v_lshlrev_b32 v8, 10, v3        ; g*1024
  v_lshl_add_u32 v8, v2, 4, v8    ; + n*16
  v_lshl_add_u32 v8, v5, 11, v8   ; + w*2048
  v_cmp_gt_u32 vcc, 32, v1
  s_and_saveexec_b64 s[44:45], vcc""")
    for e in range(4):
        for r in range(4):
            a(f"  ds_write_b32 v8, v{72+4*e+r} offset:{8192+r*256+e*4}")
    a(f"""  s_mov_b64 exec, s[44:45]
  s_waitcnt lgkmcnt(0)
  s_barrier
  v_lshlrev_b32 v9, 2, v0""")
    for w in range(8):
        a(f"  ds_read_b32 v{16+w}, v9 offset:{8192+w*2048}")
    a(f"""  s_waitcnt lgkmcnt(0)
  v_add_f32 v16, v16, v17
  v_add_f32 v18, v18, v19
  v_add_f32 v20, v20, v21
  v_add_f32 v22, v22, v23
  v_add_f32 v16, v16, v18
  v_add_f32 v20, v20, v22
  v_add_f32 v16, v16, v20
  v_lshlrev_b32 v10, 11, v5
  v_lshl_add_u32 v10, v1, 2, v10
  s_lshl_b32 s33, s28, 4
  s_add_u32 s33, s33, s29
  s_lshl_b32 s33, s33, 14
  s_lshl_b32 s34, s43, 8
  s_add_u32 s33, s33, s34
  s_add_u32 s33, s33, {WS_POUT:#x}
  buffer_store_dword v16, v10, s[24:27], s33 offen
L_o_end:
  s_endpgm""")
    return name, 96

def gen_final(a):
    name = "final_kernel"
    kernel_header(a, name)
    a(f"""  s_cmp_ge_u32 s2, 32
  s_cbranch_scc1 L_f_end
  s_load_dwordx2 s[4:5], s[0:1], 80     ; out
  s_load_dwordx2 s[12:13], s[0:1], 96   ; ws
  s_lshl_b32 s3, s2, 8
  v_add_u32 v1, s3, v0            ; o = b*1024 + p*512 + n
  v_lshrrev_b32 v2, 10, v1        ; b
  v_bfe_u32 v3, v1, 9, 1          ; p
  v_and_b32 v4, 511, v1           ; n
  v_lshlrev_b32 v5, 18, v3
  v_lshl_add_u32 v5, v2, 11, v5
  v_lshl_add_u32 v5, v4, 2, v5
  v_lshlrev_b32 v6, 1, v1
  s_waitcnt lgkmcnt(0)""")
    srd(a, 16, 4, 5, 8192 * 2)
    srd(a, 24, 12, 13, WS_SIZE)
    for ks in range(16):
        a(f"""  s_mov_b32 s30, {WS_POUT + ks*16384:#x}
  buffer_load_dword v{16+ks}, v5, s[24:27], s30 offen""")
    a("  s_waitcnt vmcnt(0)")
    for st in (1, 2, 4, 8):
        for i in range(0, 16, 2 * st):
            a(f"  v_add_f32 v{16+i}, v{16+i}, v{16+i+st}")
    a(f"""  v_cvt_pk_bf16_f32 v16, v16, v16
  buffer_store_short v16, v6, s[16:19], 0 offen
L_f_end:
  s_endpgm""")
    return name, 40

def main():
    out = sys.argv[1] if len(sys.argv) > 1 else f"cdna_kernels/{NAME}.s"
    opts = {}
    for kv in sys.argv[2:]:
        k, v = kv.split("=", 1)
        opts[k] = v
    a = Asm()
    a("""; concat_heads gqa decode: q-proj -> flash-decode partials -> combine + out-proj partials -> reduce
; @launch kernel=qproj_kernel grid=(128,1,1) block=(512,1,1) lds=16384
; @launch kernel=attn_kernel grid=(256,1,1) block=(512,1,1) lds=17408
; @launch kernel=oproj_kernel grid=(256,1,1) block=(512,1,1) lds=24576
; @launch kernel=final_kernel grid=(32,1,1) block=(256,1,1) lds=0
.amdgcn_target "amdgcn-amd-amdhsa--gfx950"
.text""")
    ks = []
    ks.append(gen_qproj(a))
    ks.append(gen_attn(a, opts))
    ks.append(gen_oproj(a))
    ks.append(gen_final(a))
    a('.section .rodata,"a"')
    for n, v in ks:
        kernel_desc(a, n, v)
    open(out, "w").write(a.text())

main()
```

```python
import math, struct, sys

NAME = "concat_heads__gqa_block_cached__gqa_block_cached__decode"

def f32bits(x):
    return struct.unpack("<I", struct.pack("<f", x))[0]

C_SCALE = (128.0 ** -0.5) * math.log2(math.e)
C_BITS = f32bits(C_SCALE)

WS_Q = 0
WS_PO = 0x40000
WS_PML = 0xC0000
WS_POUT = 0x100000
WS_SIZE = 0x200000

class Asm:
    def __init__(self):
        self.lines = []
    def __call__(self, s):
        for ln in s.strip("\n").split("\n"):
            self.lines.append(ln)
    def text(self):
        return "\n".join(self.lines) + "\n"

def kernel_header(a, name):
    a(f""".globl {name}
.p2align 8
.type {name},@function
{name}:""")

def kernel_desc(a, name, vgpr, sgpr=96):
    acc = (vgpr + 3) // 4 * 4
    a(f""".p2align 6
.amdhsa_kernel {name}
  .amdhsa_next_free_vgpr {vgpr}
  .amdhsa_next_free_sgpr {sgpr}
  .amdhsa_accum_offset {acc}
  .amdhsa_group_segment_fixed_size 0
  .amdhsa_kernarg_size 104
  .amdhsa_user_sgpr_count 2
  .amdhsa_user_sgpr_kernarg_segment_ptr 1
  .amdhsa_system_sgpr_workgroup_id_x 1
.end_amdhsa_kernel""")

def srd(a, d, lo, hi, size):
    a(f"""  s_mov_b32 s{d}, s{lo}
  s_and_b32 s{d+1}, s{hi}, 0xffff
  s_mov_b32 s{d+2}, {size:#x}
  s_mov_b32 s{d+3}, 0x00020000""")

SEL_LO = 0x05040100
SEL_HI = 0x07060302

def gen_qproj(a):
    name = "qproj_kernel"
    kernel_header(a, name)
    a(f"""  s_cmp_ge_u32 s2, 128
  s_cbranch_scc1 L_q_end
  s_load_dwordx2 s[4:5], s[0:1], 0
  s_load_dwordx2 s[6:7], s[0:1], 24
  s_load_dwordx2 s[8:9], s[0:1], 40
  s_load_dwordx2 s[10:11], s[0:1], 64
  s_load_dwordx2 s[12:13], s[0:1], 96
  v_and_b32 v1, 63, v0
  v_lshrrev_b32 v5, 6, v0
  v_and_b32 v2, 15, v1            ; n
  v_lshrrev_b32 v3, 4, v1         ; g
  v_readfirstlane_b32 s30, v5
  s_lshr_b32 s28, s2, 6           ; p
  s_and_b32 s29, s2, 63           ; slab
  s_mov_b32 s40, {SEL_LO:#x}
  s_mov_b32 s41, {SEL_HI:#x}
  v_lshlrev_b32 v6, 16, v3        ; g*65536
  v_lshl_add_u32 v6, v2, 3, v6    ; + n*8  -> voffset W
  v_lshlrev_b32 v7, 10, v2        ; n*1024
  v_lshl_add_u32 v7, v3, 4, v7    ; + g*16 -> voffset x
  s_waitcnt lgkmcnt(0)
  s_cmp_eq_u32 s28, 0
  s_cselect_b32 s4, s4, s8
  s_cselect_b32 s5, s5, s9
  s_cselect_b32 s6, s6, s10
  s_cselect_b32 s7, s7, s11""")
    srd(a, 16, 4, 5, 8192)
    srd(a, 20, 6, 7, 512 * 4096 * 2)
    srd(a, 24, 12, 13, WS_SIZE)
    a(f"""  s_lshl_b32 s31, s30, 19
  s_lshl_b32 s32, s29, 7
  s_add_u32 s31, s31, s32
  s_lshl_b32 s33, s30, 7          ; x soffset = w*64*2""")
    for i in range(16):
        a(f"""  s_add_u32 s34, s31, {((i>>3)*32+(i&7))*8192:#x}
  buffer_load_dwordx2 v[{16+2*i}:{17+2*i}], v6, s[20:23], s34 offen""")
    a(f"""  buffer_load_dwordx4 v[48:51], v7, s[16:19], s33 offen
  buffer_load_dwordx4 v[52:55], v7, s[16:19], s33 offen offset:64
  s_waitcnt vmcnt(0)""")
    for grp in range(2):
        wb = 16 + 16 * grp
        for e in range(4):
            sel = "s40" if (e & 1) == 0 else "s41"
            for q in range(4):
                lo = wb + 2 * (2 * q) + (e >> 1)
                hi = wb + 2 * (2 * q + 1) + (e >> 1)
                a(f"  v_perm_b32 v{56+4*e+q}, v{hi}, v{lo}, {sel}")
        a("  s_nop 1")
        for e in range(4):
            c = "0" if grp == 0 else f"v[{72+4*e}:{75+4*e}]"
            a(f"  v_mfma_f32_16x16x32_bf16 v[{72+4*e}:{75+4*e}], v[{48+4*grp}:{51+4*grp}], v[{56+4*e}:{59+4*e}], {c}")
    a(f"""  s_nop 7
  s_nop 7
  v_lshlrev_b32 v8, 10, v3        ; g*1024
  v_lshl_add_u32 v8, v2, 4, v8    ; + n*16
  v_lshl_add_u32 v8, v5, 11, v8   ; + w*2048
  v_cmp_gt_u32 vcc, 32, v1
  s_and_saveexec_b64 s[36:37], vcc""")
    for e in range(4):
        for r in range(4):
            a(f"  ds_write_b32 v8, v{72+4*e+r} offset:{r*256+e*4}")
    a(f"""  s_mov_b64 exec, s[36:37]
  s_waitcnt lgkmcnt(0)
  s_barrier
  v_lshlrev_b32 v9, 2, v0         ; t*4 = b*256 + col*4""")
    for w in range(8):
        a(f"  ds_read_b32 v{16+w}, v9 offset:{w*2048}")
    a(f"""  s_waitcnt lgkmcnt(0)
  v_add_f32 v16, v16, v17
  v_add_f32 v18, v18, v19
  v_add_f32 v20, v20, v21
  v_add_f32 v22, v22, v23
  v_add_f32 v16, v16, v18
  v_add_f32 v20, v20, v22
  v_add_f32 v16, v16, v20
  v_cvt_pk_bf16_f32 v16, v16, v16
  v_lshlrev_b32 v10, 13, v5
  v_lshl_add_u32 v10, v1, 1, v10
  s_lshl_b32 s34, s28, 16
  s_lshl_b32 s35, s29, 7
  s_add_u32 s34, s34, s35
  buffer_store_short v16, v10, s[24:27], s34 offen
L_q_end:
  s_endpgm""")
    return name, 96

def gen_attn(a, opts):
    name = "attn_kernel"
    kernel_header(a, name)
    NIT = 16
    ldflags = opts.get("ldflags", "")
    depth = int(opts.get("depth", "1"))
    kpat = opts.get("kpat", "mfma")
    ileave = int(opts.get("ileave", "0"))
    Q0 = 4; O0 = 20; S0 = 52; S1 = 56; P0 = 60; A0 = 64
    MRUN = 76; MC = 77; L = 78; T0 = 79; T1 = 80; MX = 81; AL = 82
    NR = 83; GR = 84; VQ = 85; E0 = 86; E1 = 87; E2 = 88
    KV0 = 92
    nvgpr = KV0 + 64 * depth
    STEP = 8192 * (8 if ileave else 1)
    a(f"""  s_cmp_ge_u32 s2, 256
  s_cbranch_scc1 L_a_end
  s_load_dwordx4 s[4:7], s[0:1], 8      ; A_k, A_v
  s_load_dwordx4 s[8:11], s[0:1], 48    ; B_k, B_v
  s_load_dwordx2 s[12:13], s[0:1], 96   ; ws
  v_and_b32 v1, 63, v0
  v_lshrrev_b32 v3, 6, v0
  v_and_b32 v{NR}, 15, v1          ; n / h
  v_lshrrev_b32 v{GR}, 4, v1       ; g
  v_readfirstlane_b32 s30, v3
  s_lshr_b32 s28, s2, 7           ; p
  s_lshr_b32 s29, s2, 1
  s_and_b32 s29, s29, 63
  s_and_b32 s43, s2, 1            ; split
  s_mov_b32 s40, {SEL_LO:#x}
  s_mov_b32 s41, {SEL_HI:#x}
  s_mov_b32 s42, {C_BITS:#x}
  v_lshlrev_b32 v{VQ}, 8, v{NR}
  v_lshl_add_u32 v{VQ}, v{GR}, 4, v{VQ}  ; voffQ = n*256 + g*16
  v_lshlrev_b32 v2, 10, v{GR}
  v_lshl_add_u32 v2, v{NR}, 4, v2  ; voffV = g*1024 + n*16""")
    if kpat == "mfma":
        a(f"  v_mov_b32 v1, v{VQ}   ; voffK = n*256 + g*16")
    else:
        a(f"  v_lshlrev_b32 v1, 4, v1")
    for i in range(16):
        a(f"  v_mov_b32 v{Q0+i}, 0")
    for i in range(32):
        a(f"  v_mov_b32 v{O0+i}, 0")
    a(f"""  v_mov_b32 v{MRUN}, 0xff800000
  v_mov_b32 v{MC}, 0xff800000
  v_mov_b32 v{L}, 0
  s_waitcnt lgkmcnt(0)
  s_cmp_eq_u32 s28, 0
  s_cselect_b32 s4, s4, s8
  s_cselect_b32 s5, s5, s9
  s_cselect_b32 s6, s6, s10
  s_cselect_b32 s7, s7, s11""")
    srd(a, 16, 4, 5, 0x8000000)
    srd(a, 20, 6, 7, 0x8000000)
    srd(a, 24, 12, 13, WS_SIZE)
    a(f"""  s_lshl_b32 s31, s28, 16
  s_lshl_b32 s32, s29, 10
  s_add_u32 s31, s31, s32
  v_cmp_gt_u32 vcc, 4, v{NR}
  s_and_saveexec_b64 s[36:37], vcc""")
    for j in range(4):
        a(f"  buffer_load_dwordx4 v[{Q0+4*j}:{Q0+4*j+3}], v{VQ}, s[24:27], s31 offen offset:{j*64}")
    a(f"""  s_mov_b64 exec, s[36:37]
  s_lshl_b32 s33, s29, 21
  s_lshl_b32 s34, s43, 20
  s_add_u32 s33, s33, s34
  s_lshl_b32 s34, s30, {13 if ileave else 17}
  s_add_u32 s33, s33, s34
  s_add_u32 s34, s33, 4096
  s_mov_b32 s44, s33              ; V soffsets
  s_mov_b32 s45, s34
  s_mov_b32 s35, 0                ; iteration""")

    def kloads(st):
        K0 = KV0 + 64 * st
        for t in range(2):
            for j in range(4):
                r = K0 + (t * 4 + j) * 4
                off = j * 64 if kpat == "mfma" else j * 1024
                a(f"  buffer_load_dwordx4 v[{r}:{r+3}], v1, s[16:19], s{33+t} offen offset:{off} {ldflags}")
        a(f"""  s_add_u32 s33, s33, {STEP}
  s_add_u32 s34, s34, {STEP}""")
    def vloads(st):
        V0 = KV0 + 64 * st + 32
        for i in range(8):
            r = V0 + i * 4
            a(f"  buffer_load_dwordx4 v[{r}:{r+3}], v2, s[20:23], s{44+(i>>2)} offen offset:{(i&3)*256} {ldflags}")
        a(f"""  s_add_u32 s44, s44, {STEP}
  s_add_u32 s45, s45, {STEP}""")

    for st in range(depth):
        kloads(st)
        vloads(st)

    def body(st, issue, wk, wv, tag):
        K0 = KV0 + 64 * st
        V0 = K0 + 32
        a(f"  s_waitcnt vmcnt({wk})")
        for t in range(2):
            sreg = S0 if t == 0 else S1
            for j in range(4):
                r = K0 + (t * 4 + j) * 4
                c = "0" if j == 0 else f"v[{sreg}:{sreg+3}]"
                a(f"  v_mfma_f32_16x16x32_bf16 v[{sreg}:{sreg+3}], v[{r}:{r+3}], v[{Q0+4*j}:{Q0+4*j+3}], {c}")
        if issue:
            kloads(st)
        else:
            a("  s_nop 7")
        a(f"""  s_nop 1
  v_max3_f32 v{MX}, v{S0}, v{S0+1}, v{S0+2}
  v_max3_f32 v{MX}, v{MX}, v{S0+3}, v{S1}
  v_max3_f32 v{MX}, v{MX}, v{S1+1}, v{S1+2}
  v_max_f32 v{MX}, v{MX}, v{S1+3}
  v_cmp_gt_f32 vcc, v{MX}, v{MRUN}
  s_cbranch_vccz L_fast_{tag}
  v_mov_b32 v{T0}, v{MX}
  s_nop 1
  v_permlane16_swap_b32 v{MX}, v{T0}
  v_max_f32 v{MX}, v{MX}, v{T0}
  v_mov_b32 v{T0}, v{MX}
  s_nop 1
  v_permlane32_swap_b32 v{MX}, v{T0}
  v_max_f32 v{MX}, v{MX}, v{T0}
  v_max_f32 v{MX}, v{MX}, v{MRUN}      ; m_new
  v_sub_f32 v{T0}, v{MRUN}, v{MX}
  v_mul_f32 v{T0}, s42, v{T0}
  v_exp_f32 v{AL}, v{T0}
  v_mov_b32 v{MRUN}, v{MX}
  v_mul_f32 v{MC}, s42, v{MX}
  v_mul_f32 v{L}, v{L}, v{AL}""")
        for i in range(32):
            a(f"  v_mul_f32 v{O0+i}, v{O0+i}, v{AL}")
        a(f"L_fast_{tag}:")
        for i in range(8):
            a(f"  v_fma_f32 v{S0+i}, v{S0+i}, s42, -v{MC}")
        for i in range(8):
            a(f"  v_exp_f32 v{S0+i}, v{S0+i}")
        a(f"""  s_nop 0
  v_add_f32 v{T0}, v{S0}, v{S0+1}
  v_add_f32 v{T1}, v{S0+2}, v{S0+3}
  v_add_f32 v{L}, v{L}, v{T0}
  v_add_f32 v{L}, v{L}, v{T1}
  v_add_f32 v{T0}, v{S0+4}, v{S0+5}
  v_add_f32 v{T1}, v{S0+6}, v{S0+7}
  v_add_f32 v{L}, v{L}, v{T0}
  v_add_f32 v{L}, v{L}, v{T1}""")
        for q in range(4):
            a(f"  v_cvt_pk_bf16_f32 v{P0+q}, v{S0+2*q}, v{S0+2*q+1}")
        a(f"  s_waitcnt vmcnt({wv})")
        def perms(e):
            sel = "s40" if (e & 1) == 0 else "s41"
            base = A0 + 4 * (e % 3)
            for q in range(4):
                lo = V0 + 4 * (2 * q) + (e >> 1)
                hi = V0 + 4 * (2 * q + 1) + (e >> 1)
                a(f"  v_perm_b32 v{base+q}, v{hi}, v{lo}, {sel}")
        def pv(e):
            base = A0 + 4 * (e % 3)
            o = O0 + 4 * e
            a(f"  v_mfma_f32_16x16x32_bf16 v[{o}:{o+3}], v[{base}:{base+3}], v[{P0}:{P0+3}], v[{o}:{o+3}]")
        perms(0)
        for e in range(8):
            if e + 1 < 8:
                perms(e + 1)
            else:
                a("  s_nop 1")
            pv(e)
        if issue:
            vloads(st)

    full = 16 * depth - 8
    a("L_a_loop:")
    for st in range(depth):
        body(st, True, full, full, f"m{st}")
    a(f"""  s_add_u32 s35, s35, {depth}
  s_cmp_lt_u32 s35, {NIT-depth}
  s_cbranch_scc1 L_a_loop""")
    for st in range(depth):
        rem = depth - st
        body(st, False, 16 * rem - 8, 16 * rem - 16, f"l{st}")
    a(f"""  s_nop 7
  s_nop 7
  ; vaddr = w*2048 + h*512 + g*128
  v_lshlrev_b32 v{E0}, 11, v3
  v_lshl_add_u32 v{E0}, v{NR}, 9, v{E0}
  v_lshl_add_u32 v{E0}, v{GR}, 7, v{E0}
  v_lshlrev_b32 v{E1}, 6, v3
  v_lshl_add_u32 v{E1}, v{NR}, 4, v{E1}
  v_lshl_add_u32 v{E1}, v{GR}, 2, v{E1}
  v_lshlrev_b32 v{E2}, 4, v3
  v_lshl_add_u32 v{E2}, v{NR}, 2, v{E2}
  v_cmp_gt_u32 vcc, 4, v{NR}
  s_and_saveexec_b64 s[36:37], vcc""")
    for e in range(8):
        for r in range(4):
            a(f"  ds_write_b32 v{E0}, v{O0+4*e+r} offset:{r*32+e*4}")
    a(f"""  ds_write_b32 v{E1}, v{L} offset:16384
  ds_write_b32 v{E2}, v{MRUN} offset:16896
  s_mov_b64 exec, s[36:37]
  s_waitcnt lgkmcnt(0)
  s_barrier
  v_lshrrev_b32 v4, 7, v0         ; h
  v_lshlrev_b32 v5, 2, v4         ; h*4
  v_lshlrev_b32 v6, 4, v4         ; h*16
  v_lshlrev_b32 v7, 2, v0         ; t*4 = h*512+dim*4""")
    for w in range(8):
        a(f"  ds_read_b32 v{20+w}, v5 offset:{16896+w*16}")
    for w in range(8):
        a(f"  ds_read_b128 v[{32+4*w}:{35+4*w}], v6 offset:{16384+w*64}")
    for w in range(8):
        a(f"  ds_read_b32 v{64+w}, v7 offset:{w*2048}")
    a(f"""  s_waitcnt lgkmcnt(0)
  v_max3_f32 v8, v20, v21, v22
  v_max3_f32 v8, v8, v23, v24
  v_max3_f32 v8, v8, v25, v26
  v_max_f32 v8, v8, v27""")
    for w in range(8):
        a(f"  v_sub_f32 v{20+w}, v{20+w}, v8")
    for w in range(8):
        a(f"  v_mul_f32 v{20+w}, s42, v{20+w}")
    for w in range(8):
        a(f"  v_exp_f32 v{20+w}, v{20+w}")
    a("""  s_nop 0
  v_mov_b32 v9, 0
  v_mov_b32 v10, 0""")
    for w in range(8):
        b = 32 + 4 * w
        a(f"""  v_add_f32 v{b}, v{b}, v{b+1}
  v_add_f32 v{b+2}, v{b+2}, v{b+3}
  v_add_f32 v{b}, v{b}, v{b+2}
  v_fmac_f32 v9, v{20+w}, v{b}
  v_fmac_f32 v10, v{20+w}, v{64+w}""")
    a(f"""  ; store O: WS_PO + wg*2048 + t*4
  s_lshl_b32 s31, s2, 11
  s_add_u32 s31, s31, {WS_PO:#x}
  buffer_store_dword v10, v7, s[24:27], s31 offen
  v_and_b32 v11, 127, v0
  v_cmp_eq_u32 vcc, 0, v11
  v_lshlrev_b32 v12, 3, v4
  s_lshl_b32 s31, s2, 5
  s_add_u32 s31, s31, {WS_PML:#x}
  s_and_saveexec_b64 s[36:37], vcc
  buffer_store_dwordx2 v[8:9], v12, s[24:27], s31 offen
  s_mov_b64 exec, s[36:37]
L_a_end:
  s_endpgm""")
    return name, max(nvgpr, 160)

def gen_oproj(a):
    name = "oproj_kernel"
    kernel_header(a, name)
    a(f"""  s_cmp_ge_u32 s2, 256
  s_cbranch_scc1 L_o_end
  s_load_dwordx2 s[4:5], s[0:1], 32     ; A_wo
  s_load_dwordx2 s[8:9], s[0:1], 72     ; B_wo
  s_load_dwordx2 s[12:13], s[0:1], 96   ; ws
  v_and_b32 v1, 63, v0
  v_lshrrev_b32 v5, 6, v0
  v_and_b32 v2, 15, v1            ; n
  v_lshrrev_b32 v3, 4, v1         ; g
  v_readfirstlane_b32 s30, v5
  s_lshr_b32 s28, s2, 7           ; p
  s_lshr_b32 s29, s2, 3
  s_and_b32 s29, s29, 15          ; ks
  s_and_b32 s43, s2, 7            ; slab
  s_mov_b32 s40, {SEL_LO:#x}
  s_mov_b32 s41, {SEL_HI:#x}
  s_mov_b32 s42, {C_BITS:#x}
  v_lshlrev_b32 v6, 13, v3        ; g*8192
  v_lshl_add_u32 v6, v2, 3, v6    ; + n*8
  s_waitcnt lgkmcnt(0)
  s_cmp_eq_u32 s28, 0
  s_cselect_b32 s4, s4, s8
  s_cselect_b32 s5, s5, s9""")
    srd(a, 20, 4, 5, 4096 * 512 * 2)
    srd(a, 24, 12, 13, WS_SIZE)
    a(f"""  ; wo soffset = (ks*256 + w*32)*1024 + slab*128
  s_lshl_b32 s31, s29, 18
  s_lshl_b32 s32, s30, 15
  s_add_u32 s31, s31, s32
  s_lshl_b32 s32, s43, 7
  s_add_u32 s31, s31, s32
  s_add_u32 s32, s31, 4096""")
    for i in range(8):
        a(f"  buffer_load_dwordx2 v[{16+2*i}:{17+2*i}], v6, s[20:23], s{31+(i>>2)} offen offset:{(i&3)*1024}")
    a(f"""  v_lshrrev_b32 v7, 5, v1         ; hi
  v_and_b32 v8, 31, v1
  v_lshlrev_b32 v9, 9, v7         ; hi*512
  v_lshl_add_u32 v9, v8, 4, v9
  v_lshlrev_b32 v10, 3, v7        ; hi*8
  s_lshl_b32 s33, s28, 6
  s_lshl_b32 s34, s30, 3
  s_add_u32 s33, s33, s34
  s_lshr_b32 s34, s29, 1
  s_add_u32 s33, s33, s34         ; unit
  s_and_b32 s35, s29, 1           ; ks&1
  s_lshl_b32 s36, s33, 12         ; unit*2*2048
  s_lshl_b32 s37, s35, 10         ; (ks&1)*2*512
  s_add_u32 s36, s36, s37
  s_add_u32 s36, s36, {WS_PO:#x}
  s_lshl_b32 s38, s33, 6          ; unit*2*32
  s_lshl_b32 s37, s35, 4
  s_add_u32 s38, s38, s37
  s_add_u32 s38, s38, {WS_PML:#x}
  buffer_load_dwordx4 v[32:35], v9, s[24:27], s36 offen
  buffer_load_dwordx4 v[36:39], v9, s[24:27], s36 offen offset:2048
  buffer_load_dwordx2 v[40:41], v10, s[24:27], s38 offen
  buffer_load_dwordx2 v[42:43], v10, s[24:27], s38 offen offset:32
  s_waitcnt vmcnt(0)
  v_max_f32 v44, v40, v42
  v_sub_f32 v40, v40, v44
  v_sub_f32 v42, v42, v44
  v_mul_f32 v40, s42, v40
  v_mul_f32 v42, s42, v42
  v_exp_f32 v40, v40
  v_exp_f32 v42, v42
  s_nop 0
  v_mul_f32 v45, v40, v41
  v_fmac_f32 v45, v42, v43
  v_rcp_f32 v45, v45
  s_nop 0
  v_mul_f32 v40, v40, v45
  v_mul_f32 v42, v42, v45""")
    for i in range(4):
        a(f"""  v_mul_f32 v{32+i}, v{32+i}, v40
  v_fmac_f32 v{32+i}, v{36+i}, v42""")
    a(f"""  v_cvt_pk_bf16_f32 v32, v32, v33
  v_cvt_pk_bf16_f32 v33, v34, v35
  v_lshlrev_b32 v11, 9, v5
  v_lshl_add_u32 v11, v1, 3, v11
  ds_write_b64 v11, v[32:33]
  s_waitcnt lgkmcnt(0)
  s_barrier
  v_lshlrev_b32 v11, 9, v2
  v_lshl_add_u32 v11, v5, 6, v11
  v_lshl_add_u32 v11, v3, 4, v11
  ds_read_b128 v[48:51], v11""")
    for e in range(4):
        sel = "s40" if (e & 1) == 0 else "s41"
        for q in range(4):
            lo = 16 + 2 * (2 * q) + (e >> 1)
            hi = 16 + 2 * (2 * q + 1) + (e >> 1)
            a(f"  v_perm_b32 v{56+4*e+q}, v{hi}, v{lo}, {sel}")
    a("  s_waitcnt lgkmcnt(0)")
    a("  s_nop 1")
    for e in range(4):
        a(f"  v_mfma_f32_16x16x32_bf16 v[{72+4*e}:{75+4*e}], v[48:51], v[{56+4*e}:{59+4*e}], 0")
    a(f"""  s_nop 7
  s_nop 7
  v_lshlrev_b32 v8, 10, v3        ; g*1024
  v_lshl_add_u32 v8, v2, 4, v8    ; + n*16
  v_lshl_add_u32 v8, v5, 11, v8   ; + w*2048
  v_cmp_gt_u32 vcc, 32, v1
  s_and_saveexec_b64 s[44:45], vcc""")
    for e in range(4):
        for r in range(4):
            a(f"  ds_write_b32 v8, v{72+4*e+r} offset:{8192+r*256+e*4}")
    a(f"""  s_mov_b64 exec, s[44:45]
  s_waitcnt lgkmcnt(0)
  s_barrier
  v_lshlrev_b32 v9, 2, v0""")
    for w in range(8):
        a(f"  ds_read_b32 v{16+w}, v9 offset:{8192+w*2048}")
    a(f"""  s_waitcnt lgkmcnt(0)
  v_add_f32 v16, v16, v17
  v_add_f32 v18, v18, v19
  v_add_f32 v20, v20, v21
  v_add_f32 v22, v22, v23
  v_add_f32 v16, v16, v18
  v_add_f32 v20, v20, v22
  v_add_f32 v16, v16, v20
  v_lshlrev_b32 v10, 11, v5
  v_lshl_add_u32 v10, v1, 2, v10
  s_lshl_b32 s33, s28, 4
  s_add_u32 s33, s33, s29
  s_lshl_b32 s33, s33, 14
  s_lshl_b32 s34, s43, 8
  s_add_u32 s33, s33, s34
  s_add_u32 s33, s33, {WS_POUT:#x}
  buffer_store_dword v16, v10, s[24:27], s33 offen
L_o_end:
  s_endpgm""")
    return name, 96

def gen_final(a):
    name = "final_kernel"
    kernel_header(a, name)
    a(f"""  s_cmp_ge_u32 s2, 32
  s_cbranch_scc1 L_f_end
  s_load_dwordx2 s[4:5], s[0:1], 80     ; out
  s_load_dwordx2 s[12:13], s[0:1], 96   ; ws
  s_lshl_b32 s3, s2, 8
  v_add_u32 v1, s3, v0            ; o = b*1024 + p*512 + n
  v_lshrrev_b32 v2, 10, v1        ; b
  v_bfe_u32 v3, v1, 9, 1          ; p
  v_and_b32 v4, 511, v1           ; n
  v_lshlrev_b32 v5, 18, v3
  v_lshl_add_u32 v5, v2, 11, v5
  v_lshl_add_u32 v5, v4, 2, v5
  v_lshlrev_b32 v6, 1, v1
  s_waitcnt lgkmcnt(0)""")
    srd(a, 16, 4, 5, 8192 * 2)
    srd(a, 24, 12, 13, WS_SIZE)
    for ks in range(16):
        a(f"""  s_mov_b32 s30, {WS_POUT + ks*16384:#x}
  buffer_load_dword v{16+ks}, v5, s[24:27], s30 offen""")
    a("  s_waitcnt vmcnt(0)")
    for st in (1, 2, 4, 8):
        for i in range(0, 16, 2 * st):
            a(f"  v_add_f32 v{16+i}, v{16+i}, v{16+i+st}")
    a(f"""  v_cvt_pk_bf16_f32 v16, v16, v16
  buffer_store_short v16, v6, s[16:19], 0 offen
L_f_end:
  s_endpgm""")
    return name, 40

def main():
    out = sys.argv[1] if len(sys.argv) > 1 else f"cdna_kernels/{NAME}.s"
    opts = {}
    for kv in sys.argv[2:]:
        k, v = kv.split("=", 1)
        opts[k] = v
    a = Asm()
    a("""; concat_heads gqa decode: q-proj -> flash-decode partials -> combine + out-proj partials -> reduce
; @launch kernel=qproj_kernel grid=(128,1,1) block=(512,1,1) lds=16384
; @launch kernel=attn_kernel grid=(256,1,1) block=(512,1,1) lds=17408
; @launch kernel=oproj_kernel grid=(256,1,1) block=(512,1,1) lds=24576
; @launch kernel=final_kernel grid=(32,1,1) block=(256,1,1) lds=0
.amdgcn_target "amdgcn-amd-amdhsa--gfx950"
.text""")
    ks = []
    ks.append(gen_qproj(a))
    ks.append(gen_attn(a, opts))
    ks.append(gen_oproj(a))
    ks.append(gen_final(a))
    a('.section .rodata,"a"')
    for n, v in ks:
        kernel_desc(a, n, v)
    open(out, "w").write(a.text())

main()
```

```python
import math, struct, sys

NAME = "concat_heads__gqa_block_cached__gqa_block_cached__decode"

def f32bits(x):
    return struct.unpack("<I", struct.pack("<f", x))[0]

C_SCALE = (128.0 ** -0.5) * math.log2(math.e)
C_BITS = f32bits(C_SCALE)

WS_Q = 0
WS_PO = 0x40000
WS_PML = 0xC0000
WS_POUT = 0x100000
WS_SIZE = 0x200000

L_R1 = 17408
L_R2 = 25600
L_R3 = 41984
L_Q = 42240
LDS_BYTES = 43264

SEL_LO = 0x05040100
SEL_HI = 0x07060302

class Asm:
    def __init__(self):
        self.lines = []
    def __call__(self, s):
        for ln in s.strip("\n").split("\n"):
            self.lines.append(ln)
    def text(self):
        return "\n".join(self.lines) + "\n"

def srd(a, d, lo, hi, size):
    a(f"""  s_mov_b32 s{d}, s{lo}
  s_and_b32 s{d+1}, s{hi}, 0xffff
  s_mov_b32 s{d+2}, {size:#x}
  s_mov_b32 s{d+3}, 0x00020000""")

def kernel_header(a, name):
    a(f""".globl {name}
.p2align 8
.type {name},@function
{name}:""")

def kernel_desc(a, name, vgpr, sgpr=96):
    acc = (vgpr + 3) // 4 * 4
    a(f""".p2align 6
.amdhsa_kernel {name}
  .amdhsa_next_free_vgpr {vgpr}
  .amdhsa_next_free_sgpr {sgpr}
  .amdhsa_accum_offset {acc}
  .amdhsa_group_segment_fixed_size 0
  .amdhsa_kernarg_size 104
  .amdhsa_user_sgpr_count 2
  .amdhsa_user_sgpr_kernarg_segment_ptr 1
  .amdhsa_system_sgpr_workgroup_id_x 1
.end_amdhsa_kernel""")

def gen_qproj(a):
    name = "qproj_kernel"
    kernel_header(a, name)
    a(f"""  s_cmp_ge_u32 s2, 128
  s_cbranch_scc1 L_q_end
  s_load_dwordx2 s[4:5], s[0:1], 0
  s_load_dwordx2 s[6:7], s[0:1], 24
  s_load_dwordx2 s[8:9], s[0:1], 40
  s_load_dwordx2 s[10:11], s[0:1], 64
  s_load_dwordx2 s[12:13], s[0:1], 96
  v_and_b32 v1, 63, v0
  v_lshrrev_b32 v5, 6, v0
  v_and_b32 v2, 15, v1            ; n
  v_lshrrev_b32 v3, 4, v1         ; g
  v_readfirstlane_b32 s30, v5
  s_lshr_b32 s28, s2, 6           ; p
  s_and_b32 s29, s2, 63           ; slab
  s_mov_b32 s40, {SEL_LO:#x}
  s_mov_b32 s41, {SEL_HI:#x}
  v_lshlrev_b32 v6, 16, v3        ; g*65536
  v_lshl_add_u32 v6, v2, 3, v6    ; + n*8  -> voffset W
  v_lshlrev_b32 v7, 10, v2        ; n*1024
  v_lshl_add_u32 v7, v3, 4, v7    ; + g*16 -> voffset x
  s_waitcnt lgkmcnt(0)
  s_cmp_eq_u32 s28, 0
  s_cselect_b32 s4, s4, s8
  s_cselect_b32 s5, s5, s9
  s_cselect_b32 s6, s6, s10
  s_cselect_b32 s7, s7, s11""")
    srd(a, 16, 4, 5, 8192)
    srd(a, 20, 6, 7, 512 * 4096 * 2)
    srd(a, 24, 12, 13, WS_SIZE)
    a(f"""  s_lshl_b32 s31, s30, 19
  s_lshl_b32 s32, s29, 7
  s_add_u32 s31, s31, s32
  s_lshl_b32 s33, s30, 7          ; x soffset = w*64*2""")
    for i in range(16):
        a(f"""  s_add_u32 s34, s31, {((i>>3)*32+(i&7))*8192:#x}
  buffer_load_dwordx2 v[{16+2*i}:{17+2*i}], v6, s[20:23], s34 offen""")
    a(f"""  buffer_load_dwordx4 v[48:51], v7, s[16:19], s33 offen
  buffer_load_dwordx4 v[52:55], v7, s[16:19], s33 offen offset:64
  s_waitcnt vmcnt(0)""")
    for grp in range(2):
        wb = 16 + 16 * grp
        for e in range(4):
            sel = "s40" if (e & 1) == 0 else "s41"
            for q in range(4):
                lo = wb + 2 * (2 * q) + (e >> 1)
                hi = wb + 2 * (2 * q + 1) + (e >> 1)
                a(f"  v_perm_b32 v{56+4*e+q}, v{hi}, v{lo}, {sel}")
        a("  s_nop 1")
        for e in range(4):
            c = "0" if grp == 0 else f"v[{72+4*e}:{75+4*e}]"
            a(f"  v_mfma_f32_16x16x32_bf16 v[{72+4*e}:{75+4*e}], v[{48+4*grp}:{51+4*grp}], v[{56+4*e}:{59+4*e}], {c}")
    a(f"""  s_nop 7
  s_nop 7
  v_lshlrev_b32 v8, 10, v3        ; g*1024
  v_lshl_add_u32 v8, v2, 4, v8    ; + n*16
  v_lshl_add_u32 v8, v5, 11, v8   ; + w*2048
  v_cmp_gt_u32 vcc, 32, v1
  s_and_saveexec_b64 s[36:37], vcc""")
    for e in range(4):
        for r in range(4):
            a(f"  ds_write_b32 v8, v{72+4*e+r} offset:{r*256+e*4}")
    a(f"""  s_mov_b64 exec, s[36:37]
  s_waitcnt lgkmcnt(0)
  s_barrier
  v_lshlrev_b32 v9, 2, v0         ; t*4 = b*256 + col*4""")
    for w in range(8):
        a(f"  ds_read_b32 v{16+w}, v9 offset:{w*2048}")
    a(f"""  s_waitcnt lgkmcnt(0)
  v_add_f32 v16, v16, v17
  v_add_f32 v18, v18, v19
  v_add_f32 v20, v20, v21
  v_add_f32 v22, v22, v23
  v_add_f32 v16, v16, v18
  v_add_f32 v20, v20, v22
  v_add_f32 v16, v16, v20
  v_cvt_pk_bf16_f32 v16, v16, v16
  v_lshlrev_b32 v10, 13, v5
  v_lshl_add_u32 v10, v1, 1, v10
  s_lshl_b32 s34, s28, 16
  s_lshl_b32 s35, s29, 7
  s_add_u32 s34, s34, s35
  buffer_store_short v16, v10, s[24:27], s34 offen
L_q_end:
  s_endpgm""")
    return name, 96

def gen_oproj(a):
    name = "oproj_kernel"
    kernel_header(a, name)
    a(f"""  s_cmp_ge_u32 s2, 256
  s_cbranch_scc1 L_o_end
  s_load_dwordx2 s[4:5], s[0:1], 32     ; A_wo
  s_load_dwordx2 s[8:9], s[0:1], 72     ; B_wo
  s_load_dwordx2 s[12:13], s[0:1], 96   ; ws
  v_and_b32 v1, 63, v0
  v_lshrrev_b32 v5, 6, v0
  v_and_b32 v2, 15, v1            ; n
  v_lshrrev_b32 v3, 4, v1         ; g
  v_readfirstlane_b32 s30, v5
  s_lshr_b32 s28, s2, 7           ; p
  s_lshr_b32 s29, s2, 3
  s_and_b32 s29, s29, 15          ; ks
  s_and_b32 s43, s2, 7            ; slab
  s_mov_b32 s40, {SEL_LO:#x}
  s_mov_b32 s41, {SEL_HI:#x}
  s_mov_b32 s42, {C_BITS:#x}
  v_lshlrev_b32 v6, 13, v3        ; g*8192
  v_lshl_add_u32 v6, v2, 3, v6    ; + n*8
  s_waitcnt lgkmcnt(0)
  s_cmp_eq_u32 s28, 0
  s_cselect_b32 s4, s4, s8
  s_cselect_b32 s5, s5, s9""")
    srd(a, 20, 4, 5, 4096 * 512 * 2)
    srd(a, 24, 12, 13, WS_SIZE)
    a(f"""  ; wo soffset = (ks*256 + w*32)*1024 + slab*128
  s_lshl_b32 s31, s29, 18
  s_lshl_b32 s32, s30, 15
  s_add_u32 s31, s31, s32
  s_lshl_b32 s32, s43, 7
  s_add_u32 s31, s31, s32
  s_add_u32 s32, s31, 4096""")
    for i in range(8):
        a(f"  buffer_load_dwordx2 v[{16+2*i}:{17+2*i}], v6, s[20:23], s{31+(i>>2)} offen offset:{(i&3)*1024}")
    a(f"""  v_lshrrev_b32 v7, 5, v1         ; hi
  v_and_b32 v8, 31, v1
  v_lshlrev_b32 v9, 9, v7         ; hi*512
  v_lshl_add_u32 v9, v8, 4, v9
  v_lshlrev_b32 v10, 3, v7        ; hi*8
  s_lshl_b32 s33, s28, 6
  s_lshl_b32 s34, s30, 3
  s_add_u32 s33, s33, s34
  s_lshr_b32 s34, s29, 1
  s_add_u32 s33, s33, s34         ; unit
  s_and_b32 s35, s29, 1           ; ks&1
  s_lshl_b32 s36, s33, 12         ; unit*2*2048
  s_lshl_b32 s37, s35, 10         ; (ks&1)*2*512
  s_add_u32 s36, s36, s37
  s_add_u32 s36, s36, {WS_PO:#x}
  s_lshl_b32 s38, s33, 6          ; unit*2*32
  s_lshl_b32 s37, s35, 4
  s_add_u32 s38, s38, s37
  s_add_u32 s38, s38, {WS_PML:#x}
  buffer_load_dwordx4 v[32:35], v9, s[24:27], s36 offen
  buffer_load_dwordx4 v[36:39], v9, s[24:27], s36 offen offset:2048
  buffer_load_dwordx2 v[40:41], v10, s[24:27], s38 offen
  buffer_load_dwordx2 v[42:43], v10, s[24:27], s38 offen offset:32
  s_waitcnt vmcnt(0)
  v_max_f32 v44, v40, v42
  v_sub_f32 v40, v40, v44
  v_sub_f32 v42, v42, v44
  v_mul_f32 v40, s42, v40
  v_mul_f32 v42, s42, v42
  v_exp_f32 v40, v40
  v_exp_f32 v42, v42
  s_nop 0
  v_mul_f32 v45, v40, v41
  v_fmac_f32 v45, v42, v43
  v_rcp_f32 v45, v45
  s_nop 0
  v_mul_f32 v40, v40, v45
  v_mul_f32 v42, v42, v45""")
    for i in range(4):
        a(f"""  v_mul_f32 v{32+i}, v{32+i}, v40
  v_fmac_f32 v{32+i}, v{36+i}, v42""")
    a(f"""  v_cvt_pk_bf16_f32 v32, v32, v33
  v_cvt_pk_bf16_f32 v33, v34, v35
  v_lshlrev_b32 v11, 9, v5
  v_lshl_add_u32 v11, v1, 3, v11
  ds_write_b64 v11, v[32:33]
  s_waitcnt lgkmcnt(0)
  s_barrier
  v_lshlrev_b32 v11, 9, v2
  v_lshl_add_u32 v11, v5, 6, v11
  v_lshl_add_u32 v11, v3, 4, v11
  ds_read_b128 v[48:51], v11""")
    for e in range(4):
        sel = "s40" if (e & 1) == 0 else "s41"
        for q in range(4):
            lo = 16 + 2 * (2 * q) + (e >> 1)
            hi = 16 + 2 * (2 * q + 1) + (e >> 1)
            a(f"  v_perm_b32 v{56+4*e+q}, v{hi}, v{lo}, {sel}")
    a("  s_waitcnt lgkmcnt(0)")
    a("  s_nop 1")
    for e in range(4):
        a(f"  v_mfma_f32_16x16x32_bf16 v[{72+4*e}:{75+4*e}], v[48:51], v[{56+4*e}:{59+4*e}], 0")
    a(f"""  s_nop 7
  s_nop 7
  v_lshlrev_b32 v8, 10, v3        ; g*1024
  v_lshl_add_u32 v8, v2, 4, v8    ; + n*16
  v_lshl_add_u32 v8, v5, 11, v8   ; + w*2048
  v_cmp_gt_u32 vcc, 32, v1
  s_and_saveexec_b64 s[44:45], vcc""")
    for e in range(4):
        for r in range(4):
            a(f"  ds_write_b32 v8, v{72+4*e+r} offset:{8192+r*256+e*4}")
    a(f"""  s_mov_b64 exec, s[44:45]
  s_waitcnt lgkmcnt(0)
  s_barrier
  v_lshlrev_b32 v9, 2, v0""")
    for w in range(8):
        a(f"  ds_read_b32 v{16+w}, v9 offset:{8192+w*2048}")
    a(f"""  s_waitcnt lgkmcnt(0)
  v_add_f32 v16, v16, v17
  v_add_f32 v18, v18, v19
  v_add_f32 v20, v20, v21
  v_add_f32 v22, v22, v23
  v_add_f32 v16, v16, v18
  v_add_f32 v20, v20, v22
  v_add_f32 v16, v16, v20
  v_lshlrev_b32 v10, 11, v5
  v_lshl_add_u32 v10, v1, 2, v10
  s_lshl_b32 s33, s28, 4
  s_add_u32 s33, s33, s29
  s_lshl_b32 s33, s33, 14
  s_lshl_b32 s34, s43, 8
  s_add_u32 s33, s33, s34
  s_add_u32 s33, s33, {WS_POUT:#x}
  buffer_store_dword v16, v10, s[24:27], s33 offen
L_o_end:
  s_endpgm""")
    return name, 96

def gen_final(a):
    name = "final_kernel"
    kernel_header(a, name)
    a(f"""  s_cmp_ge_u32 s2, 32
  s_cbranch_scc1 L_f_end
  s_load_dwordx2 s[4:5], s[0:1], 80     ; out
  s_load_dwordx2 s[12:13], s[0:1], 96   ; ws
  s_lshl_b32 s3, s2, 8
  v_add_u32 v1, s3, v0            ; o = b*1024 + p*512 + n
  v_lshrrev_b32 v2, 10, v1        ; b
  v_bfe_u32 v3, v1, 9, 1          ; p
  v_and_b32 v4, 511, v1           ; n
  v_lshlrev_b32 v5, 18, v3
  v_lshl_add_u32 v5, v2, 11, v5
  v_lshl_add_u32 v5, v4, 2, v5
  v_lshlrev_b32 v6, 1, v1
  s_waitcnt lgkmcnt(0)""")
    srd(a, 16, 4, 5, 8192 * 2)
    srd(a, 24, 12, 13, WS_SIZE)
    for ks in range(16):
        a(f"""  s_mov_b32 s30, {WS_POUT + ks*16384:#x}
  buffer_load_dword v{16+ks}, v5, s[24:27], s30 offen""")
    a("  s_waitcnt vmcnt(0)")
    for st in (1, 2, 4, 8):
        for i in range(0, 16, 2 * st):
            a(f"  v_add_f32 v{16+i}, v{16+i}, v{16+i+st}")
    a(f"""  v_cvt_pk_bf16_f32 v16, v16, v16
  buffer_store_short v16, v6, s[16:19], 0 offen
L_f_end:
  s_endpgm""")
    return name, 40

def gen(a, opts):
    TAIL = int(opts.get('tail','1'))
    STAMP = int(opts.get("stamp", "0"))
    def stamp(idx):
        if not STAMP:
            return
        a(f"""  s_memrealtime s[90:91]
  s_waitcnt lgkmcnt(0)
  s_mov_b32 s{92 if False else 88}, s90
  v_writelane_b32 v{91}, s90, {idx}""")
        if idx == 0:
            a(f"""  s_not_b32 s90, s90
  v_writelane_b32 v91, s90, 10""")
    name = "attn_kernel"
    NIT = 16
    ldflags = opts.get("ldflags", "nt")
    depth = 2
    PSLEEP = int(opts.get("psleep", "1"))
    SPIN = int(opts.get("spin", "400000"))
    Q0 = 4; O0 = 20; S0 = 52; S1 = 56; P0 = 60; A0 = 64
    MRUN = 76; MC = 77; L = 78; T0 = 79; T1 = 80; MX = 81; AL = 82
    NR = 83; GR = 84; VQ = 85; E0 = 86; E1 = 87; E2 = 88; LANE = 89; VZ = 90; GRB = 85; CADDR = 92; ONE = 93
    KV0 = 96
    nvgpr = KV0 + 64 * depth
    STEP = 8192 * 8
    W0 = 20; X0 = 36; B0 = 44; D0 = 52
    a(f""".globl {name}
.p2align 8
.type {name},@function
{name}:
  s_cmp_ge_u32 s2, 256
  s_cbranch_scc1 L_end
  s_load_dwordx8 s[4:11], s[0:1], 0     ; A_x, A_k, A_v, A_wq
  s_load_dwordx8 s[72:79], s[0:1], 32   ; A_wo, B_x, B_k, B_v
  s_load_dwordx8 s[80:87], s[0:1], 64
  s_load_dwordx2 s[12:13], s[0:1], 96   ; ws
  v_and_b32 v{LANE}, 63, v0
  v_lshrrev_b32 v3, 6, v0
  v_and_b32 v{NR}, 15, v{LANE}          ; n / h
  v_lshrrev_b32 v{GR}, 4, v{LANE}       ; g
  v_readfirstlane_b32 s30, v3
  s_and_b32 s29, s2, 7            ; hkv
  s_lshr_b32 s28, s2, 7           ; p
  s_lshr_b32 s47, s2, 3
  s_and_b32 s47, s47, 15          ; mem
  s_lshl_b32 s68, s28, 3
  s_add_u32 s68, s68, s29
  s_lshl_b32 s89, s68, 4
  s_add_u32 s89, s89, s47         ; grp*16+mem
  s_lshr_b32 s46, s47, 1          ; b
  s_and_b32 s43, s47, 1           ; split
{'' if TAIL else '''  s_lshl_b32 s89, s28, 6
  s_lshl_b32 s31, s46, 3
  s_add_u32 s89, s89, s31
  s_add_u32 s89, s89, s29
  s_lshl_b32 s89, s89, 1
  s_add_u32 s89, s89, s43'''}
  s_mov_b32 s40, {SEL_LO:#x}
  s_mov_b32 s41, {SEL_HI:#x}
  s_mov_b32 s42, {C_BITS:#x}
  v_lshlrev_b32 v1, 8, v{NR}
  v_lshl_add_u32 v1, v{GR}, 4, v1
  v_lshlrev_b32 v2, 10, v{GR}
  v_lshl_add_u32 v2, v{NR}, 4, v2  ; voffV = g*1024 + n*16
  v_lshlrev_b32 v{E0}, 16, v{GR}
  v_lshl_add_u32 v{E0}, v{NR}, 4, v{E0}   ; voffW = g*65536 + n*16
  v_lshlrev_b32 v{E1}, 4, v{GR}           ; voffX = g*16
  v_mov_b32 v{VZ}, 0
  s_waitcnt lgkmcnt(0)
  s_cmp_eq_u32 s28, 0
  s_cselect_b32 s4, s4, s74       ; x
  s_cselect_b32 s5, s5, s75
  s_cselect_b32 s6, s6, s76       ; k
  s_cselect_b32 s7, s7, s77
  s_cselect_b32 s8, s8, s78       ; v
  s_cselect_b32 s9, s9, s79
  s_cselect_b32 s10, s10, s80     ; wq
  s_cselect_b32 s11, s11, s81
  s_cselect_b32 s72, s72, s82     ; wo
  s_cselect_b32 s73, s73, s83""")
    srd(a, 48, 10, 11, 512 * 4096 * 2)
    srd(a, 52, 4, 5, 8192)
    srd(a, 16, 6, 7, 0x8000000)
    srd(a, 20, 8, 9, 0x8000000)
    srd(a, 24, 12, 13, WS_SIZE)
    srd(a, 56, 72, 73, 4096 * 512 * 2)
    srd(a, 60, 84, 85, 8192 * 2)
    srd(a, 64, 86, 87, 256)
    stamp(0)
    a(f"""  ; K/V byte base = (b*8+hkv)*2MiB + split*1MiB
  s_lshl_b32 s71, s46, 3
  s_add_u32 s71, s71, s29
  s_lshl_b32 s71, s71, 21
  s_lshl_b32 s34, s43, 20
  s_add_u32 s71, s71, s34""")

    def setaddr(tile_sreg):
        a(f"""  s_lshl_b32 s33, {tile_sreg}, 13
  s_add_u32 s33, s33, s71
  s_add_u32 s34, s33, 4096""")
    def kloads(st):
        K0 = KV0 + 64 * st
        for t in range(2):
            for j in range(4):
                r = K0 + (t * 4 + j) * 4
                a(f"  buffer_load_dwordx4 v[{r}:{r+3}], v1, s[16:19], s{33+t} offen offset:{j*64} {ldflags}")
    def vloads(st):
        V0 = KV0 + 64 * st + 32
        for i in range(8):
            r = V0 + i * 4
            a(f"  buffer_load_dwordx4 v[{r}:{r+3}], v2, s[20:23], s{33+(i>>2)} offen offset:{(i&3)*256} {ldflags}")
    def grab():
        a(f"""  s_mov_b64 exec, 1
  ds_add_rtn_u32 v{GRB}, v{CADDR}, v{ONE}
  s_mov_b64 exec, -1""")
    def grab_read(sreg):
        a(f"""  s_waitcnt lgkmcnt(0)
  v_readfirstlane_b32 {sreg}, v{GRB}""")

    for i in range(16):
        a(f"  v_mov_b32 v{Q0+i}, 0")
    a(f"""  v_mov_b32 v{CADDR}, {L_R3+16}
  v_mov_b32 v{ONE}, 1
  s_lshl_b32 s31, s28, 16
  s_lshl_b32 s32, s46, 13
  s_add_u32 s31, s31, s32
  s_lshl_b32 s32, s29, 10
  s_add_u32 s31, s31, s32
  v_cmp_gt_u32 vcc, 4, v{NR}
  s_and_saveexec_b64 s[36:37], vcc""")
    for j in range(4):
        a(f"  buffer_load_dwordx4 v[{Q0+4*j}:{Q0+4*j+3}], v1, s[24:27], s31 offen offset:{j*64}")
    a(f"""  s_mov_b64 exec, s[36:37]
  s_mov_b32 s35, s30""")
    setaddr("s35")
    kloads(0); vloads(0)
    a("  s_add_u32 s35, s30, 8")
    setaddr("s35")
    kloads(1); vloads(1)
    a(f"""  v_mov_b32 v{GRB}, 16
  s_cmp_lg_u32 s30, 0
  s_cbranch_scc1 L_noinit
  s_mov_b64 exec, 1
  ds_write_b32 v{CADDR}, v{GRB}
  s_mov_b64 exec, -1
L_noinit:""")
    for i in range(32):
        a(f"  v_mov_b32 v{O0+i}, 0")
    a(f"""  v_mov_b32 v{MRUN}, 0xff800000
  v_mov_b32 v{MC}, 0xff800000
  v_mov_b32 v{L}, 0
  s_waitcnt lgkmcnt(0)
  s_barrier""")
    stamp(4)

    def body(st, issue, wk, wv, tag):
        K0 = KV0 + 64 * st
        V0 = K0 + 32
        a(f"  s_waitcnt vmcnt({wk})")
        for t in range(2):
            sreg = S0 if t == 0 else S1
            for j in range(4):
                r = K0 + (t * 4 + j) * 4
                c = "0" if j == 0 else f"v[{sreg}:{sreg+3}]"
                a(f"  v_mfma_f32_16x16x32_bf16 v[{sreg}:{sreg+3}], v[{r}:{r+3}], v[{Q0+4*j}:{Q0+4*j+3}], {c}")
        if issue:
            setaddr("s35")
            kloads(st)
            grab_read("s44")
        else:
            a("  s_nop 7")
        a(f"""  s_nop 1
  v_max3_f32 v{MX}, v{S0}, v{S0+1}, v{S0+2}
  v_max3_f32 v{MX}, v{MX}, v{S0+3}, v{S1}
  v_max3_f32 v{MX}, v{MX}, v{S1+1}, v{S1+2}
  v_max_f32 v{MX}, v{MX}, v{S1+3}
  v_cmp_gt_f32 vcc, v{MX}, v{MRUN}
  s_cbranch_vccz L_fast_{tag}
  v_mov_b32 v{T0}, v{MX}
  s_nop 1
  v_permlane16_swap_b32 v{MX}, v{T0}
  v_max_f32 v{MX}, v{MX}, v{T0}
  v_mov_b32 v{T0}, v{MX}
  s_nop 1
  v_permlane32_swap_b32 v{MX}, v{T0}
  v_max_f32 v{MX}, v{MX}, v{T0}
  v_max_f32 v{MX}, v{MX}, v{MRUN}      ; m_new
  v_sub_f32 v{T0}, v{MRUN}, v{MX}
  v_mul_f32 v{T0}, s42, v{T0}
  v_exp_f32 v{AL}, v{T0}
  v_mov_b32 v{MRUN}, v{MX}
  v_mul_f32 v{MC}, s42, v{MX}
  v_mul_f32 v{L}, v{L}, v{AL}""")
        for i in range(32):
            a(f"  v_mul_f32 v{O0+i}, v{O0+i}, v{AL}")
        a(f"L_fast_{tag}:")
        for i in range(8):
            a(f"  v_fma_f32 v{S0+i}, v{S0+i}, s42, -v{MC}")
        for i in range(8):
            a(f"  v_exp_f32 v{S0+i}, v{S0+i}")
        a(f"""  s_nop 0
  v_add_f32 v{T0}, v{S0}, v{S0+1}
  v_add_f32 v{T1}, v{S0+2}, v{S0+3}
  v_add_f32 v{L}, v{L}, v{T0}
  v_add_f32 v{L}, v{L}, v{T1}
  v_add_f32 v{T0}, v{S0+4}, v{S0+5}
  v_add_f32 v{T1}, v{S0+6}, v{S0+7}
  v_add_f32 v{L}, v{L}, v{T0}
  v_add_f32 v{L}, v{L}, v{T1}""")
        for q in range(4):
            a(f"  v_cvt_pk_bf16_f32 v{P0+q}, v{S0+2*q}, v{S0+2*q+1}")
        a(f"  s_waitcnt vmcnt({wv})")
        def perms(e):
            sel = "s40" if (e & 1) == 0 else "s41"
            base = A0 + 4 * (e % 3)
            for q in range(4):
                lo = V0 + 4 * (2 * q) + (e >> 1)
                hi = V0 + 4 * (2 * q + 1) + (e >> 1)
                a(f"  v_perm_b32 v{base+q}, v{hi}, v{lo}, {sel}")
        def pv(e):
            base = A0 + 4 * (e % 3)
            o = O0 + 4 * e
            a(f"  v_mfma_f32_16x16x32_bf16 v[{o}:{o+3}], v[{base}:{base+3}], v[{P0}:{P0+3}], v[{o}:{o+3}]")
        perms(0)
        for e in range(8):
            if e + 1 < 8:
                perms(e + 1)
            else:
                a("  s_nop 1")
            pv(e)
        if issue:
            vloads(st)

    a("L_first_grab:")
    grab(); grab_read("s35")
    a("L_a_loop:")
    for st in range(2):
        a(f"""  s_cmp_ge_u32 s35, 128
  s_cbranch_scc1 L_drain_{st}""")
        grab()
        body(st, True, 24, 24, f"m{st}")
        a("  s_mov_b32 s35, s44")
    a("  s_branch L_a_loop")
    for st in range(2):
        a(f"L_drain_{st}:")
        body(st, False, 24, 16, f"d{st}a")
        body(1 - st, False, 8, 0, f"d{st}b")
        a("  s_branch L_loop_done")
    a("L_loop_done:")
    stamp(5)
    WOR = KV0
    DO = KV0 + 16
    a(f"""  ; wo loads: rows hkv*512 + ksl*256 + w*32 + g*8 + i ; cols slab*64 + n*4 ; ksl = mem>>3, slab = mem&7
  v_lshlrev_b32 v{E0}, 13, v{GR}
  v_lshl_add_u32 v{E0}, v{NR}, 3, v{E0}    ; g*8192 + n*8
  s_lshr_b32 s69, s47, 3          ; ksl
  s_and_b32 s70, s47, 7           ; slab
  s_lshl_b32 s31, s29, 19         ; hkv*512*1024
  s_lshl_b32 s32, s69, 18
  s_add_u32 s31, s31, s32
  s_lshl_b32 s32, s30, 15
  s_add_u32 s31, s31, s32
  s_lshl_b32 s32, s70, 7
  s_add_u32 s31, s31, s32
  s_add_u32 s32, s31, 4096""")
    for i in range(8):
        a(f"  buffer_load_dwordx2 v[{WOR+2*i}:{WOR+2*i+1}], v{E0}, s[56:59], s{31+(i>>2)} offen offset:{(i&3)*1024}")
    a(f"""  s_nop 3
  ; vaddr = w*2048 + h*512 + g*128
  v_lshlrev_b32 v{E0}, 11, v3
  v_lshl_add_u32 v{E0}, v{NR}, 9, v{E0}
  v_lshl_add_u32 v{E0}, v{GR}, 7, v{E0}
  v_lshlrev_b32 v{E1}, 6, v3
  v_lshl_add_u32 v{E1}, v{NR}, 4, v{E1}
  v_lshl_add_u32 v{E1}, v{GR}, 2, v{E1}
  v_lshlrev_b32 v{E2}, 4, v3
  v_lshl_add_u32 v{E2}, v{NR}, 2, v{E2}
  v_cmp_gt_u32 vcc, 4, v{NR}
  s_and_saveexec_b64 s[36:37], vcc""")
    for e in range(8):
        for r in range(4):
            a(f"  ds_write_b32 v{E0}, v{O0+4*e+r} offset:{r*32+e*4}")
    a(f"""  ds_write_b32 v{E1}, v{L} offset:16384
  ds_write_b32 v{E2}, v{MRUN} offset:16896
  s_mov_b64 exec, s[36:37]
  s_waitcnt lgkmcnt(0)
  s_barrier
  v_lshrrev_b32 v4, 7, v0         ; h
  v_lshlrev_b32 v5, 2, v4         ; h*4
  v_lshlrev_b32 v6, 4, v4         ; h*16
  v_lshlrev_b32 v7, 2, v0         ; t*4 = h*512+dim*4""")
    for w in range(8):
        a(f"  ds_read_b32 v{20+w}, v5 offset:{16896+w*16}")
    for w in range(8):
        a(f"  ds_read_b128 v[{32+4*w}:{35+4*w}], v6 offset:{16384+w*64}")
    for w in range(8):
        a(f"  ds_read_b32 v{64+w}, v7 offset:{w*2048}")
    a(f"""  s_waitcnt lgkmcnt(0)
  v_max3_f32 v8, v20, v21, v22
  v_max3_f32 v8, v8, v23, v24
  v_max3_f32 v8, v8, v25, v26
  v_max_f32 v8, v8, v27""")
    for w in range(8):
        a(f"  v_sub_f32 v{20+w}, v{20+w}, v8")
    for w in range(8):
        a(f"  v_mul_f32 v{20+w}, s42, v{20+w}")
    for w in range(8):
        a(f"  v_exp_f32 v{20+w}, v{20+w}")
    a("""  s_nop 0
  v_mov_b32 v9, 0
  v_mov_b32 v10, 0""")
    for w in range(8):
        b = 32 + 4 * w
        a(f"""  v_add_f32 v{b}, v{b}, v{b+1}
  v_add_f32 v{b+2}, v{b+2}, v{b+3}
  v_add_f32 v{b}, v{b}, v{b+2}
  v_fmac_f32 v9, v{20+w}, v{b}
  v_fmac_f32 v10, v{20+w}, v{64+w}""")
    a(f"""  ; store O: WS_PO + wg*2048 + t*4
  s_lshl_b32 s31, s89, 11
  s_add_u32 s31, s31, {WS_PO:#x}
  buffer_store_dword v10, v7, s[24:27], s31 offen sc1
  v_and_b32 v11, 127, v0
  v_cmp_eq_u32 vcc, 0, v11
  v_lshlrev_b32 v12, 3, v4
  s_lshl_b32 s31, s89, 5
  s_add_u32 s31, s31, {WS_PML:#x}
  s_and_saveexec_b64 s[36:37], vcc
  buffer_store_dwordx2 v[8:9], v12, s[24:27], s31 offen sc1
  s_mov_b64 exec, s[36:37]
{'' if TAIL else '  s_branch L_fin'}
  s_waitcnt vmcnt(0)
  s_barrier""")
    stamp(6)
    a(f"""  s_cmp_lg_u32 s30, 0
  s_cbranch_scc1 L_p_wait
  s_lshl_b32 s31, s68, 2
  s_add_u32 s31, s31, 64          ; S2 counter
  v_mov_b32 v{E1}, 1
  s_mov_b64 s[36:37], exec
  s_mov_b64 exec, 1
  buffer_atomic_add v{E1}, v{VZ}, s[64:67], s31 offen sc1
  s_mov_b32 s38, {SPIN}
L_p_poll:
  buffer_load_dword v{E1}, v{VZ}, s[64:67], s31 offen sc1
  s_waitcnt vmcnt(0)
  v_readfirstlane_b32 s39, v{E1}
  s_cmp_ge_u32 s39, 16
  s_cbranch_scc1 L_p_done
  s_sleep {PSLEEP}
  s_sub_u32 s38, s38, 1
  s_cmp_lg_u32 s38, 0
  s_cbranch_scc1 L_p_poll
L_p_done:
  s_mov_b64 exec, s[36:37]""")
    stamp(7)
    a(f"""L_p_wait:
  s_barrier
  v_lshrrev_b32 v7, 5, v{LANE}
  v_and_b32 v8, 31, v{LANE}
  v_lshlrev_b32 v9, 9, v7
  v_lshl_add_u32 v9, v8, 4, v9
  v_lshlrev_b32 v10, 3, v7         ; hi*8
  s_lshl_b32 s33, s68, 4
  s_lshl_b32 s34, s30, 1
  s_add_u32 s33, s33, s34          ; grp*16 + b'*2
  s_lshl_b32 s36, s33, 11
  s_lshl_b32 s37, s69, 10
  s_add_u32 s36, s36, s37
  s_add_u32 s36, s36, {WS_PO:#x}
  s_lshl_b32 s38, s33, 5
  s_lshl_b32 s37, s69, 4
  s_add_u32 s38, s38, s37
  s_add_u32 s38, s38, {WS_PML:#x}
  buffer_load_dwordx4 v[32:35], v9, s[24:27], s36 offen sc1
  buffer_load_dwordx4 v[36:39], v9, s[24:27], s36 offen offset:2048 sc1
  buffer_load_dwordx2 v[40:41], v10, s[24:27], s38 offen sc1
  buffer_load_dwordx2 v[42:43], v10, s[24:27], s38 offen offset:32 sc1""")
    for e in range(4):
        sel = "s40" if (e & 1) == 0 else "s41"
        for q in range(4):
            lo = WOR + 2 * (2 * q) + (e >> 1)
            hi = WOR + 2 * (2 * q + 1) + (e >> 1)
            a(f"  v_perm_b32 v{56+4*e+q}, v{hi}, v{lo}, {sel}")
    a(f"""  s_waitcnt vmcnt(0)
  v_max_f32 v44, v40, v42
  v_sub_f32 v40, v40, v44
  v_sub_f32 v42, v42, v44
  v_mul_f32 v40, s42, v40
  v_mul_f32 v42, s42, v42
  v_exp_f32 v40, v40
  v_exp_f32 v42, v42
  s_nop 0
  v_mul_f32 v45, v40, v41
  v_fmac_f32 v45, v42, v43
  v_rcp_f32 v45, v45
  s_nop 0
  v_mul_f32 v40, v40, v45
  v_mul_f32 v42, v42, v45""")
    for i in range(4):
        a(f"""  v_mul_f32 v{32+i}, v{32+i}, v40
  v_fmac_f32 v{32+i}, v{36+i}, v42""")
    a(f"""  v_cvt_pk_bf16_f32 v32, v32, v33
  v_cvt_pk_bf16_f32 v33, v34, v35
  v_lshlrev_b32 v11, 9, v3
  v_lshl_add_u32 v11, v{LANE}, 3, v11     ; b'*512 + lane*8
  ds_write_b64 v11, v[32:33] offset:{L_R1}
  s_waitcnt lgkmcnt(0)
  s_barrier
  v_lshlrev_b32 v11, 9, v{NR}
  v_lshl_add_u32 v11, v3, 6, v11
  v_lshl_add_u32 v11, v{GR}, 4, v11       ; n*512 + w*64 + g*16
  ds_read_b128 v[48:51], v11 offset:{L_R1}
  s_waitcnt lgkmcnt(0)
  s_nop 1""")
    for e in range(4):
        a(f"  v_mfma_f32_16x16x32_bf16 v[{DO+4*e}:{DO+4*e+3}], v[48:51], v[{56+4*e}:{59+4*e}], 0")
    a(f"""  v_lshlrev_b32 v8, 10, v{GR}
  v_lshl_add_u32 v8, v{NR}, 4, v8
  v_lshl_add_u32 v8, v3, 11, v8    ; w*2048 + g*1024 + n*16
  v_cmp_gt_u32 vcc, 32, v{LANE}
  s_nop 7
  s_nop 3
  s_and_saveexec_b64 s[36:37], vcc""")
    for e in range(4):
        for r in range(4):
            a(f"  ds_write_b32 v8, v{DO+4*e+r} offset:{L_R2+r*256+e*4}")
    a(f"""  s_mov_b64 exec, s[36:37]
  s_waitcnt lgkmcnt(0)
  s_barrier
  v_lshlrev_b32 v9, 2, v0""")
    for w in range(8):
        a(f"  ds_read_b32 v{16+w}, v9 offset:{L_R2+w*2048}")
    a(f"""  s_waitcnt lgkmcnt(0)
  v_add_f32 v16, v16, v17
  v_add_f32 v18, v18, v19
  v_add_f32 v20, v20, v21
  v_add_f32 v22, v22, v23
  v_add_f32 v16, v16, v18
  v_add_f32 v20, v20, v22
  v_add_f32 v16, v16, v20
  s_lshl_b32 s33, s28, 3
  s_add_u32 s33, s33, s70          ; p*8+slab
  s_lshl_b32 s34, s33, 15
  s_add_u32 s34, s34, {WS_POUT:#x}
  s_lshl_b32 s35, s29, 1
  s_add_u32 s35, s35, s69
  s_lshl_b32 s35, s35, 11
  s_add_u32 s35, s35, s34
  buffer_store_dword v16, v9, s[24:27], s35 offen sc1
  s_waitcnt vmcnt(0)
  s_barrier""")
    stamp(8)
    a(f"""
  s_cmp_lg_u32 s30, 0
  s_cbranch_scc1 L_o_wait
  s_lshl_b32 s31, s33, 2
  s_add_u32 s31, s31, 128          ; S3 counter
  v_mov_b32 v{E1}, 1
  s_mov_b64 s[36:37], exec
  s_mov_b64 exec, 1
  buffer_atomic_add v{E1}, v{VZ}, s[64:67], s31 offen sc0 sc1
  s_waitcnt vmcnt(0)
  v_mov_b32 v{E2}, {L_R3}
  ds_write_b32 v{E2}, v{E1}
  s_waitcnt lgkmcnt(0)
  s_mov_b64 exec, s[36:37]
L_o_wait:
  s_barrier
  v_mov_b32 v{E2}, {L_R3}
  ds_read_b32 v{E1}, v{E2}
  s_waitcnt lgkmcnt(0)
  v_readfirstlane_b32 s39, v{E1}
  s_cmp_lg_u32 s39, 15
  s_cbranch_scc1 L_fin
  ; last arriver: reduce the 16 partials of (p,slab)""")
    for ks in range(16):
        a(f"""  s_add_u32 s35, s34, {ks*2048}
  buffer_load_dword v{16+ks}, v9, s[24:27], s35 offen sc1""")
    a(f"""  ; out byte = b'*2048 + p*1024 + slab*128 + col*2
  v_lshlrev_b32 v10, 11, v3
  v_lshl_add_u32 v10, v{LANE}, 1, v10
  s_lshl_b32 s35, s33, 7
  s_waitcnt vmcnt(0)""")
    for st in (1, 2, 4, 8):
        for i in range(0, 16, 2 * st):
            a(f"  v_add_f32 v{16+i}, v{16+i}, v{16+i+st}")
    a(f"""  v_cvt_pk_bf16_f32 v16, v16, v16
  buffer_store_short v16, v10, s[60:63], s35 offen
  s_waitcnt vmcnt(0)
L_fin:""")
    stamp(9)
    if STAMP:
        a(f"""  s_cmp_lg_u32 s30, 0
  s_cbranch_scc1 L_end
  v_lshlrev_b32 v10, 2, v{LANE}
  s_lshl_b32 s35, s2, 6
  s_add_u32 s35, s35, 0x180000
  v_cmp_gt_u32 vcc, 16, v{LANE}
  s_and_saveexec_b64 s[36:37], vcc
  buffer_store_dword v91, v10, s[24:27], s35 offen
  s_mov_b64 exec, s[36:37]""")
        if STAMP == 2:
            a(f"""  v_cmp_gt_u32 vcc, 11, v{LANE}
  s_and_saveexec_b64 s[36:37], vcc
  buffer_atomic_umax v91, v10, s[64:67], 0 offen sc1
  s_mov_b64 exec, s[36:37]""")
    a(f"""L_end:
  s_endpgm""")
    acc = (nvgpr + 3) // 4 * 4
    extra = [gen_qproj(a)]
    if not TAIL:
        extra += [gen_oproj(a), gen_final(a)]
    a('.section .rodata,"a"')
    for qn, qv in extra:
        kernel_desc(a, qn, qv)
    a(f""".p2align 6
.amdhsa_kernel {name}
  .amdhsa_next_free_vgpr {max(nvgpr,160)}
  .amdhsa_next_free_sgpr 96
  .amdhsa_accum_offset {max(acc,160)}
  .amdhsa_group_segment_fixed_size 0
  .amdhsa_kernarg_size 104
  .amdhsa_user_sgpr_count 2
  .amdhsa_user_sgpr_kernarg_segment_ptr 1
  .amdhsa_system_sgpr_workgroup_id_x 1
.end_amdhsa_kernel""")

TAILL = '''
; @launch kernel=oproj_kernel grid=(256,1,1) block=(512,1,1) lds=24576
; @launch kernel=final_kernel grid=(32,1,1) block=(256,1,1) lds=0'''
def main():
    out = sys.argv[1] if len(sys.argv) > 1 else f"cdna_kernels/{NAME}.s"
    opts = {}
    for kv in sys.argv[2:]:
        k, v = kv.split("=", 1)
        opts[k] = v
    a = Asm()
    a(f"""; concat_heads gqa decode: fused q-proj -> flash-decode -> combine -> out-proj (16-workgroup group hand-offs)
; @launch kernel=qproj_kernel grid=(128,1,1) block=(512,1,1) lds=16384
; @launch kernel=attn_kernel grid=(256,1,1) block=(512,1,1) lds={LDS_BYTES}{'' if int(opts.get('tail','1')) else TAILL}
.amdgcn_target "amdgcn-amd-amdhsa--gfx950"
.text""")
    gen(a, opts)
    open(out, "w").write(a.text())

main()
```

```python
import math, struct, sys

NAME = "concat_heads__gqa_block_cached__gqa_block_cached__decode"

def f32bits(x):
    return struct.unpack("<I", struct.pack("<f", x))[0]

C_SCALE = (128.0 ** -0.5) * math.log2(math.e)
C_BITS = f32bits(C_SCALE)

WS_Q = 0
WS_PO = 0x40000
WS_PML = 0xC0000
WS_POUT = 0x100000
WS_CNT = 0x1C0000
WS_SIZE = 0x200000

L_R1 = 17408
L_R2 = 25600
L_R3 = 41984
L_Q = 42240
LDS_BYTES = 43264

SEL_LO = 0x05040100
SEL_HI = 0x07060302

class Asm:
    def __init__(self):
        self.lines = []
    def __call__(self, s):
        for ln in s.strip("\n").split("\n"):
            self.lines.append(ln)
    def text(self):
        return "\n".join(self.lines) + "\n"

def srd(a, d, lo, hi, size):
    a(f"""  s_mov_b32 s{d}, s{lo}
  s_and_b32 s{d+1}, s{hi}, 0xffff
  s_mov_b32 s{d+2}, {size:#x}
  s_mov_b32 s{d+3}, 0x00020000""")

def kernel_header(a, name):
    a(f""".globl {name}
.p2align 8
.type {name},@function
{name}:""")

def kernel_desc(a, name, vgpr, sgpr=96):
    acc = (vgpr + 3) // 4 * 4
    a(f""".p2align 6
.amdhsa_kernel {name}
  .amdhsa_next_free_vgpr {vgpr}
  .amdhsa_next_free_sgpr {sgpr}
  .amdhsa_accum_offset {acc}
  .amdhsa_group_segment_fixed_size 0
  .amdhsa_kernarg_size 104
  .amdhsa_user_sgpr_count 2
  .amdhsa_user_sgpr_kernarg_segment_ptr 1
  .amdhsa_system_sgpr_workgroup_id_x 1
.end_amdhsa_kernel""")

def gen_qproj(a, PF=0):
    name = "qproj_kernel"
    kernel_header(a, name)
    a(f"""  s_cmp_ge_u32 s2, 128
  s_cbranch_scc1 {'L_pf' if PF else 'L_q_end'}
  s_load_dwordx2 s[4:5], s[0:1], 0
  s_load_dwordx2 s[6:7], s[0:1], 24
  s_load_dwordx2 s[8:9], s[0:1], 40
  s_load_dwordx2 s[10:11], s[0:1], 64
  s_load_dwordx2 s[12:13], s[0:1], 96
  v_and_b32 v1, 63, v0
  v_lshrrev_b32 v5, 6, v0
  v_and_b32 v2, 15, v1            ; n
  v_lshrrev_b32 v3, 4, v1         ; g
  v_readfirstlane_b32 s30, v5
  s_lshr_b32 s28, s2, 6           ; p
  s_and_b32 s29, s2, 63           ; slab
  s_mov_b32 s40, {SEL_LO:#x}
  s_mov_b32 s41, {SEL_HI:#x}
  v_lshlrev_b32 v6, 16, v3        ; g*65536
  v_lshl_add_u32 v6, v2, 3, v6    ; + n*8  -> voffset W
  v_lshlrev_b32 v7, 10, v2        ; n*1024
  v_lshl_add_u32 v7, v3, 4, v7    ; + g*16 -> voffset x
  s_waitcnt lgkmcnt(0)
  s_cmp_eq_u32 s28, 0
  s_cselect_b32 s4, s4, s8
  s_cselect_b32 s5, s5, s9
  s_cselect_b32 s6, s6, s10
  s_cselect_b32 s7, s7, s11""")
    srd(a, 16, 4, 5, 8192)
    srd(a, 20, 6, 7, 512 * 4096 * 2)
    srd(a, 24, 12, 13, WS_SIZE)
    a(f"""  s_cmp_ge_u32 s2, 16
  s_cbranch_scc1 L_q_nocnt
  s_cmp_lg_u32 s30, 0
  s_cbranch_scc1 L_q_nocnt
  s_lshl_b32 s31, s2, 8
  s_add_u32 s31, s31, {WS_CNT:#x}
  v_mov_b32 v8, 0
  s_mov_b64 exec, 1
  buffer_store_dword v8, v8, s[24:27], s31 offen
  s_mov_b64 exec, -1
L_q_nocnt:""")
    a(f"""  s_lshl_b32 s31, s30, 19
  s_lshl_b32 s32, s29, 7
  s_add_u32 s31, s31, s32
  s_lshl_b32 s33, s30, 7          ; x soffset = w*64*2""")
    for i in range(16):
        a(f"""  s_add_u32 s34, s31, {((i>>3)*32+(i&7))*8192:#x}
  buffer_load_dwordx2 v[{16+2*i}:{17+2*i}], v6, s[20:23], s34 offen""")
    a(f"""  buffer_load_dwordx4 v[48:51], v7, s[16:19], s33 offen
  buffer_load_dwordx4 v[52:55], v7, s[16:19], s33 offen offset:64
  s_waitcnt vmcnt(0)""")
    for grp in range(2):
        wb = 16 + 16 * grp
        for e in range(4):
            sel = "s40" if (e & 1) == 0 else "s41"
            for q in range(4):
                lo = wb + 2 * (2 * q) + (e >> 1)
                hi = wb + 2 * (2 * q + 1) + (e >> 1)
                a(f"  v_perm_b32 v{56+4*e+q}, v{hi}, v{lo}, {sel}")
        a("  s_nop 1")
        for e in range(4):
            c = "0" if grp == 0 else f"v[{72+4*e}:{75+4*e}]"
            a(f"  v_mfma_f32_16x16x32_bf16 v[{72+4*e}:{75+4*e}], v[{48+4*grp}:{51+4*grp}], v[{56+4*e}:{59+4*e}], {c}")
    a(f"""  s_nop 7
  s_nop 7
  v_lshlrev_b32 v8, 10, v3        ; g*1024
  v_lshl_add_u32 v8, v2, 4, v8    ; + n*16
  v_lshl_add_u32 v8, v5, 11, v8   ; + w*2048
  v_cmp_gt_u32 vcc, 32, v1
  s_and_saveexec_b64 s[36:37], vcc""")
    for e in range(4):
        for r in range(4):
            a(f"  ds_write_b32 v8, v{72+4*e+r} offset:{r*256+e*4}")
    a(f"""  s_mov_b64 exec, s[36:37]
  s_waitcnt lgkmcnt(0)
  s_barrier
  v_lshlrev_b32 v9, 2, v0         ; t*4 = b*256 + col*4""")
    for w in range(8):
        a(f"  ds_read_b32 v{16+w}, v9 offset:{w*2048}")
    a(f"""  s_waitcnt lgkmcnt(0)
  v_add_f32 v16, v16, v17
  v_add_f32 v18, v18, v19
  v_add_f32 v20, v20, v21
  v_add_f32 v22, v22, v23
  v_add_f32 v16, v16, v18
  v_add_f32 v20, v20, v22
  v_add_f32 v16, v16, v20
  v_cvt_pk_bf16_f32 v16, v16, v16
  v_lshlrev_b32 v10, 13, v5
  v_lshl_add_u32 v10, v1, 1, v10
  s_lshl_b32 s34, s28, 16
  s_lshl_b32 s35, s29, 7
  s_add_u32 s34, s34, s35
  buffer_store_short v16, v10, s[24:27], s34 offen
L_q_end:
  s_endpgm""")
    if PF:
        a(f"""L_pf:
  s_cmp_ge_u32 s2, 384
  s_cbranch_scc1 L_q_end
  s_load_dwordx4 s[4:7], s[0:1], 8      ; A_k, A_v
  s_load_dwordx4 s[8:11], s[0:1], 48    ; B_k, B_v
  s_sub_u32 s3, s2, 128
  s_and_b32 s29, s3, 7            ; hkv
  s_lshr_b32 s28, s3, 7           ; p
  s_lshr_b32 s47, s3, 3
  s_and_b32 s47, s47, 15          ; mem
  s_lshr_b32 s46, s47, 1          ; b
  s_and_b32 s43, s47, 1           ; split
  s_lshl_b32 s31, s46, 3
  s_add_u32 s31, s31, s29
  s_lshl_b32 s31, s31, 21
  s_lshl_b32 s32, s43, 20
  s_add_u32 s31, s31, s32
  v_lshlrev_b32 v1, 4, v0
  s_waitcnt lgkmcnt(0)
  s_cmp_eq_u32 s28, 0
  s_cselect_b32 s4, s4, s8
  s_cselect_b32 s5, s5, s9
  s_cselect_b32 s6, s6, s10
  s_cselect_b32 s7, s7, s11""")
        srd(a, 16, 4, 5, 0x8000000)
        srd(a, 20, 6, 7, 0x8000000)
        for i in range(PF):
            a(f"""  s_add_u32 s32, s31, {i*8192}
  buffer_load_dwordx4 v[{8+8*(i%8)}:{11+8*(i%8)}], v1, s[16:19], s32 offen
  buffer_load_dwordx4 v[{12+8*(i%8)}:{15+8*(i%8)}], v1, s[20:23], s32 offen""")
            if i % 8 == 7:
                a("  s_waitcnt vmcnt(0)")
        a("""  s_waitcnt vmcnt(0)
  s_endpgm""")
    return name, 96

def gen_oproj(a, merge=False):
    name = "oproj_kernel"
    TAILA = f"""  ; POUT addr = WS_POUT + ((p*16+ks)*8 + b)*2048 + (slab*64+col)*4
  v_lshlrev_b32 v10, 11, v5
  v_lshl_add_u32 v10, v1, 2, v10
  s_lshl_b32 s33, s28, 4
  s_add_u32 s33, s33, s29
  s_lshl_b32 s33, s33, 14
  s_lshl_b32 s34, s43, 8
  s_add_u32 s33, s33, s34
  s_add_u32 s33, s33, {WS_POUT:#x}
  buffer_store_dword v16, v10, s[24:27], s33 offen"""
    sums = "\n".join(f"  v_add_f32 v{16+i}, v{16+i}, v{16+i+st}" for st in (1, 2, 4, 8) for i in range(0, 16, 2 * st))
    lds_ = "\n".join(f"  s_add_u32 s35, s34, {ks*2048}\n  buffer_load_dword v{16+ks}, v9, s[24:27], s35 offen sc1" for ks in range(16))
    TAILB = f"""  ; POUT byte = WS_POUT + ((p*8+slab)*16 + ks)*2048 + t*4
  s_lshl_b32 s33, s28, 3
  s_add_u32 s33, s33, s43          ; p*8+slab
  s_lshl_b32 s34, s33, 15
  s_add_u32 s34, s34, {WS_POUT:#x}
  s_lshl_b32 s35, s29, 11
  s_add_u32 s35, s35, s34
  buffer_store_dword v16, v9, s[24:27], s35 offen sc1
  s_waitcnt vmcnt(0)
  s_barrier
  s_cmp_lg_u32 s30, 0
  s_cbranch_scc1 L_oo_wait
  s_lshl_b32 s31, s33, 8
  s_add_u32 s31, s31, {WS_CNT:#x}
  v_mov_b32 v12, 1
  v_mov_b32 v13, 0
  s_mov_b64 exec, 1
  buffer_atomic_add v12, v13, s[24:27], s31 offen sc0 sc1
  s_waitcnt vmcnt(0)
  ds_write_b32 v13, v12
  s_waitcnt lgkmcnt(0)
  s_mov_b64 exec, -1
L_oo_wait:
  s_barrier
  v_mov_b32 v13, 0
  ds_read_b32 v12, v13
  s_waitcnt lgkmcnt(0)
  v_readfirstlane_b32 s39, v12
  s_cmp_lg_u32 s39, 15
  s_cbranch_scc1 L_o_end
{lds_}
  v_lshlrev_b32 v10, 11, v5
  v_lshl_add_u32 v10, v1, 1, v10
  s_lshl_b32 s35, s33, 7
  s_waitcnt vmcnt(0)
{sums}
  v_cvt_pk_bf16_f32 v16, v16, v16
  buffer_store_short v16, v10, s[60:63], s35 offen"""
    kernel_header(a, name)
    a(f"""  s_cmp_ge_u32 s2, 256
  s_cbranch_scc1 L_o_end
  s_load_dwordx2 s[4:5], s[0:1], 32     ; A_wo
  s_load_dwordx2 s[8:9], s[0:1], 72     ; B_wo
  s_load_dwordx2 s[12:13], s[0:1], 96   ; ws
  s_load_dwordx4 s[84:87], s[0:1], 80
  v_and_b32 v1, 63, v0
  v_lshrrev_b32 v5, 6, v0
  v_and_b32 v2, 15, v1            ; n
  v_lshrrev_b32 v3, 4, v1         ; g
  v_readfirstlane_b32 s30, v5
  s_lshr_b32 s28, s2, 7           ; p
  s_lshr_b32 s29, s2, 3
  s_and_b32 s29, s29, 15          ; ks
  s_and_b32 s43, s2, 7            ; slab
  s_mov_b32 s40, {SEL_LO:#x}
  s_mov_b32 s41, {SEL_HI:#x}
  s_mov_b32 s42, {C_BITS:#x}
  v_lshlrev_b32 v6, 13, v3        ; g*8192
  v_lshl_add_u32 v6, v2, 3, v6    ; + n*8
  s_waitcnt lgkmcnt(0)
  s_cmp_eq_u32 s28, 0
  s_cselect_b32 s4, s4, s8
  s_cselect_b32 s5, s5, s9""")
    srd(a, 20, 4, 5, 4096 * 512 * 2)
    srd(a, 24, 12, 13, WS_SIZE)
    srd(a, 60, 84, 85, 8192 * 2)
    srd(a, 64, 86, 87, 256)
    a(f"""  ; wo soffset = (ks*256 + w*32)*1024 + slab*128
  s_lshl_b32 s31, s29, 18
  s_lshl_b32 s32, s30, 15
  s_add_u32 s31, s31, s32
  s_lshl_b32 s32, s43, 7
  s_add_u32 s31, s31, s32
  s_add_u32 s32, s31, 4096""")
    for i in range(8):
        a(f"  buffer_load_dwordx2 v[{16+2*i}:{17+2*i}], v6, s[20:23], s{31+(i>>2)} offen offset:{(i&3)*1024}")
    a(f"""  v_lshrrev_b32 v7, 5, v1         ; hi
  v_and_b32 v8, 31, v1
  v_lshlrev_b32 v9, 9, v7         ; hi*512
  v_lshl_add_u32 v9, v8, 4, v9
  v_lshlrev_b32 v10, 3, v7        ; hi*8
  s_lshl_b32 s33, s28, 6
  s_lshl_b32 s34, s30, 3
  s_add_u32 s33, s33, s34
  s_lshr_b32 s34, s29, 1
  s_add_u32 s33, s33, s34         ; unit
  s_and_b32 s35, s29, 1           ; ks&1
  s_lshl_b32 s36, s33, 12         ; unit*2*2048
  s_lshl_b32 s37, s35, 10         ; (ks&1)*2*512
  s_add_u32 s36, s36, s37
  s_add_u32 s36, s36, {WS_PO:#x}
  s_lshl_b32 s38, s33, 6          ; unit*2*32
  s_lshl_b32 s37, s35, 4
  s_add_u32 s38, s38, s37
  s_add_u32 s38, s38, {WS_PML:#x}
  buffer_load_dwordx4 v[32:35], v9, s[24:27], s36 offen
  buffer_load_dwordx4 v[36:39], v9, s[24:27], s36 offen offset:2048
  buffer_load_dwordx2 v[40:41], v10, s[24:27], s38 offen
  buffer_load_dwordx2 v[42:43], v10, s[24:27], s38 offen offset:32
  s_waitcnt vmcnt(0)
  v_max_f32 v44, v40, v42
  v_sub_f32 v40, v40, v44
  v_sub_f32 v42, v42, v44
  v_mul_f32 v40, s42, v40
  v_mul_f32 v42, s42, v42
  v_exp_f32 v40, v40
  v_exp_f32 v42, v42
  s_nop 0
  v_mul_f32 v45, v40, v41
  v_fmac_f32 v45, v42, v43
  v_rcp_f32 v45, v45
  s_nop 0
  v_mul_f32 v40, v40, v45
  v_mul_f32 v42, v42, v45""")
    for i in range(4):
        a(f"""  v_mul_f32 v{32+i}, v{32+i}, v40
  v_fmac_f32 v{32+i}, v{36+i}, v42""")
    a(f"""  v_cvt_pk_bf16_f32 v32, v32, v33
  v_cvt_pk_bf16_f32 v33, v34, v35
  v_lshlrev_b32 v11, 9, v5
  v_lshl_add_u32 v11, v1, 3, v11
  ds_write_b64 v11, v[32:33]
  s_waitcnt lgkmcnt(0)
  s_barrier
  v_lshlrev_b32 v11, 9, v2
  v_lshl_add_u32 v11, v5, 6, v11
  v_lshl_add_u32 v11, v3, 4, v11
  ds_read_b128 v[48:51], v11""")
    for e in range(4):
        sel = "s40" if (e & 1) == 0 else "s41"
        for q in range(4):
            lo = 16 + 2 * (2 * q) + (e >> 1)
            hi = 16 + 2 * (2 * q + 1) + (e >> 1)
            a(f"  v_perm_b32 v{56+4*e+q}, v{hi}, v{lo}, {sel}")
    a("  s_waitcnt lgkmcnt(0)")
    a("  s_nop 1")
    for e in range(4):
        a(f"  v_mfma_f32_16x16x32_bf16 v[{72+4*e}:{75+4*e}], v[48:51], v[{56+4*e}:{59+4*e}], 0")
    a(f"""  s_nop 7
  s_nop 7
  v_lshlrev_b32 v8, 10, v3        ; g*1024
  v_lshl_add_u32 v8, v2, 4, v8    ; + n*16
  v_lshl_add_u32 v8, v5, 11, v8   ; + w*2048
  v_cmp_gt_u32 vcc, 32, v1
  s_and_saveexec_b64 s[44:45], vcc""")
    for e in range(4):
        for r in range(4):
            a(f"  ds_write_b32 v8, v{72+4*e+r} offset:{8192+r*256+e*4}")
    a(f"""  s_mov_b64 exec, s[44:45]
  s_waitcnt lgkmcnt(0)
  s_barrier
  v_lshlrev_b32 v9, 2, v0""")
    for w in range(8):
        a(f"  ds_read_b32 v{16+w}, v9 offset:{8192+w*2048}")
    a(f"""  s_waitcnt lgkmcnt(0)
  v_add_f32 v16, v16, v17
  v_add_f32 v18, v18, v19
  v_add_f32 v20, v20, v21
  v_add_f32 v22, v22, v23
  v_add_f32 v16, v16, v18
  v_add_f32 v20, v20, v22
  v_add_f32 v16, v16, v20
{TAILA if not merge else TAILB}
L_o_end:
  s_endpgm""")
    return name, 96

def gen_final(a):
    name = "final_kernel"
    kernel_header(a, name)
    a(f"""  s_cmp_ge_u32 s2, 32
  s_cbranch_scc1 L_f_end
  s_load_dwordx2 s[4:5], s[0:1], 80     ; out
  s_load_dwordx2 s[12:13], s[0:1], 96   ; ws
  s_lshl_b32 s3, s2, 8
  v_add_u32 v1, s3, v0            ; o = b*1024 + p*512 + n
  v_lshrrev_b32 v2, 10, v1        ; b
  v_bfe_u32 v3, v1, 9, 1          ; p
  v_and_b32 v4, 511, v1           ; n
  v_lshlrev_b32 v5, 18, v3
  v_lshl_add_u32 v5, v2, 11, v5
  v_lshl_add_u32 v5, v4, 2, v5
  v_lshlrev_b32 v6, 1, v1
  s_waitcnt lgkmcnt(0)""")
    srd(a, 16, 4, 5, 8192 * 2)
    srd(a, 24, 12, 13, WS_SIZE)
    for ks in range(16):
        a(f"""  s_mov_b32 s30, {WS_POUT + ks*16384:#x}
  buffer_load_dword v{16+ks}, v5, s[24:27], s30 offen""")
    a("  s_waitcnt vmcnt(0)")
    for st in (1, 2, 4, 8):
        for i in range(0, 16, 2 * st):
            a(f"  v_add_f32 v{16+i}, v{16+i}, v{16+i+st}")
    a(f"""  v_cvt_pk_bf16_f32 v16, v16, v16
  buffer_store_short v16, v6, s[16:19], 0 offen
L_f_end:
  s_endpgm""")
    return name, 40

def gen(a, opts):
    TAIL = int(opts.get('tail','1'))
    STAMP = int(opts.get("stamp", "0"))
    def stamp(idx):
        if not STAMP:
            return
        a(f"""  s_memrealtime s[90:91]
  s_waitcnt lgkmcnt(0)
  s_mov_b32 s{92 if False else 88}, s90
  v_writelane_b32 v{91}, s90, {idx}""")
        if idx == 0:
            a(f"""  s_not_b32 s90, s90
  v_writelane_b32 v91, s90, 10""")
    name = "attn_kernel"
    NIT = 16
    ldflags = opts.get("ldflags", "nt")
    depth = 2
    PSLEEP = int(opts.get("psleep", "1"))
    SPIN = int(opts.get("spin", "400000"))
    Q0 = 4; O0 = 20; S0 = 52; S1 = 56; P0 = 60; A0 = 64
    MRUN = 76; MC = 77; L = 78; T0 = 79; T1 = 80; MX = 81; AL = 82
    NR = 83; GR = 84; VQ = 85; E0 = 86; E1 = 87; E2 = 88; LANE = 89; VZ = 90; GRB = 85; CADDR = 92; ONE = 93
    KV0 = 96
    nvgpr = KV0 + 64 * depth
    STEP = 8192 * 8
    W0 = 20; X0 = 36; B0 = 44; D0 = 52
    a(f""".globl {name}
.p2align 8
.type {name},@function
{name}:
  s_cmp_ge_u32 s2, 256
  s_cbranch_scc1 L_end
  s_load_dwordx8 s[4:11], s[0:1], 0     ; A_x, A_k, A_v, A_wq
  s_load_dwordx8 s[72:79], s[0:1], 32   ; A_wo, B_x, B_k, B_v
  s_load_dwordx8 s[80:87], s[0:1], 64
  s_load_dwordx2 s[12:13], s[0:1], 96   ; ws
  v_and_b32 v{LANE}, 63, v0
  v_lshrrev_b32 v3, 6, v0
  v_and_b32 v{NR}, 15, v{LANE}          ; n / h
  v_lshrrev_b32 v{GR}, 4, v{LANE}       ; g
  v_readfirstlane_b32 s30, v3
  s_and_b32 s29, s2, 7            ; hkv
  s_lshr_b32 s28, s2, 7           ; p
  s_lshr_b32 s47, s2, 3
  s_and_b32 s47, s47, 15          ; mem
  s_lshl_b32 s68, s28, 3
  s_add_u32 s68, s68, s29
  s_lshl_b32 s89, s68, 4
  s_add_u32 s89, s89, s47         ; grp*16+mem
  s_lshr_b32 s46, s47, 1          ; b
  s_and_b32 s43, s47, 1           ; split
{'' if TAIL else '''  s_lshl_b32 s89, s28, 6
  s_lshl_b32 s31, s46, 3
  s_add_u32 s89, s89, s31
  s_add_u32 s89, s89, s29
  s_lshl_b32 s89, s89, 1
  s_add_u32 s89, s89, s43'''}
  s_mov_b32 s40, {SEL_LO:#x}
  s_mov_b32 s41, {SEL_HI:#x}
  s_mov_b32 s42, {C_BITS:#x}
  v_lshlrev_b32 v1, 8, v{NR}
  v_lshl_add_u32 v1, v{GR}, 4, v1
  v_lshlrev_b32 v2, 10, v{GR}
  v_lshl_add_u32 v2, v{NR}, 4, v2  ; voffV = g*1024 + n*16
  v_lshlrev_b32 v{E0}, 16, v{GR}
  v_lshl_add_u32 v{E0}, v{NR}, 4, v{E0}   ; voffW = g*65536 + n*16
  v_lshlrev_b32 v{E1}, 4, v{GR}           ; voffX = g*16
  v_mov_b32 v{VZ}, 0
  s_waitcnt lgkmcnt(0)
  s_cmp_eq_u32 s28, 0
  s_cselect_b32 s4, s4, s74       ; x
  s_cselect_b32 s5, s5, s75
  s_cselect_b32 s6, s6, s76       ; k
  s_cselect_b32 s7, s7, s77
  s_cselect_b32 s8, s8, s78       ; v
  s_cselect_b32 s9, s9, s79
  s_cselect_b32 s10, s10, s80     ; wq
  s_cselect_b32 s11, s11, s81
  s_cselect_b32 s72, s72, s82     ; wo
  s_cselect_b32 s73, s73, s83""")
    srd(a, 48, 10, 11, 512 * 4096 * 2)
    srd(a, 52, 4, 5, 8192)
    srd(a, 16, 6, 7, 0x8000000)
    srd(a, 20, 8, 9, 0x8000000)
    srd(a, 24, 12, 13, WS_SIZE)
    srd(a, 56, 72, 73, 4096 * 512 * 2)
    srd(a, 60, 84, 85, 8192 * 2)
    srd(a, 64, 86, 87, 256)
    stamp(0)
    a(f"""  ; K/V byte base = (b*8+hkv)*2MiB + split*1MiB
  s_lshl_b32 s71, s46, 3
  s_add_u32 s71, s71, s29
  s_lshl_b32 s71, s71, 21
  s_lshl_b32 s34, s43, 20
  s_add_u32 s71, s71, s34""")

    def setaddr(tile_sreg):
        a(f"""  s_lshl_b32 s33, {tile_sreg}, 13
  s_add_u32 s33, s33, s71
  s_add_u32 s34, s33, 4096""")
    def kloads(st):
        K0 = KV0 + 64 * st
        for t in range(2):
            for j in range(4):
                r = K0 + (t * 4 + j) * 4
                a(f"  buffer_load_dwordx4 v[{r}:{r+3}], v1, s[16:19], s{33+t} offen offset:{j*64} {ldflags}")
    def vloads(st):
        V0 = KV0 + 64 * st + 32
        for i in range(8):
            r = V0 + i * 4
            a(f"  buffer_load_dwordx4 v[{r}:{r+3}], v2, s[20:23], s{33+(i>>2)} offen offset:{(i&3)*256} {ldflags}")
    def grab():
        a(f"""  s_mov_b64 exec, 1
  ds_add_rtn_u32 v{GRB}, v{CADDR}, v{ONE}
  s_mov_b64 exec, -1""")
    def grab_read(sreg):
        a(f"""  s_waitcnt lgkmcnt(0)
  v_readfirstlane_b32 {sreg}, v{GRB}""")

    for i in range(16):
        a(f"  v_mov_b32 v{Q0+i}, 0")
    a(f"""  v_mov_b32 v{CADDR}, {L_R3+16}
  v_mov_b32 v{ONE}, 1
  s_lshl_b32 s31, s28, 16
  s_lshl_b32 s32, s46, 13
  s_add_u32 s31, s31, s32
  s_lshl_b32 s32, s29, 10
  s_add_u32 s31, s31, s32
  v_cmp_gt_u32 vcc, 4, v{NR}
  s_and_saveexec_b64 s[36:37], vcc""")
    for j in range(4):
        a(f"  buffer_load_dwordx4 v[{Q0+4*j}:{Q0+4*j+3}], v1, s[24:27], s31 offen offset:{j*64}")
    a(f"""  s_mov_b64 exec, s[36:37]
  s_mov_b32 s35, s30""")
    setaddr("s35")
    kloads(0); vloads(0)
    a("  s_add_u32 s35, s30, 8")
    setaddr("s35")
    kloads(1); vloads(1)
    a(f"""  v_mov_b32 v{GRB}, 16
  s_cmp_lg_u32 s30, 0
  s_cbranch_scc1 L_noinit
  s_mov_b64 exec, 1
  ds_write_b32 v{CADDR}, v{GRB}
  s_mov_b64 exec, -1
L_noinit:""")
    for i in range(32):
        a(f"  v_mov_b32 v{O0+i}, 0")
    a(f"""  v_mov_b32 v{MRUN}, 0xff800000
  v_mov_b32 v{MC}, 0xff800000
  v_mov_b32 v{L}, 0
  s_waitcnt lgkmcnt(0)
  s_barrier""")
    stamp(4)

    def body(st, issue, wk, wv, tag):
        K0 = KV0 + 64 * st
        V0 = K0 + 32
        a(f"  s_waitcnt vmcnt({wk})")
        for t in range(2):
            sreg = S0 if t == 0 else S1
            for j in range(4):
                r = K0 + (t * 4 + j) * 4
                c = "0" if j == 0 else f"v[{sreg}:{sreg+3}]"
                a(f"  v_mfma_f32_16x16x32_bf16 v[{sreg}:{sreg+3}], v[{r}:{r+3}], v[{Q0+4*j}:{Q0+4*j+3}], {c}")
        if issue:
            setaddr("s35")
            kloads(st)
            grab_read("s44")
        else:
            a("  s_nop 7")
        a(f"""  s_nop 1
  v_max3_f32 v{MX}, v{S0}, v{S0+1}, v{S0+2}
  v_max3_f32 v{MX}, v{MX}, v{S0+3}, v{S1}
  v_max3_f32 v{MX}, v{MX}, v{S1+1}, v{S1+2}
  v_max_f32 v{MX}, v{MX}, v{S1+3}
  v_cmp_gt_f32 vcc, v{MX}, v{MRUN}
  s_cbranch_vccz L_fast_{tag}
  v_mov_b32 v{T0}, v{MX}
  s_nop 1
  v_permlane16_swap_b32 v{MX}, v{T0}
  v_max_f32 v{MX}, v{MX}, v{T0}
  v_mov_b32 v{T0}, v{MX}
  s_nop 1
  v_permlane32_swap_b32 v{MX}, v{T0}
  v_max_f32 v{MX}, v{MX}, v{T0}
  v_max_f32 v{MX}, v{MX}, v{MRUN}      ; m_new
  v_sub_f32 v{T0}, v{MRUN}, v{MX}
  v_mul_f32 v{T0}, s42, v{T0}
  v_exp_f32 v{AL}, v{T0}
  v_mov_b32 v{MRUN}, v{MX}
  v_mul_f32 v{MC}, s42, v{MX}
  v_mul_f32 v{L}, v{L}, v{AL}""")
        for i in range(32):
            a(f"  v_mul_f32 v{O0+i}, v{O0+i}, v{AL}")
        a(f"L_fast_{tag}:")
        for i in range(8):
            a(f"  v_fma_f32 v{S0+i}, v{S0+i}, s42, -v{MC}")
        for i in range(8):
            a(f"  v_exp_f32 v{S0+i}, v{S0+i}")
        a(f"""  s_nop 0
  v_add_f32 v{T0}, v{S0}, v{S0+1}
  v_add_f32 v{T1}, v{S0+2}, v{S0+3}
  v_add_f32 v{L}, v{L}, v{T0}
  v_add_f32 v{L}, v{L}, v{T1}
  v_add_f32 v{T0}, v{S0+4}, v{S0+5}
  v_add_f32 v{T1}, v{S0+6}, v{S0+7}
  v_add_f32 v{L}, v{L}, v{T0}
  v_add_f32 v{L}, v{L}, v{T1}""")
        for q in range(4):
            a(f"  v_cvt_pk_bf16_f32 v{P0+q}, v{S0+2*q}, v{S0+2*q+1}")
        a(f"  s_waitcnt vmcnt({wv})")
        def perms(e):
            sel = "s40" if (e & 1) == 0 else "s41"
            base = A0 + 4 * (e % 3)
            for q in range(4):
                lo = V0 + 4 * (2 * q) + (e >> 1)
                hi = V0 + 4 * (2 * q + 1) + (e >> 1)
                a(f"  v_perm_b32 v{base+q}, v{hi}, v{lo}, {sel}")
        def pv(e):
            base = A0 + 4 * (e % 3)
            o = O0 + 4 * e
            a(f"  v_mfma_f32_16x16x32_bf16 v[{o}:{o+3}], v[{base}:{base+3}], v[{P0}:{P0+3}], v[{o}:{o+3}]")
        perms(0)
        for e in range(8):
            if e + 1 < 8:
                perms(e + 1)
            else:
                a("  s_nop 1")
            pv(e)
        if issue:
            vloads(st)

    a("L_first_grab:")
    grab(); grab_read("s35")
    a("L_a_loop:")
    for st in range(2):
        a(f"""  s_cmp_ge_u32 s35, 128
  s_cbranch_scc1 L_drain_{st}""")
        grab()
        body(st, True, 24, 24, f"m{st}")
        a("  s_mov_b32 s35, s44")
    a("  s_branch L_a_loop")
    for st in range(2):
        a(f"L_drain_{st}:")
        body(st, False, 24, 16, f"d{st}a")
        body(1 - st, False, 8, 0, f"d{st}b")
        a("  s_branch L_loop_done")
    a("L_loop_done:")
    stamp(5)
    WOR = KV0
    DO = KV0 + 16
    a(f"""  ; wo loads: rows hkv*512 + ksl*256 + w*32 + g*8 + i ; cols slab*64 + n*4 ; ksl = mem>>3, slab = mem&7
  v_lshlrev_b32 v{E0}, 13, v{GR}
  v_lshl_add_u32 v{E0}, v{NR}, 3, v{E0}    ; g*8192 + n*8
  s_lshr_b32 s69, s47, 3          ; ksl
  s_and_b32 s70, s47, 7           ; slab
  s_lshl_b32 s31, s29, 19         ; hkv*512*1024
  s_lshl_b32 s32, s69, 18
  s_add_u32 s31, s31, s32
  s_lshl_b32 s32, s30, 15
  s_add_u32 s31, s31, s32
  s_lshl_b32 s32, s70, 7
  s_add_u32 s31, s31, s32
  s_add_u32 s32, s31, 4096""")
    for i in range(8):
        a(f"  buffer_load_dwordx2 v[{WOR+2*i}:{WOR+2*i+1}], v{E0}, s[56:59], s{31+(i>>2)} offen offset:{(i&3)*1024}")
    a(f"""  s_nop 3
  ; vaddr = w*2048 + h*512 + g*128
  v_lshlrev_b32 v{E0}, 11, v3
  v_lshl_add_u32 v{E0}, v{NR}, 9, v{E0}
  v_lshl_add_u32 v{E0}, v{GR}, 7, v{E0}
  v_lshlrev_b32 v{E1}, 6, v3
  v_lshl_add_u32 v{E1}, v{NR}, 4, v{E1}
  v_lshl_add_u32 v{E1}, v{GR}, 2, v{E1}
  v_lshlrev_b32 v{E2}, 4, v3
  v_lshl_add_u32 v{E2}, v{NR}, 2, v{E2}
  v_cmp_gt_u32 vcc, 4, v{NR}
  s_and_saveexec_b64 s[36:37], vcc""")
    for e in range(8):
        for r in range(4):
            a(f"  ds_write_b32 v{E0}, v{O0+4*e+r} offset:{r*32+e*4}")
    a(f"""  ds_write_b32 v{E1}, v{L} offset:16384
  ds_write_b32 v{E2}, v{MRUN} offset:16896
  s_mov_b64 exec, s[36:37]
  s_waitcnt lgkmcnt(0)
  s_barrier
  v_lshrrev_b32 v4, 7, v0         ; h
  v_lshlrev_b32 v5, 2, v4         ; h*4
  v_lshlrev_b32 v6, 4, v4         ; h*16
  v_lshlrev_b32 v7, 2, v0         ; t*4 = h*512+dim*4""")
    for w in range(8):
        a(f"  ds_read_b32 v{20+w}, v5 offset:{16896+w*16}")
    for w in range(8):
        a(f"  ds_read_b128 v[{32+4*w}:{35+4*w}], v6 offset:{16384+w*64}")
    for w in range(8):
        a(f"  ds_read_b32 v{64+w}, v7 offset:{w*2048}")
    a(f"""  s_waitcnt lgkmcnt(0)
  v_max3_f32 v8, v20, v21, v22
  v_max3_f32 v8, v8, v23, v24
  v_max3_f32 v8, v8, v25, v26
  v_max_f32 v8, v8, v27""")
    for w in range(8):
        a(f"  v_sub_f32 v{20+w}, v{20+w}, v8")
    for w in range(8):
        a(f"  v_mul_f32 v{20+w}, s42, v{20+w}")
    for w in range(8):
        a(f"  v_exp_f32 v{20+w}, v{20+w}")
    a("""  s_nop 0
  v_mov_b32 v9, 0
  v_mov_b32 v10, 0""")
    for w in range(8):
        b = 32 + 4 * w
        a(f"""  v_add_f32 v{b}, v{b}, v{b+1}
  v_add_f32 v{b+2}, v{b+2}, v{b+3}
  v_add_f32 v{b}, v{b}, v{b+2}
  v_fmac_f32 v9, v{20+w}, v{b}
  v_fmac_f32 v10, v{20+w}, v{64+w}""")
    a(f"""  ; store O: WS_PO + wg*2048 + t*4
  s_lshl_b32 s31, s89, 11
  s_add_u32 s31, s31, {WS_PO:#x}
  buffer_store_dword v10, v7, s[24:27], s31 offen sc1
  v_and_b32 v11, 127, v0
  v_cmp_eq_u32 vcc, 0, v11
  v_lshlrev_b32 v12, 3, v4
  s_lshl_b32 s31, s89, 5
  s_add_u32 s31, s31, {WS_PML:#x}
  s_and_saveexec_b64 s[36:37], vcc
  buffer_store_dwordx2 v[8:9], v12, s[24:27], s31 offen sc1
  s_mov_b64 exec, s[36:37]
{'' if TAIL else '  s_branch L_fin'}
  s_waitcnt vmcnt(0)
  s_barrier""")
    stamp(6)
    a(f"""  s_cmp_lg_u32 s30, 0
  s_cbranch_scc1 L_p_wait
  s_lshl_b32 s31, s68, 2
  s_add_u32 s31, s31, 64          ; S2 counter
  v_mov_b32 v{E1}, 1
  s_mov_b64 s[36:37], exec
  s_mov_b64 exec, 1
  buffer_atomic_add v{E1}, v{VZ}, s[64:67], s31 offen sc1
  s_mov_b32 s38, {SPIN}
L_p_poll:
  buffer_load_dword v{E1}, v{VZ}, s[64:67], s31 offen sc1
  s_waitcnt vmcnt(0)
  v_readfirstlane_b32 s39, v{E1}
  s_cmp_ge_u32 s39, 16
  s_cbranch_scc1 L_p_done
  s_sleep {PSLEEP}
  s_sub_u32 s38, s38, 1
  s_cmp_lg_u32 s38, 0
  s_cbranch_scc1 L_p_poll
L_p_done:
  s_mov_b64 exec, s[36:37]""")
    stamp(7)
    a(f"""L_p_wait:
  s_barrier
  v_lshrrev_b32 v7, 5, v{LANE}
  v_and_b32 v8, 31, v{LANE}
  v_lshlrev_b32 v9, 9, v7
  v_lshl_add_u32 v9, v8, 4, v9
  v_lshlrev_b32 v10, 3, v7         ; hi*8
  s_lshl_b32 s33, s68, 4
  s_lshl_b32 s34, s30, 1
  s_add_u32 s33, s33, s34          ; grp*16 + b'*2
  s_lshl_b32 s36, s33, 11
  s_lshl_b32 s37, s69, 10
  s_add_u32 s36, s36, s37
  s_add_u32 s36, s36, {WS_PO:#x}
  s_lshl_b32 s38, s33, 5
  s_lshl_b32 s37, s69, 4
  s_add_u32 s38, s38, s37
  s_add_u32 s38, s38, {WS_PML:#x}
  buffer_load_dwordx4 v[32:35], v9, s[24:27], s36 offen sc1
  buffer_load_dwordx4 v[36:39], v9, s[24:27], s36 offen offset:2048 sc1
  buffer_load_dwordx2 v[40:41], v10, s[24:27], s38 offen sc1
  buffer_load_dwordx2 v[42:43], v10, s[24:27], s38 offen offset:32 sc1""")
    for e in range(4):
        sel = "s40" if (e & 1) == 0 else "s41"
        for q in range(4):
            lo = WOR + 2 * (2 * q) + (e >> 1)
            hi = WOR + 2 * (2 * q + 1) + (e >> 1)
            a(f"  v_perm_b32 v{56+4*e+q}, v{hi}, v{lo}, {sel}")
    a(f"""  s_waitcnt vmcnt(0)
  v_max_f32 v44, v40, v42
  v_sub_f32 v40, v40, v44
  v_sub_f32 v42, v42, v44
  v_mul_f32 v40, s42, v40
  v_mul_f32 v42, s42, v42
  v_exp_f32 v40, v40
  v_exp_f32 v42, v42
  s_nop 0
  v_mul_f32 v45, v40, v41
  v_fmac_f32 v45, v42, v43
  v_rcp_f32 v45, v45
  s_nop 0
  v_mul_f32 v40, v40, v45
  v_mul_f32 v42, v42, v45""")
    for i in range(4):
        a(f"""  v_mul_f32 v{32+i}, v{32+i}, v40
  v_fmac_f32 v{32+i}, v{36+i}, v42""")
    a(f"""  v_cvt_pk_bf16_f32 v32, v32, v33
  v_cvt_pk_bf16_f32 v33, v34, v35
  v_lshlrev_b32 v11, 9, v3
  v_lshl_add_u32 v11, v{LANE}, 3, v11     ; b'*512 + lane*8
  ds_write_b64 v11, v[32:33] offset:{L_R1}
  s_waitcnt lgkmcnt(0)
  s_barrier
  v_lshlrev_b32 v11, 9, v{NR}
  v_lshl_add_u32 v11, v3, 6, v11
  v_lshl_add_u32 v11, v{GR}, 4, v11       ; n*512 + w*64 + g*16
  ds_read_b128 v[48:51], v11 offset:{L_R1}
  s_waitcnt lgkmcnt(0)
  s_nop 1""")
    for e in range(4):
        a(f"  v_mfma_f32_16x16x32_bf16 v[{DO+4*e}:{DO+4*e+3}], v[48:51], v[{56+4*e}:{59+4*e}], 0")
    a(f"""  v_lshlrev_b32 v8, 10, v{GR}
  v_lshl_add_u32 v8, v{NR}, 4, v8
  v_lshl_add_u32 v8, v3, 11, v8    ; w*2048 + g*1024 + n*16
  v_cmp_gt_u32 vcc, 32, v{LANE}
  s_nop 7
  s_nop 3
  s_and_saveexec_b64 s[36:37], vcc""")
    for e in range(4):
        for r in range(4):
            a(f"  ds_write_b32 v8, v{DO+4*e+r} offset:{L_R2+r*256+e*4}")
    a(f"""  s_mov_b64 exec, s[36:37]
  s_waitcnt lgkmcnt(0)
  s_barrier
  v_lshlrev_b32 v9, 2, v0""")
    for w in range(8):
        a(f"  ds_read_b32 v{16+w}, v9 offset:{L_R2+w*2048}")
    a(f"""  s_waitcnt lgkmcnt(0)
  v_add_f32 v16, v16, v17
  v_add_f32 v18, v18, v19
  v_add_f32 v20, v20, v21
  v_add_f32 v22, v22, v23
  v_add_f32 v16, v16, v18
  v_add_f32 v20, v20, v22
  v_add_f32 v16, v16, v20
  s_lshl_b32 s33, s28, 3
  s_add_u32 s33, s33, s70          ; p*8+slab
  s_lshl_b32 s34, s33, 15
  s_add_u32 s34, s34, {WS_POUT:#x}
  s_lshl_b32 s35, s29, 1
  s_add_u32 s35, s35, s69
  s_lshl_b32 s35, s35, 11
  s_add_u32 s35, s35, s34
  buffer_store_dword v16, v9, s[24:27], s35 offen sc1
  s_waitcnt vmcnt(0)
  s_barrier""")
    stamp(8)
    a(f"""
  s_cmp_lg_u32 s30, 0
  s_cbranch_scc1 L_o_wait
  s_lshl_b32 s31, s33, 2
  s_add_u32 s31, s31, 128          ; S3 counter
  v_mov_b32 v{E1}, 1
  s_mov_b64 s[36:37], exec
  s_mov_b64 exec, 1
  buffer_atomic_add v{E1}, v{VZ}, s[64:67], s31 offen sc0 sc1
  s_waitcnt vmcnt(0)
  v_mov_b32 v{E2}, {L_R3}
  ds_write_b32 v{E2}, v{E1}
  s_waitcnt lgkmcnt(0)
  s_mov_b64 exec, s[36:37]
L_o_wait:
  s_barrier
  v_mov_b32 v{E2}, {L_R3}
  ds_read_b32 v{E1}, v{E2}
  s_waitcnt lgkmcnt(0)
  v_readfirstlane_b32 s39, v{E1}
  s_cmp_lg_u32 s39, 15
  s_cbranch_scc1 L_fin
  ; last arriver: reduce the 16 partials of (p,slab)""")
    for ks in range(16):
        a(f"""  s_add_u32 s35, s34, {ks*2048}
  buffer_load_dword v{16+ks}, v9, s[24:27], s35 offen sc1""")
    a(f"""  ; out byte = b'*2048 + p*1024 + slab*128 + col*2
  v_lshlrev_b32 v10, 11, v3
  v_lshl_add_u32 v10, v{LANE}, 1, v10
  s_lshl_b32 s35, s33, 7
  s_waitcnt vmcnt(0)""")
    for st in (1, 2, 4, 8):
        for i in range(0, 16, 2 * st):
            a(f"  v_add_f32 v{16+i}, v{16+i}, v{16+i+st}")
    a(f"""  v_cvt_pk_bf16_f32 v16, v16, v16
  buffer_store_short v16, v10, s[60:63], s35 offen
  s_waitcnt vmcnt(0)
L_fin:""")
    stamp(9)
    if STAMP:
        a(f"""  s_cmp_lg_u32 s30, 0
  s_cbranch_scc1 L_end
  v_lshlrev_b32 v10, 2, v{LANE}
  s_lshl_b32 s35, s2, 6
  s_add_u32 s35, s35, 0x180000
  v_cmp_gt_u32 vcc, 16, v{LANE}
  s_and_saveexec_b64 s[36:37], vcc
  buffer_store_dword v91, v10, s[24:27], s35 offen
  s_mov_b64 exec, s[36:37]""")
        if STAMP == 2:
            a(f"""  v_cmp_gt_u32 vcc, 11, v{LANE}
  s_and_saveexec_b64 s[36:37], vcc
  buffer_atomic_umax v91, v10, s[64:67], 0 offen sc1
  s_mov_b64 exec, s[36:37]""")
    a(f"""L_end:
  s_endpgm""")
    acc = (nvgpr + 3) // 4 * 4
    extra = [gen_qproj(a, int(opts.get('pf','0')))]
    if not TAIL:
        if int(opts.get('merge','0')):
            extra += [gen_oproj(a, True)]
        else:
            extra += [gen_oproj(a), gen_final(a)]
    a('.section .rodata,"a"')
    for qn, qv in extra:
        kernel_desc(a, qn, qv)
    a(f""".p2align 6
.amdhsa_kernel {name}
  .amdhsa_next_free_vgpr {max(nvgpr,160)}
  .amdhsa_next_free_sgpr 96
  .amdhsa_accum_offset {max(acc,160)}
  .amdhsa_group_segment_fixed_size 0
  .amdhsa_kernarg_size 104
  .amdhsa_user_sgpr_count 2
  .amdhsa_user_sgpr_kernarg_segment_ptr 1
  .amdhsa_system_sgpr_workgroup_id_x 1
.end_amdhsa_kernel""")

TAILL = '''
; @launch kernel=oproj_kernel grid=(256,1,1) block=(512,1,1) lds=24576
; @launch kernel=final_kernel grid=(32,1,1) block=(256,1,1) lds=0'''
TAILM = '''
; @launch kernel=oproj_kernel grid=(256,1,1) block=(512,1,1) lds=24576'''
def main():
    out = sys.argv[1] if len(sys.argv) > 1 else f"cdna_kernels/{NAME}.s"
    opts = {}
    for kv in sys.argv[2:]:
        k, v = kv.split("=", 1)
        opts[k] = v
    a = Asm()
    a(f"""; concat_heads gqa decode: fused q-proj -> flash-decode -> combine -> out-proj (16-workgroup group hand-offs)
; @launch kernel=qproj_kernel grid=({384 if int(opts.get('pf','0')) else 128},1,1) block=(512,1,1) lds=16384
; @launch kernel=attn_kernel grid=(256,1,1) block=(512,1,1) lds={LDS_BYTES}{'' if int(opts.get('tail','1')) else (TAILM if int(opts.get('merge','0')) else TAILL)}
.amdgcn_target "amdgcn-amd-amdhsa--gfx950"
.text""")
    gen(a, opts)
    open(out, "w").write(a.text())

main()
```

```python
import math, struct, sys

NAME = "concat_heads__gqa_block_cached__gqa_block_cached__decode"

def f32bits(x):
    return struct.unpack("<I", struct.pack("<f", x))[0]

C_SCALE = (128.0 ** -0.5) * math.log2(math.e)
C_BITS = f32bits(C_SCALE)

WS_Q = 0
WS_PO = 0x40000
WS_PML = 0xC0000
WS_POUT = 0x100000
WS_CNT = 0x1C0000
WS_SIZE = 0x200000

L_R1 = 17408
L_R2 = 25600
L_R3 = 41984
L_Q = 42240
LDS_BYTES = 43264

SEL_LO = 0x05040100
SEL_HI = 0x07060302

class Asm:
    def __init__(self):
        self.lines = []
    def __call__(self, s):
        for ln in s.strip("\n").split("\n"):
            self.lines.append(ln)
    def text(self):
        return "\n".join(self.lines) + "\n"

def srd(a, d, lo, hi, size):
    a(f"""  s_mov_b32 s{d}, s{lo}
  s_and_b32 s{d+1}, s{hi}, 0xffff
  s_mov_b32 s{d+2}, {size:#x}
  s_mov_b32 s{d+3}, 0x00020000""")

def kernel_header(a, name):
    a(f""".globl {name}
.p2align 8
.type {name},@function
{name}:""")

def kernel_desc(a, name, vgpr, sgpr=96):
    acc = (vgpr + 3) // 4 * 4
    a(f""".p2align 6
.amdhsa_kernel {name}
  .amdhsa_next_free_vgpr {vgpr}
  .amdhsa_next_free_sgpr {sgpr}
  .amdhsa_accum_offset {acc}
  .amdhsa_group_segment_fixed_size 0
  .amdhsa_kernarg_size 104
  .amdhsa_user_sgpr_count 2
  .amdhsa_user_sgpr_kernarg_segment_ptr 1
  .amdhsa_system_sgpr_workgroup_id_x 1
.end_amdhsa_kernel""")

def gen_qproj(a, PF=0):
    name = "qproj_kernel"
    kernel_header(a, name)
    a(f"""  s_cmp_ge_u32 s2, 128
  s_cbranch_scc1 {'L_pf' if PF else 'L_q_end'}
  s_load_dwordx2 s[4:5], s[0:1], 0
  s_load_dwordx2 s[6:7], s[0:1], 24
  s_load_dwordx2 s[8:9], s[0:1], 40
  s_load_dwordx2 s[10:11], s[0:1], 64
  s_load_dwordx2 s[12:13], s[0:1], 96
  v_and_b32 v1, 63, v0
  v_lshrrev_b32 v5, 6, v0
  v_and_b32 v2, 15, v1            ; n
  v_lshrrev_b32 v3, 4, v1         ; g
  v_readfirstlane_b32 s30, v5
  s_lshr_b32 s28, s2, 6           ; p
  s_and_b32 s29, s2, 63           ; slab
  s_mov_b32 s40, {SEL_LO:#x}
  s_mov_b32 s41, {SEL_HI:#x}
  v_lshlrev_b32 v6, 16, v3        ; g*65536
  v_lshl_add_u32 v6, v2, 3, v6    ; + n*8  -> voffset W
  v_lshlrev_b32 v7, 10, v2        ; n*1024
  v_lshl_add_u32 v7, v3, 4, v7    ; + g*16 -> voffset x
  s_waitcnt lgkmcnt(0)
  s_cmp_eq_u32 s28, 0
  s_cselect_b32 s4, s4, s8
  s_cselect_b32 s5, s5, s9
  s_cselect_b32 s6, s6, s10
  s_cselect_b32 s7, s7, s11""")
    srd(a, 16, 4, 5, 8192)
    srd(a, 20, 6, 7, 512 * 4096 * 2)
    srd(a, 24, 12, 13, WS_SIZE)
    a(f"""  s_cmp_ge_u32 s2, 16
  s_cbranch_scc1 L_q_nocnt
  s_cmp_lg_u32 s30, 0
  s_cbranch_scc1 L_q_nocnt
  s_lshl_b32 s31, s2, 8
  s_add_u32 s31, s31, {WS_CNT:#x}
  v_mov_b32 v8, 0
  s_mov_b64 exec, 1
  buffer_store_dword v8, v8, s[24:27], s31 offen
  s_mov_b64 exec, -1
L_q_nocnt:""")
    a(f"""  s_lshl_b32 s31, s30, 19
  s_lshl_b32 s32, s29, 7
  s_add_u32 s31, s31, s32
  s_lshl_b32 s33, s30, 7          ; x soffset = w*64*2""")
    for i in range(16):
        a(f"""  s_add_u32 s34, s31, {((i>>3)*32+(i&7))*8192:#x}
  buffer_load_dwordx2 v[{16+2*i}:{17+2*i}], v6, s[20:23], s34 offen""")
    a(f"""  buffer_load_dwordx4 v[48:51], v7, s[16:19], s33 offen
  buffer_load_dwordx4 v[52:55], v7, s[16:19], s33 offen offset:64
  s_waitcnt vmcnt(0)""")
    for grp in range(2):
        wb = 16 + 16 * grp
        for e in range(4):
            sel = "s40" if (e & 1) == 0 else "s41"
            for q in range(4):
                lo = wb + 2 * (2 * q) + (e >> 1)
                hi = wb + 2 * (2 * q + 1) + (e >> 1)
                a(f"  v_perm_b32 v{56+4*e+q}, v{hi}, v{lo}, {sel}")
        a("  s_nop 1")
        for e in range(4):
            c = "0" if grp == 0 else f"v[{72+4*e}:{75+4*e}]"
            a(f"  v_mfma_f32_16x16x32_bf16 v[{72+4*e}:{75+4*e}], v[{48+4*grp}:{51+4*grp}], v[{56+4*e}:{59+4*e}], {c}")
    a(f"""  s_nop 7
  s_nop 7
  v_lshlrev_b32 v8, 10, v3        ; g*1024
  v_lshl_add_u32 v8, v2, 4, v8    ; + n*16
  v_lshl_add_u32 v8, v5, 11, v8   ; + w*2048
  v_cmp_gt_u32 vcc, 32, v1
  s_and_saveexec_b64 s[36:37], vcc""")
    for e in range(4):
        for r in range(4):
            a(f"  ds_write_b32 v8, v{72+4*e+r} offset:{r*256+e*4}")
    a(f"""  s_mov_b64 exec, s[36:37]
  s_waitcnt lgkmcnt(0)
  s_barrier
  v_lshlrev_b32 v9, 2, v0         ; t*4 = b*256 + col*4""")
    for w in range(8):
        a(f"  ds_read_b32 v{16+w}, v9 offset:{w*2048}")
    a(f"""  s_waitcnt lgkmcnt(0)
  v_add_f32 v16, v16, v17
  v_add_f32 v18, v18, v19
  v_add_f32 v20, v20, v21
  v_add_f32 v22, v22, v23
  v_add_f32 v16, v16, v18
  v_add_f32 v20, v20, v22
  v_add_f32 v16, v16, v20
  v_cvt_pk_bf16_f32 v16, v16, v16
  v_lshlrev_b32 v10, 13, v5
  v_lshl_add_u32 v10, v1, 1, v10
  s_lshl_b32 s34, s28, 16
  s_lshl_b32 s35, s29, 7
  s_add_u32 s34, s34, s35
  buffer_store_short v16, v10, s[24:27], s34 offen
L_q_end:
  s_endpgm""")
    if PF:
        a(f"""L_pf:
  s_cmp_ge_u32 s2, 384
  s_cbranch_scc1 L_q_end
  s_load_dwordx4 s[4:7], s[0:1], 8      ; A_k, A_v
  s_load_dwordx4 s[8:11], s[0:1], 48    ; B_k, B_v
  s_sub_u32 s3, s2, 128
  s_and_b32 s29, s3, 7            ; hkv
  s_lshr_b32 s28, s3, 7           ; p
  s_lshr_b32 s47, s3, 3
  s_and_b32 s47, s47, 15          ; mem
  s_lshr_b32 s46, s47, 1          ; b
  s_and_b32 s43, s47, 1           ; split
  s_lshl_b32 s31, s46, 3
  s_add_u32 s31, s31, s29
  s_lshl_b32 s31, s31, 21
  s_lshl_b32 s32, s43, 20
  s_add_u32 s31, s31, s32
  v_lshlrev_b32 v1, 4, v0
  s_waitcnt lgkmcnt(0)
  s_cmp_eq_u32 s28, 0
  s_cselect_b32 s4, s4, s8
  s_cselect_b32 s5, s5, s9
  s_cselect_b32 s6, s6, s10
  s_cselect_b32 s7, s7, s11""")
        srd(a, 16, 4, 5, 0x8000000)
        srd(a, 20, 6, 7, 0x8000000)
        for i in range(PF):
            a(f"""  s_add_u32 s32, s31, {i*8192}
  buffer_load_dwordx4 v[{8+8*(i%8)}:{11+8*(i%8)}], v1, s[16:19], s32 offen
  buffer_load_dwordx4 v[{12+8*(i%8)}:{15+8*(i%8)}], v1, s[20:23], s32 offen""")
            if i % 8 == 7:
                a("  s_waitcnt vmcnt(0)")
        a("""  s_waitcnt vmcnt(0)
  s_endpgm""")
    return name, 96

def gen_oproj(a, merge=False):
    name = "oproj_kernel"
    TAILA = f"""  ; POUT addr = WS_POUT + ((p*16+ks)*8 + b)*2048 + (slab*64+col)*4
  v_lshlrev_b32 v10, 11, v5
  v_lshl_add_u32 v10, v1, 2, v10
  s_lshl_b32 s33, s28, 4
  s_add_u32 s33, s33, s29
  s_lshl_b32 s33, s33, 14
  s_lshl_b32 s34, s43, 8
  s_add_u32 s33, s33, s34
  s_add_u32 s33, s33, {WS_POUT:#x}
  buffer_store_dword v16, v10, s[24:27], s33 offen"""
    sums = "\n".join(f"  v_add_f32 v{16+i}, v{16+i}, v{16+i+st}" for st in (1, 2, 4, 8) for i in range(0, 16, 2 * st))
    lds_ = "\n".join(f"  s_add_u32 s35, s34, {ks*2048}\n  buffer_load_dword v{16+ks}, v9, s[24:27], s35 offen sc1" for ks in range(16))
    TAILB = f"""  ; POUT byte = WS_POUT + ((p*8+slab)*16 + ks)*2048 + t*4
  s_lshl_b32 s33, s28, 3
  s_add_u32 s33, s33, s43          ; p*8+slab
  s_lshl_b32 s34, s33, 15
  s_add_u32 s34, s34, {WS_POUT:#x}
  s_lshl_b32 s35, s29, 11
  s_add_u32 s35, s35, s34
  buffer_store_dword v16, v9, s[24:27], s35 offen sc1
  s_waitcnt vmcnt(0)
  s_barrier
  s_cmp_lg_u32 s30, 0
  s_cbranch_scc1 L_oo_wait
  s_lshl_b32 s31, s33, 8
  s_add_u32 s31, s31, {WS_CNT:#x}
  v_mov_b32 v12, 1
  v_mov_b32 v13, 0
  s_mov_b64 exec, 1
  buffer_atomic_add v12, v13, s[24:27], s31 offen sc0 sc1
  s_waitcnt vmcnt(0)
  ds_write_b32 v13, v12
  s_waitcnt lgkmcnt(0)
  s_mov_b64 exec, -1
L_oo_wait:
  s_barrier
  v_mov_b32 v13, 0
  ds_read_b32 v12, v13
  s_waitcnt lgkmcnt(0)
  v_readfirstlane_b32 s39, v12
  s_cmp_lg_u32 s39, 15
  s_cbranch_scc1 L_o_end
{lds_}
  v_lshlrev_b32 v10, 11, v5
  v_lshl_add_u32 v10, v1, 1, v10
  s_lshl_b32 s35, s33, 7
  s_waitcnt vmcnt(0)
{sums}
  v_cvt_pk_bf16_f32 v16, v16, v16
  buffer_store_short v16, v10, s[60:63], s35 offen"""
    kernel_header(a, name)
    a(f"""  s_cmp_ge_u32 s2, 256
  s_cbranch_scc1 L_o_end
  s_load_dwordx2 s[4:5], s[0:1], 32     ; A_wo
  s_load_dwordx2 s[8:9], s[0:1], 72     ; B_wo
  s_load_dwordx2 s[12:13], s[0:1], 96   ; ws
  s_load_dwordx4 s[84:87], s[0:1], 80
  v_and_b32 v1, 63, v0
  v_lshrrev_b32 v5, 6, v0
  v_and_b32 v2, 15, v1            ; n
  v_lshrrev_b32 v3, 4, v1         ; g
  v_readfirstlane_b32 s30, v5
  s_lshr_b32 s28, s2, 7           ; p
  s_lshr_b32 s29, s2, 3
  s_and_b32 s29, s29, 15          ; ks
  s_and_b32 s43, s2, 7            ; slab
  s_mov_b32 s40, {SEL_LO:#x}
  s_mov_b32 s41, {SEL_HI:#x}
  s_mov_b32 s42, {C_BITS:#x}
  v_lshlrev_b32 v6, 13, v3        ; g*8192
  v_lshl_add_u32 v6, v2, 3, v6    ; + n*8
  s_waitcnt lgkmcnt(0)
  s_cmp_eq_u32 s28, 0
  s_cselect_b32 s4, s4, s8
  s_cselect_b32 s5, s5, s9""")
    srd(a, 20, 4, 5, 4096 * 512 * 2)
    srd(a, 24, 12, 13, WS_SIZE)
    srd(a, 60, 84, 85, 8192 * 2)
    srd(a, 64, 86, 87, 256)
    a(f"""  ; wo soffset = (ks*256 + w*32)*1024 + slab*128
  s_lshl_b32 s31, s29, 18
  s_lshl_b32 s32, s30, 15
  s_add_u32 s31, s31, s32
  s_lshl_b32 s32, s43, 7
  s_add_u32 s31, s31, s32
  s_add_u32 s32, s31, 4096""")
    for i in range(8):
        a(f"  buffer_load_dwordx2 v[{16+2*i}:{17+2*i}], v6, s[20:23], s{31+(i>>2)} offen offset:{(i&3)*1024}")
    a(f"""  v_lshrrev_b32 v7, 5, v1         ; hi
  v_and_b32 v8, 31, v1
  v_lshlrev_b32 v9, 9, v7         ; hi*512
  v_lshl_add_u32 v9, v8, 4, v9
  v_lshlrev_b32 v10, 3, v7        ; hi*8
  s_lshl_b32 s33, s28, 6
  s_lshl_b32 s34, s30, 3
  s_add_u32 s33, s33, s34
  s_lshr_b32 s34, s29, 1
  s_add_u32 s33, s33, s34         ; unit
  s_and_b32 s35, s29, 1           ; ks&1
  s_lshl_b32 s36, s33, 12         ; unit*2*2048
  s_lshl_b32 s37, s35, 10         ; (ks&1)*2*512
  s_add_u32 s36, s36, s37
  s_add_u32 s36, s36, {WS_PO:#x}
  s_lshl_b32 s38, s33, 6          ; unit*2*32
  s_lshl_b32 s37, s35, 4
  s_add_u32 s38, s38, s37
  s_add_u32 s38, s38, {WS_PML:#x}
  buffer_load_dwordx4 v[32:35], v9, s[24:27], s36 offen
  buffer_load_dwordx4 v[36:39], v9, s[24:27], s36 offen offset:2048
  buffer_load_dwordx2 v[40:41], v10, s[24:27], s38 offen
  buffer_load_dwordx2 v[42:43], v10, s[24:27], s38 offen offset:32
  s_waitcnt vmcnt(0)
  v_max_f32 v44, v40, v42
  v_sub_f32 v40, v40, v44
  v_sub_f32 v42, v42, v44
  v_mul_f32 v40, s42, v40
  v_mul_f32 v42, s42, v42
  v_exp_f32 v40, v40
  v_exp_f32 v42, v42
  s_nop 0
  v_mul_f32 v45, v40, v41
  v_fmac_f32 v45, v42, v43
  v_rcp_f32 v45, v45
  s_nop 0
  v_mul_f32 v40, v40, v45
  v_mul_f32 v42, v42, v45""")
    for i in range(4):
        a(f"""  v_mul_f32 v{32+i}, v{32+i}, v40
  v_fmac_f32 v{32+i}, v{36+i}, v42""")
    a(f"""  v_cvt_pk_bf16_f32 v32, v32, v33
  v_cvt_pk_bf16_f32 v33, v34, v35
  v_lshlrev_b32 v11, 9, v5
  v_lshl_add_u32 v11, v1, 3, v11
  ds_write_b64 v11, v[32:33]
  s_waitcnt lgkmcnt(0)
  s_barrier
  v_lshlrev_b32 v11, 9, v2
  v_lshl_add_u32 v11, v5, 6, v11
  v_lshl_add_u32 v11, v3, 4, v11
  ds_read_b128 v[48:51], v11""")
    for e in range(4):
        sel = "s40" if (e & 1) == 0 else "s41"
        for q in range(4):
            lo = 16 + 2 * (2 * q) + (e >> 1)
            hi = 16 + 2 * (2 * q + 1) + (e >> 1)
            a(f"  v_perm_b32 v{56+4*e+q}, v{hi}, v{lo}, {sel}")
    a("  s_waitcnt lgkmcnt(0)")
    a("  s_nop 1")
    for e in range(4):
        a(f"  v_mfma_f32_16x16x32_bf16 v[{72+4*e}:{75+4*e}], v[48:51], v[{56+4*e}:{59+4*e}], 0")
    a(f"""  s_nop 7
  s_nop 7
  v_lshlrev_b32 v8, 10, v3        ; g*1024
  v_lshl_add_u32 v8, v2, 4, v8    ; + n*16
  v_lshl_add_u32 v8, v5, 11, v8   ; + w*2048
  v_cmp_gt_u32 vcc, 32, v1
  s_and_saveexec_b64 s[44:45], vcc""")
    for e in range(4):
        for r in range(4):
            a(f"  ds_write_b32 v8, v{72+4*e+r} offset:{8192+r*256+e*4}")
    a(f"""  s_mov_b64 exec, s[44:45]
  s_waitcnt lgkmcnt(0)
  s_barrier
  v_lshlrev_b32 v9, 2, v0""")
    for w in range(8):
        a(f"  ds_read_b32 v{16+w}, v9 offset:{8192+w*2048}")
    a(f"""  s_waitcnt lgkmcnt(0)
  v_add_f32 v16, v16, v17
  v_add_f32 v18, v18, v19
  v_add_f32 v20, v20, v21
  v_add_f32 v22, v22, v23
  v_add_f32 v16, v16, v18
  v_add_f32 v20, v20, v22
  v_add_f32 v16, v16, v20
{TAILA if not merge else TAILB}
L_o_end:
  s_endpgm""")
    return name, 96

def gen_final(a):
    name = "final_kernel"
    kernel_header(a, name)
    a(f"""  s_cmp_ge_u32 s2, 32
  s_cbranch_scc1 L_f_end
  s_load_dwordx2 s[4:5], s[0:1], 80     ; out
  s_load_dwordx2 s[12:13], s[0:1], 96   ; ws
  s_lshl_b32 s3, s2, 8
  v_add_u32 v1, s3, v0            ; o = b*1024 + p*512 + n
  v_lshrrev_b32 v2, 10, v1        ; b
  v_bfe_u32 v3, v1, 9, 1          ; p
  v_and_b32 v4, 511, v1           ; n
  v_lshlrev_b32 v5, 18, v3
  v_lshl_add_u32 v5, v2, 11, v5
  v_lshl_add_u32 v5, v4, 2, v5
  v_lshlrev_b32 v6, 1, v1
  s_waitcnt lgkmcnt(0)""")
    srd(a, 16, 4, 5, 8192 * 2)
    srd(a, 24, 12, 13, WS_SIZE)
    for ks in range(16):
        a(f"""  s_mov_b32 s30, {WS_POUT + ks*16384:#x}
  buffer_load_dword v{16+ks}, v5, s[24:27], s30 offen""")
    a("  s_waitcnt vmcnt(0)")
    for st in (1, 2, 4, 8):
        for i in range(0, 16, 2 * st):
            a(f"  v_add_f32 v{16+i}, v{16+i}, v{16+i+st}")
    a(f"""  v_cvt_pk_bf16_f32 v16, v16, v16
  buffer_store_short v16, v6, s[16:19], 0 offen
L_f_end:
  s_endpgm""")
    return name, 40

def gen(a, opts):
    TAIL = int(opts.get('tail','1'))
    STAMP = int(opts.get("stamp", "0"))
    def stamp(idx):
        if not STAMP:
            return
        a(f"""  s_memrealtime s[90:91]
  s_waitcnt lgkmcnt(0)
  s_mov_b32 s{92 if False else 88}, s90
  v_writelane_b32 v{91}, s90, {idx}""")
        if idx == 0:
            a(f"""  s_not_b32 s90, s90
  v_writelane_b32 v91, s90, 10""")
    name = "attn_kernel"
    NIT = 16
    ldflags = opts.get("ldflags", "nt")
    depth = 2
    PSLEEP = int(opts.get("psleep", "1"))
    SPIN = int(opts.get("spin", "400000"))
    Q0 = 4; O0 = 20; S0 = 52; S1 = 56; P0 = 60; A0 = 64
    MRUN = 76; MC = 77; L = 78; T0 = 79; T1 = 80; MX = 81; AL = 82
    NR = 83; GR = 84; VQ = 85; E0 = 86; E1 = 87; E2 = 88; LANE = 89; VZ = 90; GRB = 85; CADDR = 92; ONE = 93
    KV0 = 96
    nvgpr = KV0 + 64 * depth
    STEP = 8192 * 8
    W0 = 20; X0 = 36; B0 = 44; D0 = 52
    a(f""".globl {name}
.p2align 8
.type {name},@function
{name}:
  s_cmp_ge_u32 s2, 256
  s_cbranch_scc1 L_end
  s_load_dwordx8 s[4:11], s[0:1], 0     ; A_x, A_k, A_v, A_wq
  s_load_dwordx8 s[72:79], s[0:1], 32   ; A_wo, B_x, B_k, B_v
  s_load_dwordx8 s[80:87], s[0:1], 64
  s_load_dwordx2 s[12:13], s[0:1], 96   ; ws
  v_and_b32 v{LANE}, 63, v0
  v_lshrrev_b32 v3, 6, v0
  v_and_b32 v{NR}, 15, v{LANE}          ; n / h
  v_lshrrev_b32 v{GR}, 4, v{LANE}       ; g
  v_readfirstlane_b32 s30, v3
  s_and_b32 s29, s2, 7            ; hkv
  s_lshr_b32 s28, s2, 7           ; p
  s_lshr_b32 s47, s2, 3
  s_and_b32 s47, s47, 15          ; mem
  s_lshl_b32 s68, s28, 3
  s_add_u32 s68, s68, s29
  s_lshl_b32 s89, s68, 4
  s_add_u32 s89, s89, s47         ; grp*16+mem
  s_lshr_b32 s46, s47, 1          ; b
  s_and_b32 s43, s47, 1           ; split
{'' if TAIL else '''  s_lshl_b32 s89, s28, 6
  s_lshl_b32 s31, s46, 3
  s_add_u32 s89, s89, s31
  s_add_u32 s89, s89, s29
  s_lshl_b32 s89, s89, 1
  s_add_u32 s89, s89, s43'''}
  s_mov_b32 s40, {SEL_LO:#x}
  s_mov_b32 s41, {SEL_HI:#x}
  s_mov_b32 s42, {C_BITS:#x}
  v_lshlrev_b32 v1, 8, v{NR}
  v_lshl_add_u32 v1, v{GR}, 4, v1
  v_lshlrev_b32 v2, 10, v{GR}
  v_lshl_add_u32 v2, v{NR}, 4, v2  ; voffV = g*1024 + n*16
  v_lshlrev_b32 v{E0}, 16, v{GR}
  v_lshl_add_u32 v{E0}, v{NR}, 4, v{E0}   ; voffW = g*65536 + n*16
  v_lshlrev_b32 v{E1}, 4, v{GR}           ; voffX = g*16
  v_mov_b32 v{VZ}, 0
  s_waitcnt lgkmcnt(0)
  s_cmp_eq_u32 s28, 0
  s_cselect_b32 s4, s4, s74       ; x
  s_cselect_b32 s5, s5, s75
  s_cselect_b32 s6, s6, s76       ; k
  s_cselect_b32 s7, s7, s77
  s_cselect_b32 s8, s8, s78       ; v
  s_cselect_b32 s9, s9, s79
  s_cselect_b32 s10, s10, s80     ; wq
  s_cselect_b32 s11, s11, s81
  s_cselect_b32 s72, s72, s82     ; wo
  s_cselect_b32 s73, s73, s83""")
    srd(a, 48, 10, 11, 512 * 4096 * 2)
    srd(a, 52, 4, 5, 8192)
    srd(a, 16, 6, 7, 0x8000000)
    srd(a, 20, 8, 9, 0x8000000)
    srd(a, 24, 12, 13, WS_SIZE)
    srd(a, 56, 72, 73, 4096 * 512 * 2)
    srd(a, 60, 84, 85, 8192 * 2)
    srd(a, 64, 86, 87, 256)
    stamp(0)
    a(f"""  ; K/V byte base = (b*8+hkv)*2MiB + split*1MiB
  s_lshl_b32 s71, s46, 3
  s_add_u32 s71, s71, s29
  s_lshl_b32 s71, s71, 21
  s_lshl_b32 s34, s43, 20
  s_add_u32 s71, s71, s34""")

    ROT = int(opts.get('rot', '0'))
    if ROT:
        a(f"""  s_mul_i32 s45, s2, {ROT}
  s_and_b32 s45, s45, 127""")
    def setaddr(tile_sreg):
        if ROT:
            a(f"""  s_add_u32 s33, {tile_sreg}, s45
  s_and_b32 s33, s33, 127
  s_lshl_b32 s33, s33, 13
  s_add_u32 s33, s33, s71
  s_add_u32 s34, s33, 4096""")
            return
        a(f"""  s_lshl_b32 s33, {tile_sreg}, 13
  s_add_u32 s33, s33, s71
  s_add_u32 s34, s33, 4096""")
    def kloads(st):
        K0 = KV0 + 64 * st
        for t in range(2):
            for j in range(4):
                r = K0 + (t * 4 + j) * 4
                a(f"  buffer_load_dwordx4 v[{r}:{r+3}], v1, s[16:19], s{33+t} offen offset:{j*64} {ldflags}")
    def vloads(st):
        V0 = KV0 + 64 * st + 32
        for i in range(8):
            r = V0 + i * 4
            a(f"  buffer_load_dwordx4 v[{r}:{r+3}], v2, s[20:23], s{33+(i>>2)} offen offset:{(i&3)*256} {ldflags}")
    def grab():
        a(f"""  s_mov_b64 exec, 1
  ds_add_rtn_u32 v{GRB}, v{CADDR}, v{ONE}
  s_mov_b64 exec, -1""")
    def grab_read(sreg):
        a(f"""  s_waitcnt lgkmcnt(0)
  v_readfirstlane_b32 {sreg}, v{GRB}""")

    for i in range(16):
        a(f"  v_mov_b32 v{Q0+i}, 0")
    a(f"""  v_mov_b32 v{CADDR}, {L_R3+16}
  v_mov_b32 v{ONE}, 1
  s_lshl_b32 s31, s28, 16
  s_lshl_b32 s32, s46, 13
  s_add_u32 s31, s31, s32
  s_lshl_b32 s32, s29, 10
  s_add_u32 s31, s31, s32
  v_cmp_gt_u32 vcc, 4, v{NR}
  s_and_saveexec_b64 s[36:37], vcc""")
    for j in range(4):
        a(f"  buffer_load_dwordx4 v[{Q0+4*j}:{Q0+4*j+3}], v1, s[24:27], s31 offen offset:{j*64}")
    a(f"""  s_mov_b64 exec, s[36:37]
  s_mov_b32 s35, s30""")
    setaddr("s35")
    kloads(0); vloads(0)
    a("  s_add_u32 s35, s30, 8")
    setaddr("s35")
    kloads(1); vloads(1)
    a(f"""  v_mov_b32 v{GRB}, 16
  s_cmp_lg_u32 s30, 0
  s_cbranch_scc1 L_noinit
  s_mov_b64 exec, 1
  ds_write_b32 v{CADDR}, v{GRB}
  s_mov_b64 exec, -1
L_noinit:""")
    for i in range(32):
        a(f"  v_mov_b32 v{O0+i}, 0")
    a(f"""  v_mov_b32 v{MRUN}, 0xff800000
  v_mov_b32 v{MC}, 0xff800000
  v_mov_b32 v{L}, 0
  s_waitcnt lgkmcnt(0)
  s_barrier""")
    stamp(4)

    def body(st, issue, wk, wv, tag):
        K0 = KV0 + 64 * st
        V0 = K0 + 32
        a(f"  s_waitcnt vmcnt({wk})")
        for t in range(2):
            sreg = S0 if t == 0 else S1
            for j in range(4):
                r = K0 + (t * 4 + j) * 4
                c = "0" if j == 0 else f"v[{sreg}:{sreg+3}]"
                a(f"  v_mfma_f32_16x16x32_bf16 v[{sreg}:{sreg+3}], v[{r}:{r+3}], v[{Q0+4*j}:{Q0+4*j+3}], {c}")
        if issue:
            setaddr("s35")
            kloads(st)
            grab_read("s44")
        else:
            a("  s_nop 7")
        a(f"""  s_nop 1
  v_max3_f32 v{MX}, v{S0}, v{S0+1}, v{S0+2}
  v_max3_f32 v{MX}, v{MX}, v{S0+3}, v{S1}
  v_max3_f32 v{MX}, v{MX}, v{S1+1}, v{S1+2}
  v_max_f32 v{MX}, v{MX}, v{S1+3}
  v_cmp_gt_f32 vcc, v{MX}, v{MRUN}
  s_cbranch_vccz L_fast_{tag}
  v_mov_b32 v{T0}, v{MX}
  s_nop 1
  v_permlane16_swap_b32 v{MX}, v{T0}
  v_max_f32 v{MX}, v{MX}, v{T0}
  v_mov_b32 v{T0}, v{MX}
  s_nop 1
  v_permlane32_swap_b32 v{MX}, v{T0}
  v_max_f32 v{MX}, v{MX}, v{T0}
  v_max_f32 v{MX}, v{MX}, v{MRUN}      ; m_new
  v_sub_f32 v{T0}, v{MRUN}, v{MX}
  v_mul_f32 v{T0}, s42, v{T0}
  v_exp_f32 v{AL}, v{T0}
  v_mov_b32 v{MRUN}, v{MX}
  v_mul_f32 v{MC}, s42, v{MX}
  v_mul_f32 v{L}, v{L}, v{AL}""")
        for i in range(32):
            a(f"  v_mul_f32 v{O0+i}, v{O0+i}, v{AL}")
        a(f"L_fast_{tag}:")
        for i in range(8):
            a(f"  v_fma_f32 v{S0+i}, v{S0+i}, s42, -v{MC}")
        for i in range(8):
            a(f"  v_exp_f32 v{S0+i}, v{S0+i}")
        a(f"""  s_nop 0
  v_add_f32 v{T0}, v{S0}, v{S0+1}
  v_add_f32 v{T1}, v{S0+2}, v{S0+3}
  v_add_f32 v{L}, v{L}, v{T0}
  v_add_f32 v{L}, v{L}, v{T1}
  v_add_f32 v{T0}, v{S0+4}, v{S0+5}
  v_add_f32 v{T1}, v{S0+6}, v{S0+7}
  v_add_f32 v{L}, v{L}, v{T0}
  v_add_f32 v{L}, v{L}, v{T1}""")
        for q in range(4):
            a(f"  v_cvt_pk_bf16_f32 v{P0+q}, v{S0+2*q}, v{S0+2*q+1}")
        a(f"  s_waitcnt vmcnt({wv})")
        def perms(e):
            sel = "s40" if (e & 1) == 0 else "s41"
            base = A0 + 4 * (e % 3)
            for q in range(4):
                lo = V0 + 4 * (2 * q) + (e >> 1)
                hi = V0 + 4 * (2 * q + 1) + (e >> 1)
                a(f"  v_perm_b32 v{base+q}, v{hi}, v{lo}, {sel}")
        def pv(e):
            base = A0 + 4 * (e % 3)
            o = O0 + 4 * e
            a(f"  v_mfma_f32_16x16x32_bf16 v[{o}:{o+3}], v[{base}:{base+3}], v[{P0}:{P0+3}], v[{o}:{o+3}]")
        perms(0)
        for e in range(8):
            if e + 1 < 8:
                perms(e + 1)
            else:
                a("  s_nop 1")
            pv(e)
        if issue:
            vloads(st)

    a("L_first_grab:")
    grab(); grab_read("s35")
    a("L_a_loop:")
    for st in range(2):
        a(f"""  s_cmp_ge_u32 s35, 128
  s_cbranch_scc1 L_drain_{st}""")
        grab()
        body(st, True, 24, 24, f"m{st}")
        a("  s_mov_b32 s35, s44")
    a("  s_branch L_a_loop")
    for st in range(2):
        a(f"L_drain_{st}:")
        body(st, False, 24, 16, f"d{st}a")
        body(1 - st, False, 8, 0, f"d{st}b")
        a("  s_branch L_loop_done")
    a("L_loop_done:")
    stamp(5)
    WOR = KV0
    DO = KV0 + 16
    a(f"""  ; wo loads: rows hkv*512 + ksl*256 + w*32 + g*8 + i ; cols slab*64 + n*4 ; ksl = mem>>3, slab = mem&7
  v_lshlrev_b32 v{E0}, 13, v{GR}
  v_lshl_add_u32 v{E0}, v{NR}, 3, v{E0}    ; g*8192 + n*8
  s_lshr_b32 s69, s47, 3          ; ksl
  s_and_b32 s70, s47, 7           ; slab
  s_lshl_b32 s31, s29, 19         ; hkv*512*1024
  s_lshl_b32 s32, s69, 18
  s_add_u32 s31, s31, s32
  s_lshl_b32 s32, s30, 15
  s_add_u32 s31, s31, s32
  s_lshl_b32 s32, s70, 7
  s_add_u32 s31, s31, s32
  s_add_u32 s32, s31, 4096""")
    for i in range(8):
        a(f"  buffer_load_dwordx2 v[{WOR+2*i}:{WOR+2*i+1}], v{E0}, s[56:59], s{31+(i>>2)} offen offset:{(i&3)*1024}")
    a(f"""  s_nop 3
  ; vaddr = w*2048 + h*512 + g*128
  v_lshlrev_b32 v{E0}, 11, v3
  v_lshl_add_u32 v{E0}, v{NR}, 9, v{E0}
  v_lshl_add_u32 v{E0}, v{GR}, 7, v{E0}
  v_lshlrev_b32 v{E1}, 6, v3
  v_lshl_add_u32 v{E1}, v{NR}, 4, v{E1}
  v_lshl_add_u32 v{E1}, v{GR}, 2, v{E1}
  v_lshlrev_b32 v{E2}, 4, v3
  v_lshl_add_u32 v{E2}, v{NR}, 2, v{E2}
  v_cmp_gt_u32 vcc, 4, v{NR}
  s_and_saveexec_b64 s[36:37], vcc""")
    for e in range(8):
        for r in range(4):
            a(f"  ds_write_b32 v{E0}, v{O0+4*e+r} offset:{r*32+e*4}")
    a(f"""  ds_write_b32 v{E1}, v{L} offset:16384
  ds_write_b32 v{E2}, v{MRUN} offset:16896
  s_mov_b64 exec, s[36:37]
  s_waitcnt lgkmcnt(0)
  s_barrier
  v_lshrrev_b32 v4, 7, v0         ; h
  v_lshlrev_b32 v5, 2, v4         ; h*4
  v_lshlrev_b32 v6, 4, v4         ; h*16
  v_lshlrev_b32 v7, 2, v0         ; t*4 = h*512+dim*4""")
    for w in range(8):
        a(f"  ds_read_b32 v{20+w}, v5 offset:{16896+w*16}")
    for w in range(8):
        a(f"  ds_read_b128 v[{32+4*w}:{35+4*w}], v6 offset:{16384+w*64}")
    for w in range(8):
        a(f"  ds_read_b32 v{64+w}, v7 offset:{w*2048}")
    a(f"""  s_waitcnt lgkmcnt(0)
  v_max3_f32 v8, v20, v21, v22
  v_max3_f32 v8, v8, v23, v24
  v_max3_f32 v8, v8, v25, v26
  v_max_f32 v8, v8, v27""")
    for w in range(8):
        a(f"  v_sub_f32 v{20+w}, v{20+w}, v8")
    for w in range(8):
        a(f"  v_mul_f32 v{20+w}, s42, v{20+w}")
    for w in range(8):
        a(f"  v_exp_f32 v{20+w}, v{20+w}")
    a("""  s_nop 0
  v_mov_b32 v9, 0
  v_mov_b32 v10, 0""")
    for w in range(8):
        b = 32 + 4 * w
        a(f"""  v_add_f32 v{b}, v{b}, v{b+1}
  v_add_f32 v{b+2}, v{b+2}, v{b+3}
  v_add_f32 v{b}, v{b}, v{b+2}
  v_fmac_f32 v9, v{20+w}, v{b}
  v_fmac_f32 v10, v{20+w}, v{64+w}""")
    a(f"""  ; store O: WS_PO + wg*2048 + t*4
  s_lshl_b32 s31, s89, 11
  s_add_u32 s31, s31, {WS_PO:#x}
  buffer_store_dword v10, v7, s[24:27], s31 offen sc1
  v_and_b32 v11, 127, v0
  v_cmp_eq_u32 vcc, 0, v11
  v_lshlrev_b32 v12, 3, v4
  s_lshl_b32 s31, s89, 5
  s_add_u32 s31, s31, {WS_PML:#x}
  s_and_saveexec_b64 s[36:37], vcc
  buffer_store_dwordx2 v[8:9], v12, s[24:27], s31 offen sc1
  s_mov_b64 exec, s[36:37]
{'' if TAIL else '  s_branch L_fin'}
  s_waitcnt vmcnt(0)
  s_barrier""")
    stamp(6)
    a(f"""  s_cmp_lg_u32 s30, 0
  s_cbranch_scc1 L_p_wait
  s_lshl_b32 s31, s68, 2
  s_add_u32 s31, s31, 64          ; S2 counter
  v_mov_b32 v{E1}, 1
  s_mov_b64 s[36:37], exec
  s_mov_b64 exec, 1
  buffer_atomic_add v{E1}, v{VZ}, s[64:67], s31 offen sc1
  s_mov_b32 s38, {SPIN}
L_p_poll:
  buffer_load_dword v{E1}, v{VZ}, s[64:67], s31 offen sc1
  s_waitcnt vmcnt(0)
  v_readfirstlane_b32 s39, v{E1}
  s_cmp_ge_u32 s39, 16
  s_cbranch_scc1 L_p_done
  s_sleep {PSLEEP}
  s_sub_u32 s38, s38, 1
  s_cmp_lg_u32 s38, 0
  s_cbranch_scc1 L_p_poll
L_p_done:
  s_mov_b64 exec, s[36:37]""")
    stamp(7)
    a(f"""L_p_wait:
  s_barrier
  v_lshrrev_b32 v7, 5, v{LANE}
  v_and_b32 v8, 31, v{LANE}
  v_lshlrev_b32 v9, 9, v7
  v_lshl_add_u32 v9, v8, 4, v9
  v_lshlrev_b32 v10, 3, v7         ; hi*8
  s_lshl_b32 s33, s68, 4
  s_lshl_b32 s34, s30, 1
  s_add_u32 s33, s33, s34          ; grp*16 + b'*2
  s_lshl_b32 s36, s33, 11
  s_lshl_b32 s37, s69, 10
  s_add_u32 s36, s36, s37
  s_add_u32 s36, s36, {WS_PO:#x}
  s_lshl_b32 s38, s33, 5
  s_lshl_b32 s37, s69, 4
  s_add_u32 s38, s38, s37
  s_add_u32 s38, s38, {WS_PML:#x}
  buffer_load_dwordx4 v[32:35], v9, s[24:27], s36 offen sc1
  buffer_load_dwordx4 v[36:39], v9, s[24:27], s36 offen offset:2048 sc1
  buffer_load_dwordx2 v[40:41], v10, s[24:27], s38 offen sc1
  buffer_load_dwordx2 v[42:43], v10, s[24:27], s38 offen offset:32 sc1""")
    for e in range(4):
        sel = "s40" if (e & 1) == 0 else "s41"
        for q in range(4):
            lo = WOR + 2 * (2 * q) + (e >> 1)
            hi = WOR + 2 * (2 * q + 1) + (e >> 1)
            a(f"  v_perm_b32 v{56+4*e+q}, v{hi}, v{lo}, {sel}")
    a(f"""  s_waitcnt vmcnt(0)
  v_max_f32 v44, v40, v42
  v_sub_f32 v40, v40, v44
  v_sub_f32 v42, v42, v44
  v_mul_f32 v40, s42, v40
  v_mul_f32 v42, s42, v42
  v_exp_f32 v40, v40
  v_exp_f32 v42, v42
  s_nop 0
  v_mul_f32 v45, v40, v41
  v_fmac_f32 v45, v42, v43
  v_rcp_f32 v45, v45
  s_nop 0
  v_mul_f32 v40, v40, v45
  v_mul_f32 v42, v42, v45""")
    for i in range(4):
        a(f"""  v_mul_f32 v{32+i}, v{32+i}, v40
  v_fmac_f32 v{32+i}, v{36+i}, v42""")
    a(f"""  v_cvt_pk_bf16_f32 v32, v32, v33
  v_cvt_pk_bf16_f32 v33, v34, v35
  v_lshlrev_b32 v11, 9, v3
  v_lshl_add_u32 v11, v{LANE}, 3, v11     ; b'*512 + lane*8
  ds_write_b64 v11, v[32:33] offset:{L_R1}
  s_waitcnt lgkmcnt(0)
  s_barrier
  v_lshlrev_b32 v11, 9, v{NR}
  v_lshl_add_u32 v11, v3, 6, v11
  v_lshl_add_u32 v11, v{GR}, 4, v11       ; n*512 + w*64 + g*16
  ds_read_b128 v[48:51], v11 offset:{L_R1}
  s_waitcnt lgkmcnt(0)
  s_nop 1""")
    for e in range(4):
        a(f"  v_mfma_f32_16x16x32_bf16 v[{DO+4*e}:{DO+4*e+3}], v[48:51], v[{56+4*e}:{59+4*e}], 0")
    a(f"""  v_lshlrev_b32 v8, 10, v{GR}
  v_lshl_add_u32 v8, v{NR}, 4, v8
  v_lshl_add_u32 v8, v3, 11, v8    ; w*2048 + g*1024 + n*16
  v_cmp_gt_u32 vcc, 32, v{LANE}
  s_nop 7
  s_nop 3
  s_and_saveexec_b64 s[36:37], vcc""")
    for e in range(4):
        for r in range(4):
            a(f"  ds_write_b32 v8, v{DO+4*e+r} offset:{L_R2+r*256+e*4}")
    a(f"""  s_mov_b64 exec, s[36:37]
  s_waitcnt lgkmcnt(0)
  s_barrier
  v_lshlrev_b32 v9, 2, v0""")
    for w in range(8):
        a(f"  ds_read_b32 v{16+w}, v9 offset:{L_R2+w*2048}")
    a(f"""  s_waitcnt lgkmcnt(0)
  v_add_f32 v16, v16, v17
  v_add_f32 v18, v18, v19
  v_add_f32 v20, v20, v21
  v_add_f32 v22, v22, v23
  v_add_f32 v16, v16, v18
  v_add_f32 v20, v20, v22
  v_add_f32 v16, v16, v20
  s_lshl_b32 s33, s28, 3
  s_add_u32 s33, s33, s70          ; p*8+slab
  s_lshl_b32 s34, s33, 15
  s_add_u32 s34, s34, {WS_POUT:#x}
  s_lshl_b32 s35, s29, 1
  s_add_u32 s35, s35, s69
  s_lshl_b32 s35, s35, 11
  s_add_u32 s35, s35, s34
  buffer_store_dword v16, v9, s[24:27], s35 offen sc1
  s_waitcnt vmcnt(0)
  s_barrier""")
    stamp(8)
    a(f"""
  s_cmp_lg_u32 s30, 0
  s_cbranch_scc1 L_o_wait
  s_lshl_b32 s31, s33, 2
  s_add_u32 s31, s31, 128          ; S3 counter
  v_mov_b32 v{E1}, 1
  s_mov_b64 s[36:37], exec
  s_mov_b64 exec, 1
  buffer_atomic_add v{E1}, v{VZ}, s[64:67], s31 offen sc0 sc1
  s_waitcnt vmcnt(0)
  v_mov_b32 v{E2}, {L_R3}
  ds_write_b32 v{E2}, v{E1}
  s_waitcnt lgkmcnt(0)
  s_mov_b64 exec, s[36:37]
L_o_wait:
  s_barrier
  v_mov_b32 v{E2}, {L_R3}
  ds_read_b32 v{E1}, v{E2}
  s_waitcnt lgkmcnt(0)
  v_readfirstlane_b32 s39, v{E1}
  s_cmp_lg_u32 s39, 15
  s_cbranch_scc1 L_fin
  ; last arriver: reduce the 16 partials of (p,slab)""")
    for ks in range(16):
        a(f"""  s_add_u32 s35, s34, {ks*2048}
  buffer_load_dword v{16+ks}, v9, s[24:27], s35 offen sc1""")
    a(f"""  ; out byte = b'*2048 + p*1024 + slab*128 + col*2
  v_lshlrev_b32 v10, 11, v3
  v_lshl_add_u32 v10, v{LANE}, 1, v10
  s_lshl_b32 s35, s33, 7
  s_waitcnt vmcnt(0)""")
    for st in (1, 2, 4, 8):
        for i in range(0, 16, 2 * st):
            a(f"  v_add_f32 v{16+i}, v{16+i}, v{16+i+st}")
    a(f"""  v_cvt_pk_bf16_f32 v16, v16, v16
  buffer_store_short v16, v10, s[60:63], s35 offen
  s_waitcnt vmcnt(0)
L_fin:""")
    stamp(9)
    if STAMP:
        a(f"""  s_cmp_lg_u32 s30, 0
  s_cbranch_scc1 L_end
  v_lshlrev_b32 v10, 2, v{LANE}
  s_lshl_b32 s35, s2, 6
  s_add_u32 s35, s35, 0x180000
  v_cmp_gt_u32 vcc, 16, v{LANE}
  s_and_saveexec_b64 s[36:37], vcc
  buffer_store_dword v91, v10, s[24:27], s35 offen
  s_mov_b64 exec, s[36:37]""")
        if STAMP == 2:
            a(f"""  v_cmp_gt_u32 vcc, 11, v{LANE}
  s_and_saveexec_b64 s[36:37], vcc
  buffer_atomic_umax v91, v10, s[64:67], 0 offen sc1
  s_mov_b64 exec, s[36:37]""")
    a(f"""L_end:
  s_endpgm""")
    acc = (nvgpr + 3) // 4 * 4
    extra = [gen_qproj(a, int(opts.get('pf','0')))]
    if not TAIL:
        if int(opts.get('merge','0')):
            extra += [gen_oproj(a, True)]
        else:
            extra += [gen_oproj(a), gen_final(a)]
    a('.section .rodata,"a"')
    for qn, qv in extra:
        kernel_desc(a, qn, qv)
    a(f""".p2align 6
.amdhsa_kernel {name}
  .amdhsa_next_free_vgpr {max(nvgpr,160)}
  .amdhsa_next_free_sgpr 96
  .amdhsa_accum_offset {max(acc,160)}
  .amdhsa_group_segment_fixed_size 0
  .amdhsa_kernarg_size 104
  .amdhsa_user_sgpr_count 2
  .amdhsa_user_sgpr_kernarg_segment_ptr 1
  .amdhsa_system_sgpr_workgroup_id_x 1
.end_amdhsa_kernel""")

TAILL = '''
; @launch kernel=oproj_kernel grid=(256,1,1) block=(512,1,1) lds=24576
; @launch kernel=final_kernel grid=(32,1,1) block=(256,1,1) lds=0'''
TAILM = '''
; @launch kernel=oproj_kernel grid=(256,1,1) block=(512,1,1) lds=24576'''
def main():
    out = sys.argv[1] if len(sys.argv) > 1 else f"cdna_kernels/{NAME}.s"
    opts = {}
    for kv in sys.argv[2:]:
        k, v = kv.split("=", 1)
        opts[k] = v
    a = Asm()
    a(f"""; concat_heads gqa decode: fused q-proj -> flash-decode -> combine -> out-proj (16-workgroup group hand-offs)
; @launch kernel=qproj_kernel grid=({384 if int(opts.get('pf','0')) else 128},1,1) block=(512,1,1) lds=16384
; @launch kernel=attn_kernel grid=(256,1,1) block=(512,1,1) lds={LDS_BYTES}{'' if int(opts.get('tail','1')) else (TAILM if int(opts.get('merge','0')) else TAILL)}
.amdgcn_target "amdgcn-amd-amdhsa--gfx950"
.text""")
    gen(a, opts)
    open(out, "w").write(a.text())

main()
```

```python
import math, struct, sys

NAME = "concat_heads__gqa_block_cached__gqa_block_cached__decode"

def f32bits(x):
    return struct.unpack("<I", struct.pack("<f", x))[0]

C_SCALE = (128.0 ** -0.5) * math.log2(math.e)
C_BITS = f32bits(C_SCALE)

WS_Q = 0
WS_PO = 0x40000
WS_PML = 0xC0000
WS_POUT = 0x100000
WS_CNT = 0x1C0000
WS_SIZE = 0x200000

L_R1 = 17408
L_R2 = 25600
L_R3 = 41984
L_Q = 42240
LDS_BYTES = 43264

SEL_LO = 0x05040100
SEL_HI = 0x07060302

class Asm:
    def __init__(self):
        self.lines = []
    def __call__(self, s):
        for ln in s.strip("\n").split("\n"):
            self.lines.append(ln)
    def text(self):
        return "\n".join(self.lines) + "\n"

def srd(a, d, lo, hi, size):
    a(f"""  s_mov_b32 s{d}, s{lo}
  s_and_b32 s{d+1}, s{hi}, 0xffff
  s_mov_b32 s{d+2}, {size:#x}
  s_mov_b32 s{d+3}, 0x00020000""")

def kernel_header(a, name):
    a(f""".globl {name}
.p2align 8
.type {name},@function
{name}:""")

def kernel_desc(a, name, vgpr, sgpr=96):
    acc = (vgpr + 3) // 4 * 4
    a(f""".p2align 6
.amdhsa_kernel {name}
  .amdhsa_next_free_vgpr {vgpr}
  .amdhsa_next_free_sgpr {sgpr}
  .amdhsa_accum_offset {acc}
  .amdhsa_group_segment_fixed_size 0
  .amdhsa_kernarg_size 104
  .amdhsa_user_sgpr_count 2
  .amdhsa_user_sgpr_kernarg_segment_ptr 1
  .amdhsa_system_sgpr_workgroup_id_x 1
.end_amdhsa_kernel""")

def gen_qproj(a, PF=0):
    name = "qproj_kernel"
    kernel_header(a, name)
    a(f"""  s_cmp_ge_u32 s2, 128
  s_cbranch_scc1 {'L_pf' if PF else 'L_q_end'}
  s_load_dwordx2 s[4:5], s[0:1], 0
  s_load_dwordx2 s[6:7], s[0:1], 24
  s_load_dwordx2 s[8:9], s[0:1], 40
  s_load_dwordx2 s[10:11], s[0:1], 64
  s_load_dwordx2 s[12:13], s[0:1], 96
  v_and_b32 v1, 63, v0
  v_lshrrev_b32 v5, 6, v0
  v_and_b32 v2, 15, v1            ; n
  v_lshrrev_b32 v3, 4, v1         ; g
  v_readfirstlane_b32 s30, v5
  s_lshr_b32 s28, s2, 6           ; p
  s_and_b32 s29, s2, 63           ; slab
  s_mov_b32 s40, {SEL_LO:#x}
  s_mov_b32 s41, {SEL_HI:#x}
  v_lshlrev_b32 v6, 16, v3        ; g*65536
  v_lshl_add_u32 v6, v2, 3, v6    ; + n*8  -> voffset W
  v_lshlrev_b32 v7, 10, v2        ; n*1024
  v_lshl_add_u32 v7, v3, 4, v7    ; + g*16 -> voffset x
  s_waitcnt lgkmcnt(0)
  s_cmp_eq_u32 s28, 0
  s_cselect_b32 s4, s4, s8
  s_cselect_b32 s5, s5, s9
  s_cselect_b32 s6, s6, s10
  s_cselect_b32 s7, s7, s11""")
    srd(a, 16, 4, 5, 8192)
    srd(a, 20, 6, 7, 512 * 4096 * 2)
    srd(a, 24, 12, 13, WS_SIZE)
    a(f"""  s_cmp_ge_u32 s2, 32
  s_cbranch_scc1 L_q_nocnt
  s_cmp_lg_u32 s30, 0
  s_cbranch_scc1 L_q_nocnt
  s_lshl_b32 s31, s2, 8
  s_add_u32 s31, s31, {WS_CNT:#x}
  v_mov_b32 v8, 0
  s_mov_b64 exec, 1
  buffer_store_dword v8, v8, s[24:27], s31 offen
  s_mov_b64 exec, -1
L_q_nocnt:""")
    a(f"""  s_lshl_b32 s31, s30, 19
  s_lshl_b32 s32, s29, 7
  s_add_u32 s31, s31, s32
  s_lshl_b32 s33, s30, 7          ; x soffset = w*64*2""")
    for i in range(16):
        a(f"""  s_add_u32 s34, s31, {((i>>3)*32+(i&7))*8192:#x}
  buffer_load_dwordx2 v[{16+2*i}:{17+2*i}], v6, s[20:23], s34 offen""")
    a(f"""  buffer_load_dwordx4 v[48:51], v7, s[16:19], s33 offen
  buffer_load_dwordx4 v[52:55], v7, s[16:19], s33 offen offset:64
  s_waitcnt vmcnt(0)""")
    for grp in range(2):
        wb = 16 + 16 * grp
        for e in range(4):
            sel = "s40" if (e & 1) == 0 else "s41"
            for q in range(4):
                lo = wb + 2 * (2 * q) + (e >> 1)
                hi = wb + 2 * (2 * q + 1) + (e >> 1)
                a(f"  v_perm_b32 v{56+4*e+q}, v{hi}, v{lo}, {sel}")
        a("  s_nop 1")
        for e in range(4):
            c = "0" if grp == 0 else f"v[{72+4*e}:{75+4*e}]"
            a(f"  v_mfma_f32_16x16x32_bf16 v[{72+4*e}:{75+4*e}], v[{48+4*grp}:{51+4*grp}], v[{56+4*e}:{59+4*e}], {c}")
    a(f"""  s_nop 7
  s_nop 7
  v_lshlrev_b32 v8, 10, v3        ; g*1024
  v_lshl_add_u32 v8, v2, 4, v8    ; + n*16
  v_lshl_add_u32 v8, v5, 11, v8   ; + w*2048
  v_cmp_gt_u32 vcc, 32, v1
  s_and_saveexec_b64 s[36:37], vcc""")
    for e in range(4):
        for r in range(4):
            a(f"  ds_write_b32 v8, v{72+4*e+r} offset:{r*256+e*4}")
    a(f"""  s_mov_b64 exec, s[36:37]
  s_waitcnt lgkmcnt(0)
  s_barrier
  v_lshlrev_b32 v9, 2, v0         ; t*4 = b*256 + col*4""")
    for w in range(8):
        a(f"  ds_read_b32 v{16+w}, v9 offset:{w*2048}")
    a(f"""  s_waitcnt lgkmcnt(0)
  v_add_f32 v16, v16, v17
  v_add_f32 v18, v18, v19
  v_add_f32 v20, v20, v21
  v_add_f32 v22, v22, v23
  v_add_f32 v16, v16, v18
  v_add_f32 v20, v20, v22
  v_add_f32 v16, v16, v20
  v_cvt_pk_bf16_f32 v16, v16, v16
  v_lshlrev_b32 v10, 13, v5
  v_lshl_add_u32 v10, v1, 1, v10
  s_lshl_b32 s34, s28, 16
  s_lshl_b32 s35, s29, 7
  s_add_u32 s34, s34, s35
  buffer_store_short v16, v10, s[24:27], s34 offen
L_q_end:
  s_endpgm""")
    if PF:
        a(f"""L_pf:
  s_cmp_ge_u32 s2, 384
  s_cbranch_scc1 L_q_end
  s_load_dwordx4 s[4:7], s[0:1], 8      ; A_k, A_v
  s_load_dwordx4 s[8:11], s[0:1], 48    ; B_k, B_v
  s_sub_u32 s3, s2, 128
  s_and_b32 s29, s3, 7            ; hkv
  s_lshr_b32 s28, s3, 7           ; p
  s_lshr_b32 s47, s3, 3
  s_and_b32 s47, s47, 15          ; mem
  s_lshr_b32 s46, s47, 1          ; b
  s_and_b32 s43, s47, 1           ; split
  s_lshl_b32 s31, s46, 3
  s_add_u32 s31, s31, s29
  s_lshl_b32 s31, s31, 21
  s_lshl_b32 s32, s43, 20
  s_add_u32 s31, s31, s32
  v_lshlrev_b32 v1, 4, v0
  s_waitcnt lgkmcnt(0)
  s_cmp_eq_u32 s28, 0
  s_cselect_b32 s4, s4, s8
  s_cselect_b32 s5, s5, s9
  s_cselect_b32 s6, s6, s10
  s_cselect_b32 s7, s7, s11""")
        srd(a, 16, 4, 5, 0x8000000)
        srd(a, 20, 6, 7, 0x8000000)
        for i in range(PF):
            a(f"""  s_add_u32 s32, s31, {i*8192}
  buffer_load_dwordx4 v[{8+8*(i%8)}:{11+8*(i%8)}], v1, s[16:19], s32 offen
  buffer_load_dwordx4 v[{12+8*(i%8)}:{15+8*(i%8)}], v1, s[20:23], s32 offen""")
            if i % 8 == 7:
                a("  s_waitcnt vmcnt(0)")
        a("""  s_waitcnt vmcnt(0)
  s_endpgm""")
    return name, 96

def gen_oproj(a, merge=False):
    name = "oproj_kernel"
    TAILA = f"""  ; POUT addr = WS_POUT + ((p*16+ks)*8 + b)*2048 + (slab*64+col)*4
  v_lshlrev_b32 v10, 11, v5
  v_lshl_add_u32 v10, v1, 2, v10
  s_lshl_b32 s33, s28, 4
  s_add_u32 s33, s33, s29
  s_lshl_b32 s33, s33, 14
  s_lshl_b32 s34, s43, 8
  s_add_u32 s33, s33, s34
  s_add_u32 s33, s33, {WS_POUT:#x}
  buffer_store_dword v16, v10, s[24:27], s33 offen"""
    sums = "\n".join(f"  v_add_f32 v{16+i}, v{16+i}, v{16+i+st}" for st in (1, 2, 4, 8) for i in range(0, 16, 2 * st))
    lds_ = "\n".join(f"  s_add_u32 s35, s34, {ks*2048}\n  buffer_load_dword v{16+ks}, v9, s[24:27], s35 offen sc1" for ks in range(16))
    TAILB = f"""  ; POUT byte = WS_POUT + ((p*8+slab)*16 + ks)*2048 + t*4
  s_lshl_b32 s33, s28, 3
  s_add_u32 s33, s33, s43          ; p*8+slab
  s_lshl_b32 s34, s33, 15
  s_add_u32 s34, s34, {WS_POUT:#x}
  s_lshl_b32 s35, s29, 11
  s_add_u32 s35, s35, s34
  buffer_store_dword v16, v9, s[24:27], s35 offen sc1
  s_waitcnt vmcnt(0)
  s_barrier
  s_cmp_lg_u32 s30, 0
  s_cbranch_scc1 L_oo_wait
  s_lshl_b32 s31, s33, 8
  s_add_u32 s31, s31, {WS_CNT:#x}
  v_mov_b32 v12, 1
  v_mov_b32 v13, 0
  s_mov_b64 exec, 1
  buffer_atomic_add v12, v13, s[24:27], s31 offen sc0 sc1
  s_waitcnt vmcnt(0)
  ds_write_b32 v13, v12
  s_waitcnt lgkmcnt(0)
  s_mov_b64 exec, -1
L_oo_wait:
  s_barrier
  v_mov_b32 v13, 0
  ds_read_b32 v12, v13
  s_waitcnt lgkmcnt(0)
  v_readfirstlane_b32 s39, v12
  s_cmp_lg_u32 s39, 15
  s_cbranch_scc1 L_o_end
{lds_}
  v_lshlrev_b32 v10, 11, v5
  v_lshl_add_u32 v10, v1, 1, v10
  s_lshl_b32 s35, s33, 7
  s_waitcnt vmcnt(0)
{sums}
  v_cvt_pk_bf16_f32 v16, v16, v16
  buffer_store_short v16, v10, s[60:63], s35 offen"""
    kernel_header(a, name)
    a(f"""  s_cmp_ge_u32 s2, 256
  s_cbranch_scc1 L_o_end
  s_load_dwordx2 s[4:5], s[0:1], 32     ; A_wo
  s_load_dwordx2 s[8:9], s[0:1], 72     ; B_wo
  s_load_dwordx2 s[12:13], s[0:1], 96   ; ws
  s_load_dwordx4 s[84:87], s[0:1], 80
  v_and_b32 v1, 63, v0
  v_lshrrev_b32 v5, 6, v0
  v_and_b32 v2, 15, v1            ; n
  v_lshrrev_b32 v3, 4, v1         ; g
  v_readfirstlane_b32 s30, v5
  s_lshr_b32 s28, s2, 7           ; p
  s_lshr_b32 s29, s2, 3
  s_and_b32 s29, s29, 15          ; ks
  s_and_b32 s43, s2, 7            ; slab
  s_mov_b32 s40, {SEL_LO:#x}
  s_mov_b32 s41, {SEL_HI:#x}
  s_mov_b32 s42, {C_BITS:#x}
  v_lshlrev_b32 v6, 13, v3        ; g*8192
  v_lshl_add_u32 v6, v2, 3, v6    ; + n*8
  s_waitcnt lgkmcnt(0)
  s_cmp_eq_u32 s28, 0
  s_cselect_b32 s4, s4, s8
  s_cselect_b32 s5, s5, s9""")
    srd(a, 20, 4, 5, 4096 * 512 * 2)
    srd(a, 24, 12, 13, WS_SIZE)
    srd(a, 60, 84, 85, 8192 * 2)
    srd(a, 64, 86, 87, 256)
    a(f"""  ; wo soffset = (ks*256 + w*32)*1024 + slab*128
  s_lshl_b32 s31, s29, 18
  s_lshl_b32 s32, s30, 15
  s_add_u32 s31, s31, s32
  s_lshl_b32 s32, s43, 7
  s_add_u32 s31, s31, s32
  s_add_u32 s32, s31, 4096""")
    for i in range(8):
        a(f"  buffer_load_dwordx2 v[{16+2*i}:{17+2*i}], v6, s[20:23], s{31+(i>>2)} offen offset:{(i&3)*1024}")
    a(f"""  v_lshrrev_b32 v7, 5, v1         ; hi
  v_and_b32 v8, 31, v1
  v_lshlrev_b32 v9, 9, v7         ; hi*512
  v_lshl_add_u32 v9, v8, 4, v9
  v_lshlrev_b32 v10, 3, v7        ; hi*8
  s_lshl_b32 s33, s28, 6
  s_lshl_b32 s34, s30, 3
  s_add_u32 s33, s33, s34
  s_lshr_b32 s34, s29, 1
  s_add_u32 s33, s33, s34         ; unit
  s_and_b32 s35, s29, 1           ; ks&1
  s_lshl_b32 s36, s33, 12         ; unit*2*2048
  s_lshl_b32 s37, s35, 10         ; (ks&1)*2*512
  s_add_u32 s36, s36, s37
  s_add_u32 s36, s36, {WS_PO:#x}
  s_lshl_b32 s38, s33, 6          ; unit*2*32
  s_lshl_b32 s37, s35, 4
  s_add_u32 s38, s38, s37
  s_add_u32 s38, s38, {WS_PML:#x}
  buffer_load_dwordx4 v[32:35], v9, s[24:27], s36 offen
  buffer_load_dwordx4 v[36:39], v9, s[24:27], s36 offen offset:2048
  buffer_load_dwordx2 v[40:41], v10, s[24:27], s38 offen
  buffer_load_dwordx2 v[42:43], v10, s[24:27], s38 offen offset:32
  s_waitcnt vmcnt(0)
  v_max_f32 v44, v40, v42
  v_sub_f32 v40, v40, v44
  v_sub_f32 v42, v42, v44
  v_mul_f32 v40, s42, v40
  v_mul_f32 v42, s42, v42
  v_exp_f32 v40, v40
  v_exp_f32 v42, v42
  s_nop 0
  v_mul_f32 v45, v40, v41
  v_fmac_f32 v45, v42, v43
  v_rcp_f32 v45, v45
  s_nop 0
  v_mul_f32 v40, v40, v45
  v_mul_f32 v42, v42, v45""")
    for i in range(4):
        a(f"""  v_mul_f32 v{32+i}, v{32+i}, v40
  v_fmac_f32 v{32+i}, v{36+i}, v42""")
    a(f"""  v_cvt_pk_bf16_f32 v32, v32, v33
  v_cvt_pk_bf16_f32 v33, v34, v35
  v_lshlrev_b32 v11, 9, v5
  v_lshl_add_u32 v11, v1, 3, v11
  ds_write_b64 v11, v[32:33]
  s_waitcnt lgkmcnt(0)
  s_barrier
  v_lshlrev_b32 v11, 9, v2
  v_lshl_add_u32 v11, v5, 6, v11
  v_lshl_add_u32 v11, v3, 4, v11
  ds_read_b128 v[48:51], v11""")
    for e in range(4):
        sel = "s40" if (e & 1) == 0 else "s41"
        for q in range(4):
            lo = 16 + 2 * (2 * q) + (e >> 1)
            hi = 16 + 2 * (2 * q + 1) + (e >> 1)
            a(f"  v_perm_b32 v{56+4*e+q}, v{hi}, v{lo}, {sel}")
    a("  s_waitcnt lgkmcnt(0)")
    a("  s_nop 1")
    for e in range(4):
        a(f"  v_mfma_f32_16x16x32_bf16 v[{72+4*e}:{75+4*e}], v[48:51], v[{56+4*e}:{59+4*e}], 0")
    a(f"""  s_nop 7
  s_nop 7
  v_lshlrev_b32 v8, 10, v3        ; g*1024
  v_lshl_add_u32 v8, v2, 4, v8    ; + n*16
  v_lshl_add_u32 v8, v5, 11, v8   ; + w*2048
  v_cmp_gt_u32 vcc, 32, v1
  s_and_saveexec_b64 s[44:45], vcc""")
    for e in range(4):
        for r in range(4):
            a(f"  ds_write_b32 v8, v{72+4*e+r} offset:{8192+r*256+e*4}")
    a(f"""  s_mov_b64 exec, s[44:45]
  s_waitcnt lgkmcnt(0)
  s_barrier
  v_lshlrev_b32 v9, 2, v0""")
    for w in range(8):
        a(f"  ds_read_b32 v{16+w}, v9 offset:{8192+w*2048}")
    a(f"""  s_waitcnt lgkmcnt(0)
  v_add_f32 v16, v16, v17
  v_add_f32 v18, v18, v19
  v_add_f32 v20, v20, v21
  v_add_f32 v22, v22, v23
  v_add_f32 v16, v16, v18
  v_add_f32 v20, v20, v22
  v_add_f32 v16, v16, v20
{TAILA if not merge else TAILB}
L_o_end:
  s_endpgm""")
    return name, 96

def gen_final(a):
    name = "final_kernel"
    kernel_header(a, name)
    a(f"""  s_cmp_ge_u32 s2, 32
  s_cbranch_scc1 L_f_end
  s_load_dwordx2 s[4:5], s[0:1], 80     ; out
  s_load_dwordx2 s[12:13], s[0:1], 96   ; ws
  s_lshl_b32 s3, s2, 8
  v_add_u32 v1, s3, v0            ; o = b*1024 + p*512 + n
  v_lshrrev_b32 v2, 10, v1        ; b
  v_bfe_u32 v3, v1, 9, 1          ; p
  v_and_b32 v4, 511, v1           ; n
  v_lshlrev_b32 v5, 18, v3
  v_lshl_add_u32 v5, v2, 11, v5
  v_lshl_add_u32 v5, v4, 2, v5
  v_lshlrev_b32 v6, 1, v1
  s_waitcnt lgkmcnt(0)""")
    srd(a, 16, 4, 5, 8192 * 2)
    srd(a, 24, 12, 13, WS_SIZE)
    for ks in range(16):
        a(f"""  s_mov_b32 s30, {WS_POUT + ks*16384:#x}
  buffer_load_dword v{16+ks}, v5, s[24:27], s30 offen""")
    a("  s_waitcnt vmcnt(0)")
    for st in (1, 2, 4, 8):
        for i in range(0, 16, 2 * st):
            a(f"  v_add_f32 v{16+i}, v{16+i}, v{16+i+st}")
    a(f"""  v_cvt_pk_bf16_f32 v16, v16, v16
  buffer_store_short v16, v6, s[16:19], 0 offen
L_f_end:
  s_endpgm""")
    return name, 40

def gen(a, opts):
    TAIL = int(opts.get('tail','1'))
    STAMP = int(opts.get("stamp", "0"))
    def stamp(idx):
        if not STAMP:
            return
        a(f"""  s_memrealtime s[90:91]
  s_waitcnt lgkmcnt(0)
  s_mov_b32 s{92 if False else 88}, s90
  v_writelane_b32 v{91}, s90, {idx}""")
        if idx == 0:
            a(f"""  s_not_b32 s90, s90
  v_writelane_b32 v91, s90, 10""")
    name = "attn_kernel"
    NIT = 16
    ldflags = opts.get("ldflags", "nt")
    depth = 2
    PSLEEP = int(opts.get("psleep", "1"))
    SPIN = int(opts.get("spin", "400000"))
    Q0 = 4; O0 = 20; S0 = 52; S1 = 56; P0 = 60; A0 = 64
    MRUN = 76; MC = 77; L = 78; T0 = 79; T1 = 80; MX = 81; AL = 82
    NR = 83; GR = 84; VQ = 85; E0 = 86; E1 = 87; E2 = 88; LANE = 89; VZ = 90; GRB = 85; CADDR = 92; ONE = 93
    KV0 = 96
    nvgpr = KV0 + 64 * depth
    STEP = 8192 * 8
    W0 = 20; X0 = 36; B0 = 44; D0 = 52
    a(f""".globl {name}
.p2align 8
.type {name},@function
{name}:
  s_cmp_ge_u32 s2, 256
  s_cbranch_scc1 L_end
  s_load_dwordx8 s[4:11], s[0:1], 0     ; A_x, A_k, A_v, A_wq
  s_load_dwordx8 s[72:79], s[0:1], 32   ; A_wo, B_x, B_k, B_v
  s_load_dwordx8 s[80:87], s[0:1], 64
  s_load_dwordx2 s[12:13], s[0:1], 96   ; ws
  v_and_b32 v{LANE}, 63, v0
  v_lshrrev_b32 v3, 6, v0
  v_and_b32 v{NR}, 15, v{LANE}          ; n / h
  v_lshrrev_b32 v{GR}, 4, v{LANE}       ; g
  v_readfirstlane_b32 s30, v3
  s_and_b32 s29, s2, 7            ; hkv
  s_lshr_b32 s28, s2, 7           ; p
  s_lshr_b32 s47, s2, 3
  s_and_b32 s47, s47, 15          ; mem
  s_lshl_b32 s68, s28, 3
  s_add_u32 s68, s68, s29
  s_lshl_b32 s89, s68, 4
  s_add_u32 s89, s89, s47         ; grp*16+mem
  s_lshr_b32 s46, s47, 1          ; b
  s_and_b32 s43, s47, 1           ; split
{'' if TAIL else '''  s_lshl_b32 s89, s28, 6
  s_lshl_b32 s31, s46, 3
  s_add_u32 s89, s89, s31
  s_add_u32 s89, s89, s29
  s_lshl_b32 s89, s89, 1
  s_add_u32 s89, s89, s43'''}
  s_mov_b32 s40, {SEL_LO:#x}
  s_mov_b32 s41, {SEL_HI:#x}
  s_mov_b32 s42, {C_BITS:#x}
  v_lshlrev_b32 v1, 8, v{NR}
  v_lshl_add_u32 v1, v{GR}, 4, v1
  v_lshlrev_b32 v2, 10, v{GR}
  v_lshl_add_u32 v2, v{NR}, 4, v2  ; voffV = g*1024 + n*16
  v_lshlrev_b32 v{E0}, 16, v{GR}
  v_lshl_add_u32 v{E0}, v{NR}, 4, v{E0}   ; voffW = g*65536 + n*16
  v_lshlrev_b32 v{E1}, 4, v{GR}           ; voffX = g*16
  v_mov_b32 v{VZ}, 0
  s_waitcnt lgkmcnt(0)
  s_cmp_eq_u32 s28, 0
  s_cselect_b32 s4, s4, s74       ; x
  s_cselect_b32 s5, s5, s75
  s_cselect_b32 s6, s6, s76       ; k
  s_cselect_b32 s7, s7, s77
  s_cselect_b32 s8, s8, s78       ; v
  s_cselect_b32 s9, s9, s79
  s_cselect_b32 s10, s10, s80     ; wq
  s_cselect_b32 s11, s11, s81
  s_cselect_b32 s72, s72, s82     ; wo
  s_cselect_b32 s73, s73, s83""")
    srd(a, 48, 10, 11, 512 * 4096 * 2)
    srd(a, 52, 4, 5, 8192)
    srd(a, 16, 6, 7, 0x8000000)
    srd(a, 20, 8, 9, 0x8000000)
    srd(a, 24, 12, 13, WS_SIZE)
    srd(a, 56, 72, 73, 4096 * 512 * 2)
    srd(a, 60, 84, 85, 8192 * 2)
    srd(a, 64, 86, 87, 256)
    stamp(0)
    a(f"""  ; K/V byte base = (b*8+hkv)*2MiB + split*1MiB
  s_lshl_b32 s71, s46, 3
  s_add_u32 s71, s71, s29
  s_lshl_b32 s71, s71, 21
  s_lshl_b32 s34, s43, 20
  s_add_u32 s71, s71, s34""")

    ROT = int(opts.get('rot', '0'))
    if ROT:
        a(f"""  s_mul_i32 s45, s2, {ROT}
  s_and_b32 s45, s45, 127""")
    def setaddr(tile_sreg):
        if ROT:
            a(f"""  s_add_u32 s33, {tile_sreg}, s45
  s_and_b32 s33, s33, 127
  s_lshl_b32 s33, s33, 13
  s_add_u32 s33, s33, s71
  s_add_u32 s34, s33, 4096""")
            return
        a(f"""  s_lshl_b32 s33, {tile_sreg}, 13
  s_add_u32 s33, s33, s71
  s_add_u32 s34, s33, 4096""")
    def kloads(st):
        K0 = KV0 + 64 * st
        for t in range(2):
            for j in range(4):
                r = K0 + (t * 4 + j) * 4
                a(f"  buffer_load_dwordx4 v[{r}:{r+3}], v1, s[16:19], s{33+t} offen offset:{j*64} {ldflags}")
    def vloads(st):
        V0 = KV0 + 64 * st + 32
        for i in range(8):
            r = V0 + i * 4
            a(f"  buffer_load_dwordx4 v[{r}:{r+3}], v2, s[20:23], s{33+(i>>2)} offen offset:{(i&3)*256} {ldflags}")
    def grab():
        a(f"""  s_mov_b64 exec, 1
  ds_add_rtn_u32 v{GRB}, v{CADDR}, v{ONE}
  s_mov_b64 exec, -1""")
    def grab_read(sreg):
        a(f"""  s_waitcnt lgkmcnt(0)
  v_readfirstlane_b32 {sreg}, v{GRB}""")

    for i in range(16):
        a(f"  v_mov_b32 v{Q0+i}, 0")
    a(f"""  v_mov_b32 v{CADDR}, {L_R3+16}
  v_mov_b32 v{ONE}, 1
  s_lshl_b32 s31, s28, 16
  s_lshl_b32 s32, s46, 13
  s_add_u32 s31, s31, s32
  s_lshl_b32 s32, s29, 10
  s_add_u32 s31, s31, s32
  v_cmp_gt_u32 vcc, 4, v{NR}
  s_and_saveexec_b64 s[36:37], vcc""")
    for j in range(4):
        a(f"  buffer_load_dwordx4 v[{Q0+4*j}:{Q0+4*j+3}], v1, s[24:27], s31 offen offset:{j*64}")
    a(f"""  s_mov_b64 exec, s[36:37]
  s_mov_b32 s35, s30""")
    setaddr("s35")
    kloads(0); vloads(0)
    a("  s_add_u32 s35, s30, 8")
    setaddr("s35")
    kloads(1); vloads(1)
    a(f"""  v_mov_b32 v{GRB}, 16
  s_cmp_lg_u32 s30, 0
  s_cbranch_scc1 L_noinit
  s_mov_b64 exec, 1
  ds_write_b32 v{CADDR}, v{GRB}
  s_mov_b64 exec, -1
L_noinit:""")
    for i in range(32):
        a(f"  v_mov_b32 v{O0+i}, 0")
    a(f"""  v_mov_b32 v{MRUN}, 0xff800000
  v_mov_b32 v{MC}, 0xff800000
  v_mov_b32 v{L}, 0
  s_waitcnt lgkmcnt(0)
  s_barrier""")
    stamp(4)

    def body(st, issue, wk, wv, tag):
        K0 = KV0 + 64 * st
        V0 = K0 + 32
        a(f"  s_waitcnt vmcnt({wk})")
        for t in range(2):
            sreg = S0 if t == 0 else S1
            for j in range(4):
                r = K0 + (t * 4 + j) * 4
                c = "0" if j == 0 else f"v[{sreg}:{sreg+3}]"
                a(f"  v_mfma_f32_16x16x32_bf16 v[{sreg}:{sreg+3}], v[{r}:{r+3}], v[{Q0+4*j}:{Q0+4*j+3}], {c}")
        if issue:
            setaddr("s35")
            kloads(st)
            grab_read("s44")
        else:
            a("  s_nop 7")
        a(f"""  s_nop 1
  v_max3_f32 v{MX}, v{S0}, v{S0+1}, v{S0+2}
  v_max3_f32 v{MX}, v{MX}, v{S0+3}, v{S1}
  v_max3_f32 v{MX}, v{MX}, v{S1+1}, v{S1+2}
  v_max_f32 v{MX}, v{MX}, v{S1+3}
  v_cmp_gt_f32 vcc, v{MX}, v{MRUN}
  s_cbranch_vccz L_fast_{tag}
  v_mov_b32 v{T0}, v{MX}
  s_nop 1
  v_permlane16_swap_b32 v{MX}, v{T0}
  v_max_f32 v{MX}, v{MX}, v{T0}
  v_mov_b32 v{T0}, v{MX}
  s_nop 1
  v_permlane32_swap_b32 v{MX}, v{T0}
  v_max_f32 v{MX}, v{MX}, v{T0}
  v_max_f32 v{MX}, v{MX}, v{MRUN}      ; m_new
  v_sub_f32 v{T0}, v{MRUN}, v{MX}
  v_mul_f32 v{T0}, s42, v{T0}
  v_exp_f32 v{AL}, v{T0}
  v_mov_b32 v{MRUN}, v{MX}
  v_mul_f32 v{MC}, s42, v{MX}
  v_mul_f32 v{L}, v{L}, v{AL}""")
        for i in range(32):
            a(f"  v_mul_f32 v{O0+i}, v{O0+i}, v{AL}")
        a(f"L_fast_{tag}:")
        for i in range(8):
            a(f"  v_fma_f32 v{S0+i}, v{S0+i}, s42, -v{MC}")
        for i in range(8):
            a(f"  v_exp_f32 v{S0+i}, v{S0+i}")
        a(f"""  s_nop 0
  v_add_f32 v{T0}, v{S0}, v{S0+1}
  v_add_f32 v{T1}, v{S0+2}, v{S0+3}
  v_add_f32 v{L}, v{L}, v{T0}
  v_add_f32 v{L}, v{L}, v{T1}
  v_add_f32 v{T0}, v{S0+4}, v{S0+5}
  v_add_f32 v{T1}, v{S0+6}, v{S0+7}
  v_add_f32 v{L}, v{L}, v{T0}
  v_add_f32 v{L}, v{L}, v{T1}""")
        for q in range(4):
            a(f"  v_cvt_pk_bf16_f32 v{P0+q}, v{S0+2*q}, v{S0+2*q+1}")
        a(f"  s_waitcnt vmcnt({wv})")
        def perms(e):
            sel = "s40" if (e & 1) == 0 else "s41"
            base = A0 + 4 * (e % 3)
            for q in range(4):
                lo = V0 + 4 * (2 * q) + (e >> 1)
                hi = V0 + 4 * (2 * q + 1) + (e >> 1)
                a(f"  v_perm_b32 v{base+q}, v{hi}, v{lo}, {sel}")
        def pv(e):
            base = A0 + 4 * (e % 3)
            o = O0 + 4 * e
            a(f"  v_mfma_f32_16x16x32_bf16 v[{o}:{o+3}], v[{base}:{base+3}], v[{P0}:{P0+3}], v[{o}:{o+3}]")
        perms(0)
        for e in range(8):
            if e + 1 < 8:
                perms(e + 1)
            else:
                a("  s_nop 1")
            pv(e)
        if issue:
            vloads(st)

    a("L_first_grab:")
    grab(); grab_read("s35")
    a("L_a_loop:")
    for st in range(2):
        a(f"""  s_cmp_ge_u32 s35, 128
  s_cbranch_scc1 L_drain_{st}""")
        grab()
        body(st, True, 24, 24, f"m{st}")
        a("  s_mov_b32 s35, s44")
    a("  s_branch L_a_loop")
    for st in range(2):
        a(f"L_drain_{st}:")
        body(st, False, 24, 16, f"d{st}a")
        body(1 - st, False, 8, 0, f"d{st}b")
        a("  s_branch L_loop_done")
    a("L_loop_done:")
    stamp(5)
    WOR = KV0
    DO = KV0 + 16
    a(f"""  ; wo loads: rows hkv*512 + ksl*256 + w*32 + g*8 + i ; cols slab*64 + n*4 ; ksl = mem>>3, slab = mem&7
  v_lshlrev_b32 v{E0}, 13, v{GR}
  v_lshl_add_u32 v{E0}, v{NR}, 3, v{E0}    ; g*8192 + n*8
  s_lshr_b32 s69, s47, 3          ; ksl
  s_and_b32 s70, s47, 7           ; slab
  s_lshl_b32 s31, s29, 19         ; hkv*512*1024
  s_lshl_b32 s32, s69, 18
  s_add_u32 s31, s31, s32
  s_lshl_b32 s32, s30, 15
  s_add_u32 s31, s31, s32
  s_lshl_b32 s32, s70, 7
  s_add_u32 s31, s31, s32
  s_add_u32 s32, s31, 4096""")
    for i in range(8):
        a(f"  buffer_load_dwordx2 v[{WOR+2*i}:{WOR+2*i+1}], v{E0}, s[56:59], s{31+(i>>2)} offen offset:{(i&3)*1024}")
    a(f"""  s_nop 3
  ; vaddr = w*2048 + h*512 + g*128
  v_lshlrev_b32 v{E0}, 11, v3
  v_lshl_add_u32 v{E0}, v{NR}, 9, v{E0}
  v_lshl_add_u32 v{E0}, v{GR}, 7, v{E0}
  v_lshlrev_b32 v{E1}, 6, v3
  v_lshl_add_u32 v{E1}, v{NR}, 4, v{E1}
  v_lshl_add_u32 v{E1}, v{GR}, 2, v{E1}
  v_lshlrev_b32 v{E2}, 4, v3
  v_lshl_add_u32 v{E2}, v{NR}, 2, v{E2}
  v_cmp_gt_u32 vcc, 4, v{NR}
  s_and_saveexec_b64 s[36:37], vcc""")
    for e in range(8):
        for r in range(4):
            a(f"  ds_write_b32 v{E0}, v{O0+4*e+r} offset:{r*32+e*4}")
    a(f"""  ds_write_b32 v{E1}, v{L} offset:16384
  ds_write_b32 v{E2}, v{MRUN} offset:16896
  s_mov_b64 exec, s[36:37]
  s_waitcnt lgkmcnt(0)
  s_barrier
  v_lshrrev_b32 v4, 7, v0         ; h
  v_lshlrev_b32 v5, 2, v4         ; h*4
  v_lshlrev_b32 v6, 4, v4         ; h*16
  v_lshlrev_b32 v7, 2, v0         ; t*4 = h*512+dim*4""")
    for w in range(8):
        a(f"  ds_read_b32 v{20+w}, v5 offset:{16896+w*16}")
    for w in range(8):
        a(f"  ds_read_b128 v[{32+4*w}:{35+4*w}], v6 offset:{16384+w*64}")
    for w in range(8):
        a(f"  ds_read_b32 v{64+w}, v7 offset:{w*2048}")
    a(f"""  s_waitcnt lgkmcnt(0)
  v_max3_f32 v8, v20, v21, v22
  v_max3_f32 v8, v8, v23, v24
  v_max3_f32 v8, v8, v25, v26
  v_max_f32 v8, v8, v27""")
    for w in range(8):
        a(f"  v_sub_f32 v{20+w}, v{20+w}, v8")
    for w in range(8):
        a(f"  v_mul_f32 v{20+w}, s42, v{20+w}")
    for w in range(8):
        a(f"  v_exp_f32 v{20+w}, v{20+w}")
    a("""  s_nop 0
  v_mov_b32 v9, 0
  v_mov_b32 v10, 0""")
    for w in range(8):
        b = 32 + 4 * w
        a(f"""  v_add_f32 v{b}, v{b}, v{b+1}
  v_add_f32 v{b+2}, v{b+2}, v{b+3}
  v_add_f32 v{b}, v{b}, v{b+2}
  v_fmac_f32 v9, v{20+w}, v{b}
  v_fmac_f32 v10, v{20+w}, v{64+w}""")
    a(f"""  ; store O: WS_PO + wg*2048 + t*4
  s_lshl_b32 s31, s89, 11
  s_add_u32 s31, s31, {WS_PO:#x}
  buffer_store_dword v10, v7, s[24:27], s31 offen sc1
  v_and_b32 v11, 127, v0
  v_cmp_eq_u32 vcc, 0, v11
  v_lshlrev_b32 v12, 3, v4
  s_lshl_b32 s31, s89, 5
  s_add_u32 s31, s31, {WS_PML:#x}
  s_and_saveexec_b64 s[36:37], vcc
  buffer_store_dwordx2 v[8:9], v12, s[24:27], s31 offen sc1
  s_mov_b64 exec, s[36:37]
{'' if TAIL else '  s_branch L_fin'}
  s_waitcnt vmcnt(0)
  s_barrier""")
    stamp(6)
    a(f"""  s_cmp_lg_u32 s30, 0
  s_cbranch_scc1 L_p_wait
  s_lshl_b32 s31, s68, 8
  s_add_u32 s31, s31, {WS_CNT + 4096:#x}          ; S2 counter
  v_mov_b32 v{E1}, 1
  s_mov_b64 s[36:37], exec
  s_mov_b64 exec, 1
  buffer_atomic_add v{E1}, v{VZ}, s[24:27], s31 offen sc1
  s_mov_b32 s38, {SPIN}
L_p_poll:
  buffer_load_dword v{E1}, v{VZ}, s[24:27], s31 offen sc1
  s_waitcnt vmcnt(0)
  v_readfirstlane_b32 s39, v{E1}
  s_cmp_ge_u32 s39, 16
  s_cbranch_scc1 L_p_done
  s_sleep {PSLEEP}
  s_sub_u32 s38, s38, 1
  s_cmp_lg_u32 s38, 0
  s_cbranch_scc1 L_p_poll
L_p_done:
  s_mov_b64 exec, s[36:37]""")
    stamp(7)
    a(f"""L_p_wait:
  s_barrier
  v_lshrrev_b32 v7, 5, v{LANE}
  v_and_b32 v8, 31, v{LANE}
  v_lshlrev_b32 v9, 9, v7
  v_lshl_add_u32 v9, v8, 4, v9
  v_lshlrev_b32 v10, 3, v7         ; hi*8
  s_lshl_b32 s33, s68, 4
  s_lshl_b32 s34, s30, 1
  s_add_u32 s33, s33, s34          ; grp*16 + b'*2
  s_lshl_b32 s36, s33, 11
  s_lshl_b32 s37, s69, 10
  s_add_u32 s36, s36, s37
  s_add_u32 s36, s36, {WS_PO:#x}
  s_lshl_b32 s38, s33, 5
  s_lshl_b32 s37, s69, 4
  s_add_u32 s38, s38, s37
  s_add_u32 s38, s38, {WS_PML:#x}
  buffer_load_dwordx4 v[32:35], v9, s[24:27], s36 offen sc1
  buffer_load_dwordx4 v[36:39], v9, s[24:27], s36 offen offset:2048 sc1
  buffer_load_dwordx2 v[40:41], v10, s[24:27], s38 offen sc1
  buffer_load_dwordx2 v[42:43], v10, s[24:27], s38 offen offset:32 sc1""")
    for e in range(4):
        sel = "s40" if (e & 1) == 0 else "s41"
        for q in range(4):
            lo = WOR + 2 * (2 * q) + (e >> 1)
            hi = WOR + 2 * (2 * q + 1) + (e >> 1)
            a(f"  v_perm_b32 v{56+4*e+q}, v{hi}, v{lo}, {sel}")
    a(f"""  s_waitcnt vmcnt(0)
  v_max_f32 v44, v40, v42
  v_sub_f32 v40, v40, v44
  v_sub_f32 v42, v42, v44
  v_mul_f32 v40, s42, v40
  v_mul_f32 v42, s42, v42
  v_exp_f32 v40, v40
  v_exp_f32 v42, v42
  s_nop 0
  v_mul_f32 v45, v40, v41
  v_fmac_f32 v45, v42, v43
  v_rcp_f32 v45, v45
  s_nop 0
  v_mul_f32 v40, v40, v45
  v_mul_f32 v42, v42, v45""")
    for i in range(4):
        a(f"""  v_mul_f32 v{32+i}, v{32+i}, v40
  v_fmac_f32 v{32+i}, v{36+i}, v42""")
    a(f"""  v_cvt_pk_bf16_f32 v32, v32, v33
  v_cvt_pk_bf16_f32 v33, v34, v35
  v_lshlrev_b32 v11, 9, v3
  v_lshl_add_u32 v11, v{LANE}, 3, v11     ; b'*512 + lane*8
  ds_write_b64 v11, v[32:33] offset:{L_R1}
  s_waitcnt lgkmcnt(0)
  s_barrier
  v_lshlrev_b32 v11, 9, v{NR}
  v_lshl_add_u32 v11, v3, 6, v11
  v_lshl_add_u32 v11, v{GR}, 4, v11       ; n*512 + w*64 + g*16
  ds_read_b128 v[48:51], v11 offset:{L_R1}
  s_waitcnt lgkmcnt(0)
  s_nop 1""")
    for e in range(4):
        a(f"  v_mfma_f32_16x16x32_bf16 v[{DO+4*e}:{DO+4*e+3}], v[48:51], v[{56+4*e}:{59+4*e}], 0")
    a(f"""  v_lshlrev_b32 v8, 10, v{GR}
  v_lshl_add_u32 v8, v{NR}, 4, v8
  v_lshl_add_u32 v8, v3, 11, v8    ; w*2048 + g*1024 + n*16
  v_cmp_gt_u32 vcc, 32, v{LANE}
  s_nop 7
  s_nop 3
  s_and_saveexec_b64 s[36:37], vcc""")
    for e in range(4):
        for r in range(4):
            a(f"  ds_write_b32 v8, v{DO+4*e+r} offset:{L_R2+r*256+e*4}")
    a(f"""  s_mov_b64 exec, s[36:37]
  s_waitcnt lgkmcnt(0)
  s_barrier
  v_lshlrev_b32 v9, 2, v0""")
    for w in range(8):
        a(f"  ds_read_b32 v{16+w}, v9 offset:{L_R2+w*2048}")
    a(f"""  s_waitcnt lgkmcnt(0)
  v_add_f32 v16, v16, v17
  v_add_f32 v18, v18, v19
  v_add_f32 v20, v20, v21
  v_add_f32 v22, v22, v23
  v_add_f32 v16, v16, v18
  v_add_f32 v20, v20, v22
  v_add_f32 v16, v16, v20
  s_lshl_b32 s33, s28, 3
  s_add_u32 s33, s33, s70          ; p*8+slab
  s_lshl_b32 s34, s33, 15
  s_add_u32 s34, s34, {WS_POUT:#x}
  s_lshl_b32 s35, s29, 1
  s_add_u32 s35, s35, s69
  s_lshl_b32 s35, s35, 11
  s_add_u32 s35, s35, s34
  buffer_store_dword v16, v9, s[24:27], s35 offen sc1
  s_waitcnt vmcnt(0)
  s_barrier""")
    stamp(8)
    a(f"""
  s_cmp_lg_u32 s30, 0
  s_cbranch_scc1 L_o_wait
  s_lshl_b32 s31, s33, 8
  s_add_u32 s31, s31, {WS_CNT:#x}          ; S3 counter
  v_mov_b32 v{E1}, 1
  s_mov_b64 s[36:37], exec
  s_mov_b64 exec, 1
  buffer_atomic_add v{E1}, v{VZ}, s[24:27], s31 offen sc0 sc1
  s_waitcnt vmcnt(0)
  v_mov_b32 v{E2}, {L_R3}
  ds_write_b32 v{E2}, v{E1}
  s_waitcnt lgkmcnt(0)
  s_mov_b64 exec, s[36:37]
L_o_wait:
  s_barrier
  v_mov_b32 v{E2}, {L_R3}
  ds_read_b32 v{E1}, v{E2}
  s_waitcnt lgkmcnt(0)
  v_readfirstlane_b32 s39, v{E1}
  s_cmp_lg_u32 s39, 15
  s_cbranch_scc1 L_fin
  ; last arriver: reduce the 16 partials of (p,slab)""")
    for ks in range(16):
        a(f"""  s_add_u32 s35, s34, {ks*2048}
  buffer_load_dword v{16+ks}, v9, s[24:27], s35 offen sc1""")
    a(f"""  ; out byte = b'*2048 + p*1024 + slab*128 + col*2
  v_lshlrev_b32 v10, 11, v3
  v_lshl_add_u32 v10, v{LANE}, 1, v10
  s_lshl_b32 s35, s33, 7
  s_waitcnt vmcnt(0)""")
    for st in (1, 2, 4, 8):
        for i in range(0, 16, 2 * st):
            a(f"  v_add_f32 v{16+i}, v{16+i}, v{16+i+st}")
    a(f"""  v_cvt_pk_bf16_f32 v16, v16, v16
  buffer_store_short v16, v10, s[60:63], s35 offen
  s_waitcnt vmcnt(0)
L_fin:""")
    stamp(9)
    if STAMP:
        a(f"""  s_cmp_lg_u32 s30, 0
  s_cbranch_scc1 L_end
  v_lshlrev_b32 v10, 2, v{LANE}
  s_lshl_b32 s35, s2, 6
  s_add_u32 s35, s35, 0x180000
  v_cmp_gt_u32 vcc, 16, v{LANE}
  s_and_saveexec_b64 s[36:37], vcc
  buffer_store_dword v91, v10, s[24:27], s35 offen
  s_mov_b64 exec, s[36:37]""")
        if STAMP == 2:
            a(f"""  v_cmp_gt_u32 vcc, 11, v{LANE}
  s_and_saveexec_b64 s[36:37], vcc
  buffer_atomic_umax v91, v10, s[64:67], 0 offen sc1
  s_mov_b64 exec, s[36:37]""")
    a(f"""L_end:
  s_endpgm""")
    acc = (nvgpr + 3) // 4 * 4
    extra = [gen_qproj(a, int(opts.get('pf','0')))]
    if not TAIL:
        if int(opts.get('merge','0')):
            extra += [gen_oproj(a, True)]
        else:
            extra += [gen_oproj(a), gen_final(a)]
    a('.section .rodata,"a"')
    for qn, qv in extra:
        kernel_desc(a, qn, qv)
    a(f""".p2align 6
.amdhsa_kernel {name}
  .amdhsa_next_free_vgpr {max(nvgpr,160)}
  .amdhsa_next_free_sgpr 96
  .amdhsa_accum_offset {max(acc,160)}
  .amdhsa_group_segment_fixed_size 0
  .amdhsa_kernarg_size 104
  .amdhsa_user_sgpr_count 2
  .amdhsa_user_sgpr_kernarg_segment_ptr 1
  .amdhsa_system_sgpr_workgroup_id_x 1
.end_amdhsa_kernel""")

TAILL = '''
; @launch kernel=oproj_kernel grid=(256,1,1) block=(512,1,1) lds=24576
; @launch kernel=final_kernel grid=(32,1,1) block=(256,1,1) lds=0'''
TAILM = '''
; @launch kernel=oproj_kernel grid=(256,1,1) block=(512,1,1) lds=24576'''
def main():
    out = sys.argv[1] if len(sys.argv) > 1 else f"cdna_kernels/{NAME}.s"
    opts = {}
    for kv in sys.argv[2:]:
        k, v = kv.split("=", 1)
        opts[k] = v
    a = Asm()
    a(f"""; concat_heads gqa decode: fused q-proj -> flash-decode -> combine -> out-proj (16-workgroup group hand-offs)
; @launch kernel=qproj_kernel grid=({384 if int(opts.get('pf','0')) else 128},1,1) block=(512,1,1) lds=16384
; @launch kernel=attn_kernel grid=(256,1,1) block=(512,1,1) lds={LDS_BYTES}{'' if int(opts.get('tail','1')) else (TAILM if int(opts.get('merge','0')) else TAILL)}
.amdgcn_target "amdgcn-amd-amdhsa--gfx950"
.text""")
    gen(a, opts)
    open(out, "w").write(a.text())

main()
```

```python
import math, struct, sys

NAME = "concat_heads__gqa_block_cached__gqa_block_cached__decode"

def f32bits(x):
    return struct.unpack("<I", struct.pack("<f", x))[0]

C_SCALE = (128.0 ** -0.5) * math.log2(math.e)
C_BITS = f32bits(C_SCALE)

WS_Q = 0
WS_PO = 0x40000
WS_PML = 0xC0000
WS_POUT = 0x100000
WS_CNT = 0x1C0000
WS_SIZE = 0x200000

L_R1 = 17408
L_R2 = 25600
L_R3 = 41984
L_Q = 42240
LDS_BYTES = 43264

SEL_LO = 0x05040100
SEL_HI = 0x07060302

class Asm:
    def __init__(self):
        self.lines = []
    def __call__(self, s):
        for ln in s.strip("\n").split("\n"):
            self.lines.append(ln)
    def text(self):
        return "\n".join(self.lines) + "\n"

def srd(a, d, lo, hi, size):
    a(f"""  s_mov_b32 s{d}, s{lo}
  s_and_b32 s{d+1}, s{hi}, 0xffff
  s_mov_b32 s{d+2}, {size:#x}
  s_mov_b32 s{d+3}, 0x00020000""")

def kernel_header(a, name):
    a(f""".globl {name}
.p2align 8
.type {name},@function
{name}:""")

def kernel_desc(a, name, vgpr, sgpr=96):
    acc = (vgpr + 3) // 4 * 4
    a(f""".p2align 6
.amdhsa_kernel {name}
  .amdhsa_next_free_vgpr {vgpr}
  .amdhsa_next_free_sgpr {sgpr}
  .amdhsa_accum_offset {acc}
  .amdhsa_group_segment_fixed_size 0
  .amdhsa_kernarg_size 104
  .amdhsa_user_sgpr_count 2
  .amdhsa_user_sgpr_kernarg_segment_ptr 1
  .amdhsa_system_sgpr_workgroup_id_x 1
.end_amdhsa_kernel""")

def gen_qproj(a, PF=0):
    name = "qproj_kernel"
    kernel_header(a, name)
    a(f"""  s_cmp_ge_u32 s2, 128
  s_cbranch_scc1 {'L_pf' if PF else 'L_q_end'}
  s_load_dwordx2 s[4:5], s[0:1], 0
  s_load_dwordx2 s[6:7], s[0:1], 24
  s_load_dwordx2 s[8:9], s[0:1], 40
  s_load_dwordx2 s[10:11], s[0:1], 64
  s_load_dwordx2 s[12:13], s[0:1], 96
  v_and_b32 v1, 63, v0
  v_lshrrev_b32 v5, 6, v0
  v_and_b32 v2, 15, v1            ; n
  v_lshrrev_b32 v3, 4, v1         ; g
  v_readfirstlane_b32 s30, v5
  s_lshr_b32 s28, s2, 6           ; p
  s_and_b32 s29, s2, 63           ; slab
  s_mov_b32 s40, {SEL_LO:#x}
  s_mov_b32 s41, {SEL_HI:#x}
  v_lshlrev_b32 v6, 16, v3        ; g*65536
  v_lshl_add_u32 v6, v2, 3, v6    ; + n*8  -> voffset W
  v_lshlrev_b32 v7, 10, v2        ; n*1024
  v_lshl_add_u32 v7, v3, 4, v7    ; + g*16 -> voffset x
  s_waitcnt lgkmcnt(0)
  s_cmp_eq_u32 s28, 0
  s_cselect_b32 s4, s4, s8
  s_cselect_b32 s5, s5, s9
  s_cselect_b32 s6, s6, s10
  s_cselect_b32 s7, s7, s11""")
    srd(a, 16, 4, 5, 8192)
    srd(a, 20, 6, 7, 512 * 4096 * 2)
    srd(a, 24, 12, 13, WS_SIZE)
    a(f"""  s_cmp_ge_u32 s2, 32
  s_cbranch_scc1 L_q_nocnt
  s_cmp_lg_u32 s30, 0
  s_cbranch_scc1 L_q_nocnt
  s_lshl_b32 s31, s2, 8
  s_add_u32 s31, s31, {WS_CNT:#x}
  v_mov_b32 v8, 0
  s_mov_b64 exec, 1
  buffer_store_dword v8, v8, s[24:27], s31 offen
  s_mov_b64 exec, -1
L_q_nocnt:""")
    a(f"""  s_lshl_b32 s31, s30, 19
  s_lshl_b32 s32, s29, 7
  s_add_u32 s31, s31, s32
  s_lshl_b32 s33, s30, 7          ; x soffset = w*64*2""")
    for i in range(16):
        a(f"""  s_add_u32 s34, s31, {((i>>3)*32+(i&7))*8192:#x}
  buffer_load_dwordx2 v[{16+2*i}:{17+2*i}], v6, s[20:23], s34 offen""")
    a(f"""  buffer_load_dwordx4 v[48:51], v7, s[16:19], s33 offen
  buffer_load_dwordx4 v[52:55], v7, s[16:19], s33 offen offset:64
  s_waitcnt vmcnt(0)""")
    for grp in range(2):
        wb = 16 + 16 * grp
        for e in range(4):
            sel = "s40" if (e & 1) == 0 else "s41"
            for q in range(4):
                lo = wb + 2 * (2 * q) + (e >> 1)
                hi = wb + 2 * (2 * q + 1) + (e >> 1)
                a(f"  v_perm_b32 v{56+4*e+q}, v{hi}, v{lo}, {sel}")
        a("  s_nop 1")
        for e in range(4):
            c = "0" if grp == 0 else f"v[{72+4*e}:{75+4*e}]"
            a(f"  v_mfma_f32_16x16x32_bf16 v[{72+4*e}:{75+4*e}], v[{48+4*grp}:{51+4*grp}], v[{56+4*e}:{59+4*e}], {c}")
    a(f"""  s_nop 7
  s_nop 7
  v_lshlrev_b32 v8, 10, v3        ; g*1024
  v_lshl_add_u32 v8, v2, 4, v8    ; + n*16
  v_lshl_add_u32 v8, v5, 11, v8   ; + w*2048
  v_cmp_gt_u32 vcc, 32, v1
  s_and_saveexec_b64 s[36:37], vcc""")
    for e in range(4):
        for r in range(4):
            a(f"  ds_write_b32 v8, v{72+4*e+r} offset:{r*256+e*4}")
    a(f"""  s_mov_b64 exec, s[36:37]
  s_waitcnt lgkmcnt(0)
  s_barrier
  v_lshlrev_b32 v9, 2, v0         ; t*4 = b*256 + col*4""")
    for w in range(8):
        a(f"  ds_read_b32 v{16+w}, v9 offset:{w*2048}")
    a(f"""  s_waitcnt lgkmcnt(0)
  v_add_f32 v16, v16, v17
  v_add_f32 v18, v18, v19
  v_add_f32 v20, v20, v21
  v_add_f32 v22, v22, v23
  v_add_f32 v16, v16, v18
  v_add_f32 v20, v20, v22
  v_add_f32 v16, v16, v20
  v_cvt_pk_bf16_f32 v16, v16, v16
  v_lshlrev_b32 v10, 13, v5
  v_lshl_add_u32 v10, v1, 1, v10
  s_lshl_b32 s34, s28, 16
  s_lshl_b32 s35, s29, 7
  s_add_u32 s34, s34, s35
  buffer_store_short v16, v10, s[24:27], s34 offen
L_q_end:
  s_endpgm""")
    if PF:
        a(f"""L_pf:
  s_cmp_ge_u32 s2, 384
  s_cbranch_scc1 L_q_end
  s_load_dwordx4 s[4:7], s[0:1], 8      ; A_k, A_v
  s_load_dwordx4 s[8:11], s[0:1], 48    ; B_k, B_v
  s_sub_u32 s3, s2, 128
  s_and_b32 s29, s3, 7            ; hkv
  s_lshr_b32 s28, s3, 7           ; p
  s_lshr_b32 s47, s3, 3
  s_and_b32 s47, s47, 15          ; mem
  s_lshr_b32 s46, s47, 1          ; b
  s_and_b32 s43, s47, 1           ; split
  s_lshl_b32 s31, s46, 3
  s_add_u32 s31, s31, s29
  s_lshl_b32 s31, s31, 21
  s_lshl_b32 s32, s43, 20
  s_add_u32 s31, s31, s32
  v_lshlrev_b32 v1, 4, v0
  s_waitcnt lgkmcnt(0)
  s_cmp_eq_u32 s28, 0
  s_cselect_b32 s4, s4, s8
  s_cselect_b32 s5, s5, s9
  s_cselect_b32 s6, s6, s10
  s_cselect_b32 s7, s7, s11""")
        srd(a, 16, 4, 5, 0x8000000)
        srd(a, 20, 6, 7, 0x8000000)
        for i in range(PF):
            a(f"""  s_add_u32 s32, s31, {i*8192}
  buffer_load_dwordx4 v[{8+8*(i%8)}:{11+8*(i%8)}], v1, s[16:19], s32 offen
  buffer_load_dwordx4 v[{12+8*(i%8)}:{15+8*(i%8)}], v1, s[20:23], s32 offen""")
            if i % 8 == 7:
                a("  s_waitcnt vmcnt(0)")
        a("""  s_waitcnt vmcnt(0)
  s_endpgm""")
    return name, 96

def gen_oproj(a, merge=False):
    name = "oproj_kernel"
    TAILA = f"""  ; POUT addr = WS_POUT + ((p*16+ks)*8 + b)*2048 + (slab*64+col)*4
  v_lshlrev_b32 v10, 11, v5
  v_lshl_add_u32 v10, v1, 2, v10
  s_lshl_b32 s33, s28, 4
  s_add_u32 s33, s33, s29
  s_lshl_b32 s33, s33, 14
  s_lshl_b32 s34, s43, 8
  s_add_u32 s33, s33, s34
  s_add_u32 s33, s33, {WS_POUT:#x}
  buffer_store_dword v16, v10, s[24:27], s33 offen"""
    sums = "\n".join(f"  v_add_f32 v{16+i}, v{16+i}, v{16+i+st}" for st in (1, 2, 4, 8) for i in range(0, 16, 2 * st))
    lds_ = "\n".join(f"  s_add_u32 s35, s34, {ks*2048}\n  buffer_load_dword v{16+ks}, v9, s[24:27], s35 offen sc1" for ks in range(16))
    TAILB = f"""  ; POUT byte = WS_POUT + ((p*8+slab)*16 + ks)*2048 + t*4
  s_lshl_b32 s33, s28, 3
  s_add_u32 s33, s33, s43          ; p*8+slab
  s_lshl_b32 s34, s33, 15
  s_add_u32 s34, s34, {WS_POUT:#x}
  s_lshl_b32 s35, s29, 11
  s_add_u32 s35, s35, s34
  buffer_store_dword v16, v9, s[24:27], s35 offen sc1
  s_waitcnt vmcnt(0)
  s_barrier
  s_cmp_lg_u32 s30, 0
  s_cbranch_scc1 L_oo_wait
  s_lshl_b32 s31, s33, 8
  s_add_u32 s31, s31, {WS_CNT:#x}
  v_mov_b32 v12, 1
  v_mov_b32 v13, 0
  s_mov_b64 exec, 1
  buffer_atomic_add v12, v13, s[24:27], s31 offen sc0 sc1
  s_waitcnt vmcnt(0)
  ds_write_b32 v13, v12
  s_waitcnt lgkmcnt(0)
  s_mov_b64 exec, -1
L_oo_wait:
  s_barrier
  v_mov_b32 v13, 0
  ds_read_b32 v12, v13
  s_waitcnt lgkmcnt(0)
  v_readfirstlane_b32 s39, v12
  s_cmp_lg_u32 s39, 15
  s_cbranch_scc1 L_o_end
{lds_}
  v_lshlrev_b32 v10, 11, v5
  v_lshl_add_u32 v10, v1, 1, v10
  s_lshl_b32 s35, s33, 7
  s_waitcnt vmcnt(0)
{sums}
  v_cvt_pk_bf16_f32 v16, v16, v16
  buffer_store_short v16, v10, s[60:63], s35 offen"""
    kernel_header(a, name)
    a(f"""  s_cmp_ge_u32 s2, 256
  s_cbranch_scc1 L_o_end
  s_load_dwordx2 s[4:5], s[0:1], 32     ; A_wo
  s_load_dwordx2 s[8:9], s[0:1], 72     ; B_wo
  s_load_dwordx2 s[12:13], s[0:1], 96   ; ws
  s_load_dwordx4 s[84:87], s[0:1], 80
  v_and_b32 v1, 63, v0
  v_lshrrev_b32 v5, 6, v0
  v_and_b32 v2, 15, v1            ; n
  v_lshrrev_b32 v3, 4, v1         ; g
  v_readfirstlane_b32 s30, v5
  s_lshr_b32 s28, s2, 7           ; p
  s_lshr_b32 s29, s2, 3
  s_and_b32 s29, s29, 15          ; ks
  s_and_b32 s43, s2, 7            ; slab
  s_mov_b32 s40, {SEL_LO:#x}
  s_mov_b32 s41, {SEL_HI:#x}
  s_mov_b32 s42, {C_BITS:#x}
  v_lshlrev_b32 v6, 13, v3        ; g*8192
  v_lshl_add_u32 v6, v2, 3, v6    ; + n*8
  s_waitcnt lgkmcnt(0)
  s_cmp_eq_u32 s28, 0
  s_cselect_b32 s4, s4, s8
  s_cselect_b32 s5, s5, s9""")
    srd(a, 20, 4, 5, 4096 * 512 * 2)
    srd(a, 24, 12, 13, WS_SIZE)
    srd(a, 60, 84, 85, 8192 * 2)
    srd(a, 64, 86, 87, 256)
    a(f"""  ; wo soffset = (ks*256 + w*32)*1024 + slab*128
  s_lshl_b32 s31, s29, 18
  s_lshl_b32 s32, s30, 15
  s_add_u32 s31, s31, s32
  s_lshl_b32 s32, s43, 7
  s_add_u32 s31, s31, s32
  s_add_u32 s32, s31, 4096""")
    for i in range(8):
        a(f"  buffer_load_dwordx2 v[{16+2*i}:{17+2*i}], v6, s[20:23], s{31+(i>>2)} offen offset:{(i&3)*1024}")
    a(f"""  v_lshrrev_b32 v7, 5, v1         ; hi
  v_and_b32 v8, 31, v1
  v_lshlrev_b32 v9, 9, v7         ; hi*512
  v_lshl_add_u32 v9, v8, 4, v9
  v_lshlrev_b32 v10, 3, v7        ; hi*8
  s_lshl_b32 s33, s28, 6
  s_lshl_b32 s34, s30, 3
  s_add_u32 s33, s33, s34
  s_lshr_b32 s34, s29, 1
  s_add_u32 s33, s33, s34         ; unit
  s_and_b32 s35, s29, 1           ; ks&1
  s_lshl_b32 s36, s33, 12         ; unit*2*2048
  s_lshl_b32 s37, s35, 10         ; (ks&1)*2*512
  s_add_u32 s36, s36, s37
  s_add_u32 s36, s36, {WS_PO:#x}
  s_lshl_b32 s38, s33, 6          ; unit*2*32
  s_lshl_b32 s37, s35, 4
  s_add_u32 s38, s38, s37
  s_add_u32 s38, s38, {WS_PML:#x}
  buffer_load_dwordx4 v[32:35], v9, s[24:27], s36 offen
  buffer_load_dwordx4 v[36:39], v9, s[24:27], s36 offen offset:2048
  buffer_load_dwordx2 v[40:41], v10, s[24:27], s38 offen
  buffer_load_dwordx2 v[42:43], v10, s[24:27], s38 offen offset:32
  s_waitcnt vmcnt(0)
  v_max_f32 v44, v40, v42
  v_sub_f32 v40, v40, v44
  v_sub_f32 v42, v42, v44
  v_mul_f32 v40, s42, v40
  v_mul_f32 v42, s42, v42
  v_exp_f32 v40, v40
  v_exp_f32 v42, v42
  s_nop 0
  v_mul_f32 v45, v40, v41
  v_fmac_f32 v45, v42, v43
  v_rcp_f32 v45, v45
  s_nop 0
  v_mul_f32 v40, v40, v45
  v_mul_f32 v42, v42, v45""")
    for i in range(4):
        a(f"""  v_mul_f32 v{32+i}, v{32+i}, v40
  v_fmac_f32 v{32+i}, v{36+i}, v42""")
    a(f"""  v_cvt_pk_bf16_f32 v32, v32, v33
  v_cvt_pk_bf16_f32 v33, v34, v35
  v_lshlrev_b32 v11, 9, v5
  v_lshl_add_u32 v11, v1, 3, v11
  ds_write_b64 v11, v[32:33]
  s_waitcnt lgkmcnt(0)
  s_barrier
  v_lshlrev_b32 v11, 9, v2
  v_lshl_add_u32 v11, v5, 6, v11
  v_lshl_add_u32 v11, v3, 4, v11
  ds_read_b128 v[48:51], v11""")
    for e in range(4):
        sel = "s40" if (e & 1) == 0 else "s41"
        for q in range(4):
            lo = 16 + 2 * (2 * q) + (e >> 1)
            hi = 16 + 2 * (2 * q + 1) + (e >> 1)
            a(f"  v_perm_b32 v{56+4*e+q}, v{hi}, v{lo}, {sel}")
    a("  s_waitcnt lgkmcnt(0)")
    a("  s_nop 1")
    for e in range(4):
        a(f"  v_mfma_f32_16x16x32_bf16 v[{72+4*e}:{75+4*e}], v[48:51], v[{56+4*e}:{59+4*e}], 0")
    a(f"""  s_nop 7
  s_nop 7
  v_lshlrev_b32 v8, 10, v3        ; g*1024
  v_lshl_add_u32 v8, v2, 4, v8    ; + n*16
  v_lshl_add_u32 v8, v5, 11, v8   ; + w*2048
  v_cmp_gt_u32 vcc, 32, v1
  s_and_saveexec_b64 s[44:45], vcc""")
    for e in range(4):
        for r in range(4):
            a(f"  ds_write_b32 v8, v{72+4*e+r} offset:{8192+r*256+e*4}")
    a(f"""  s_mov_b64 exec, s[44:45]
  s_waitcnt lgkmcnt(0)
  s_barrier
  v_lshlrev_b32 v9, 2, v0""")
    for w in range(8):
        a(f"  ds_read_b32 v{16+w}, v9 offset:{8192+w*2048}")
    a(f"""  s_waitcnt lgkmcnt(0)
  v_add_f32 v16, v16, v17
  v_add_f32 v18, v18, v19
  v_add_f32 v20, v20, v21
  v_add_f32 v22, v22, v23
  v_add_f32 v16, v16, v18
  v_add_f32 v20, v20, v22
  v_add_f32 v16, v16, v20
{TAILA if not merge else TAILB}
L_o_end:
  s_endpgm""")
    return name, 96

def gen_final(a):
    name = "final_kernel"
    kernel_header(a, name)
    a(f"""  s_cmp_ge_u32 s2, 32
  s_cbranch_scc1 L_f_end
  s_load_dwordx2 s[4:5], s[0:1], 80     ; out
  s_load_dwordx2 s[12:13], s[0:1], 96   ; ws
  s_lshl_b32 s3, s2, 8
  v_add_u32 v1, s3, v0            ; o = b*1024 + p*512 + n
  v_lshrrev_b32 v2, 10, v1        ; b
  v_bfe_u32 v3, v1, 9, 1          ; p
  v_and_b32 v4, 511, v1           ; n
  v_lshlrev_b32 v5, 18, v3
  v_lshl_add_u32 v5, v2, 11, v5
  v_lshl_add_u32 v5, v4, 2, v5
  v_lshlrev_b32 v6, 1, v1
  s_waitcnt lgkmcnt(0)""")
    srd(a, 16, 4, 5, 8192 * 2)
    srd(a, 24, 12, 13, WS_SIZE)
    for ks in range(16):
        a(f"""  s_mov_b32 s30, {WS_POUT + ks*16384:#x}
  buffer_load_dword v{16+ks}, v5, s[24:27], s30 offen""")
    a("  s_waitcnt vmcnt(0)")
    for st in (1, 2, 4, 8):
        for i in range(0, 16, 2 * st):
            a(f"  v_add_f32 v{16+i}, v{16+i}, v{16+i+st}")
    a(f"""  v_cvt_pk_bf16_f32 v16, v16, v16
  buffer_store_short v16, v6, s[16:19], 0 offen
L_f_end:
  s_endpgm""")
    return name, 40

def gen(a, opts):
    TAIL = 1
    GOEARLY = int(opts.get('goearly','1'))
    STAMP = int(opts.get("stamp", "0"))
    def stamp(idx):
        if not STAMP:
            return
        a(f"""  s_memrealtime s[90:91]
  s_waitcnt lgkmcnt(0)
  s_mov_b32 s{92 if False else 88}, s90
  v_writelane_b32 v{91}, s90, {idx}""")
        if idx == 0:
            a(f"""  s_not_b32 s90, s90
  v_writelane_b32 v91, s90, 10""")
    name = NAME + "_kernel"
    NIT = 16
    ldflags = opts.get("ldflags", "nt")
    depth = 2
    PSLEEP = int(opts.get("psleep", "1"))
    SPIN = int(opts.get("spin", "400000"))
    Q0 = 4; O0 = 20; S0 = 52; S1 = 56; P0 = 60; A0 = 64
    MRUN = 76; MC = 77; L = 78; T0 = 79; T1 = 80; MX = 81; AL = 82
    NR = 83; GR = 84; VQ = 85; E0 = 86; E1 = 87; E2 = 88; LANE = 89; VZ = 90; GRB = 85; CADDR = 92; ONE = 93
    KV0 = 96
    nvgpr = KV0 + 64 * depth
    STEP = 8192 * 8
    W0 = 20; X0 = 36; B0 = 44; D0 = 52
    a(f""".globl {name}
.p2align 8
.type {name},@function
{name}:
  s_cmp_ge_u32 s2, 256
  s_cbranch_scc1 L_end
  s_load_dwordx8 s[4:11], s[0:1], 0     ; A_x, A_k, A_v, A_wq
  s_load_dwordx8 s[72:79], s[0:1], 32   ; A_wo, B_x, B_k, B_v
  s_load_dwordx8 s[80:87], s[0:1], 64
  s_load_dwordx2 s[12:13], s[0:1], 96   ; ws
  v_and_b32 v{LANE}, 63, v0
  v_lshrrev_b32 v3, 6, v0
  v_and_b32 v{NR}, 15, v{LANE}          ; n / h
  v_lshrrev_b32 v{GR}, 4, v{LANE}       ; g
  v_readfirstlane_b32 s30, v3
  s_and_b32 s29, s2, 7            ; hkv
  s_lshr_b32 s28, s2, 7           ; p
  s_lshr_b32 s47, s2, 3
  s_and_b32 s47, s47, 15          ; mem
  s_lshl_b32 s68, s28, 3
  s_add_u32 s68, s68, s29
  s_lshl_b32 s89, s68, 4
  s_add_u32 s89, s89, s47         ; grp*16+mem
  s_lshr_b32 s46, s47, 1          ; b
  s_and_b32 s43, s47, 1           ; split
{'' if TAIL else '''  s_lshl_b32 s89, s28, 6
  s_lshl_b32 s31, s46, 3
  s_add_u32 s89, s89, s31
  s_add_u32 s89, s89, s29
  s_lshl_b32 s89, s89, 1
  s_add_u32 s89, s89, s43'''}
  s_mov_b32 s40, {SEL_LO:#x}
  s_mov_b32 s41, {SEL_HI:#x}
  s_mov_b32 s42, {C_BITS:#x}
  v_lshlrev_b32 v1, 8, v{NR}
  v_lshl_add_u32 v1, v{GR}, 4, v1
  v_lshlrev_b32 v2, 10, v{GR}
  v_lshl_add_u32 v2, v{NR}, 4, v2  ; voffV = g*1024 + n*16
  v_lshlrev_b32 v{E0}, 16, v{GR}
  v_lshl_add_u32 v{E0}, v{NR}, 2, v{E0}   ; voffW = g*65536 + n*4
  v_lshlrev_b32 v{E1}, 10, v{NR}
  v_lshl_add_u32 v{E1}, v{GR}, 4, v{E1}   ; voffX = n*1024 + g*16
  v_mov_b32 v{VZ}, 0
  s_waitcnt lgkmcnt(0)
  s_cmp_eq_u32 s28, 0
  s_cselect_b32 s4, s4, s74       ; x
  s_cselect_b32 s5, s5, s75
  s_cselect_b32 s6, s6, s76       ; k
  s_cselect_b32 s7, s7, s77
  s_cselect_b32 s8, s8, s78       ; v
  s_cselect_b32 s9, s9, s79
  s_cselect_b32 s10, s10, s80     ; wq
  s_cselect_b32 s11, s11, s81
  s_cselect_b32 s72, s72, s82     ; wo
  s_cselect_b32 s73, s73, s83""")
    srd(a, 48, 10, 11, 512 * 4096 * 2)
    srd(a, 52, 4, 5, 8192)
    srd(a, 16, 6, 7, 0x8000000)
    srd(a, 20, 8, 9, 0x8000000)
    srd(a, 24, 12, 13, WS_SIZE)
    srd(a, 56, 72, 73, 4096 * 512 * 2)
    srd(a, 60, 84, 85, 8192 * 2)
    srd(a, 64, 86, 87, 256)
    stamp(0)
    a(f"""  ; K/V byte base = (b*8+hkv)*2MiB + split*1MiB
  s_lshl_b32 s71, s46, 3
  s_add_u32 s71, s71, s29
  s_lshl_b32 s71, s71, 21
  s_lshl_b32 s34, s43, 20
  s_add_u32 s71, s71, s34""")

    ROT = int(opts.get('rot', '0'))
    if ROT:
        a(f"""  s_mul_i32 s45, s2, {ROT}
  s_and_b32 s45, s45, 127""")
    def setaddr(tile_sreg):
        if ROT:
            a(f"""  s_add_u32 s33, {tile_sreg}, s45
  s_and_b32 s33, s33, 127
  s_lshl_b32 s33, s33, 13
  s_add_u32 s33, s33, s71
  s_add_u32 s34, s33, 4096""")
            return
        a(f"""  s_lshl_b32 s33, {tile_sreg}, 13
  s_add_u32 s33, s33, s71
  s_add_u32 s34, s33, 4096""")
    def kloads(st):
        K0 = KV0 + 64 * st
        for t in range(2):
            for j in range(4):
                r = K0 + (t * 4 + j) * 4
                a(f"  buffer_load_dwordx4 v[{r}:{r+3}], v1, s[16:19], s{33+t} offen offset:{j*64} {ldflags}")
    def vloads(st):
        V0 = KV0 + 64 * st + 32
        for i in range(8):
            r = V0 + i * 4
            a(f"  buffer_load_dwordx4 v[{r}:{r+3}], v2, s[20:23], s{33+(i>>2)} offen offset:{(i&3)*256} {ldflags}")
    def grab():
        a(f"""  s_mov_b64 exec, 1
  ds_add_rtn_u32 v{GRB}, v{CADDR}, v{ONE}
  s_mov_b64 exec, -1""")
    def grab_read(sreg):
        a(f"""  s_waitcnt lgkmcnt(0)
  v_readfirstlane_b32 {sreg}, v{GRB}""")

    a(f"""  v_mov_b32 v{CADDR}, {L_R3+16}
  v_mov_b32 v{ONE}, 1
  s_or_b32 s31, s2, s30
  s_cmp_lg_u32 s31, 0
  s_cbranch_scc1 L_nozero
  v_lshlrev_b32 v{E2}, 8, v{LANE}
  v_cmp_gt_u32 vcc, 48, v{LANE}
  s_mov_b32 s31, {WS_CNT:#x}
  s_and_saveexec_b64 s[36:37], vcc
  buffer_store_dword v{VZ}, v{E2}, s[24:27], s31 offen sc1
  s_mov_b64 exec, s[36:37]
L_nozero:
  s_lshl_b32 s31, s30, 19         ; w*64*8192
  s_lshl_b32 s32, s29, 10         ; hkv*1024
  s_add_u32 s31, s31, s32
  s_lshl_b32 s32, s47, 6          ; mem*64
  s_add_u32 s31, s31, s32
  s_lshl_b32 s33, s30, 7          ; x soffset""")
    for i in range(16):
        a(f"""  s_add_u32 s34, s31, {((i>>3)*32+(i&7))*8192:#x}
  buffer_load_dword v{W0+i}, v{E0}, s[48:51], s34 offen""")
    a(f"""  buffer_load_dwordx4 v[{X0}:{X0+3}], v{E1}, s[52:55], s33 offen
  buffer_load_dwordx4 v[{X0+4}:{X0+7}], v{E1}, s[52:55], s33 offen offset:64
  s_cmp_eq_u32 s30, 0
  s_cbranch_scc1 L_w0_nopf
  s_sub_u32 s35, s30, 1""")
    setaddr("s35")
    kloads(0); vloads(0)
    a(f"""  s_waitcnt vmcnt(16)
  s_branch L_w_join
L_w0_nopf:
  v_mov_b32 v{GRB}, 14
  s_mov_b64 exec, 1
  ds_write_b32 v{CADDR}, v{GRB}
  ds_write_b32 v{CADDR}, v{VZ} offset:4
  s_mov_b64 exec, -1
  s_waitcnt vmcnt(0)
  s_cmp_lg_u32 s2, 0
  s_cbranch_scc1 L_w_join
  s_mov_b64 exec, 1
  buffer_store_dword v{ONE}, v{VZ}, s[64:67], 0 offen sc1
  s_mov_b64 exec, -1
L_w_join:""")
    stamp(1)
    for g32 in range(2):
        wb = W0 + 8 * g32
        for e in range(2):
            sel = "s40" if e == 0 else "s41"
            for q in range(4):
                a(f"  v_perm_b32 v{B0+4*e+q}, v{wb+2*q+1}, v{wb+2*q}, {sel}")
        a("  s_nop 1")
        for e in range(2):
            c = "0" if g32 == 0 else f"v[{D0+4*e}:{D0+4*e+3}]"
            a(f"  v_mfma_f32_16x16x32_bf16 v[{D0+4*e}:{D0+4*e+3}], v[{X0+4*g32}:{X0+4*g32+3}], v[{B0+4*e}:{B0+4*e+3}], {c}")
    a(f"""  s_nop 7
  s_nop 3
  v_lshlrev_b32 v{E2}, 10, v3          ; w*1024
  v_lshl_add_u32 v{E2}, v{GR}, 9, v{E2}   ; + g*512
  v_lshl_add_u32 v{E2}, v{NR}, 3, v{E2}   ; + n*8
  v_cmp_gt_u32 vcc, 32, v{LANE}
  s_and_saveexec_b64 s[36:37], vcc""")
    for e in range(2):
        for r in range(4):
            a(f"  ds_write_b32 v{E2}, v{D0+4*e+r} offset:{r*128+e*4}")
    a(f"""  s_mov_b64 exec, s[36:37]
  s_waitcnt lgkmcnt(0)
  s_barrier
  s_cmp_lg_u32 s30, 0
  s_cbranch_scc1 L_q_others
  v_lshlrev_b32 v{E2}, 4, v{LANE}""")
    for w in range(8):
        a(f"  ds_read_b128 v[{W0+4*w}:{W0+4*w+3}], v{E2} offset:{w*1024}")
    a("  s_waitcnt lgkmcnt(0)")
    for st in (1, 2, 4):
        for w in range(0, 8, 2 * st):
            for c in range(4):
                a(f"  v_add_f32 v{W0+4*w+c}, v{W0+4*w+c}, v{W0+4*(w+st)+c}")
    GO = "ds_write_b32 v%d, v%d offset:4" % (CADDR, ONE)
    a(f"""  v_cvt_pk_bf16_f32 v{W0}, v{W0}, v{W0+1}
  v_cvt_pk_bf16_f32 v{W0+1}, v{W0+2}, v{W0+3}
  v_lshrrev_b32 v{E2}, 3, v{LANE}
  v_lshlrev_b32 v{E2}, 10, v{E2}
  v_and_b32 v{E1}, 7, v{LANE}
  v_lshl_add_u32 v{E2}, v{E1}, 3, v{E2}
  s_lshl_b32 s31, s68, 13
  s_lshl_b32 s32, s47, 6
  s_add_u32 s31, s31, s32
  buffer_store_dwordx2 v[{W0}:{W0+1}], v{E2}, s[24:27], s31 offen sc1
  s_mov_b64 exec, 1
  s_mov_b32 s38, {SPIN}
L_f_poll:
  buffer_load_dword v{E1}, v{VZ}, s[64:67], 0 offen sc1
  s_waitcnt vmcnt(0)
  v_readfirstlane_b32 s39, v{E1}
  s_cmp_lg_u32 s39, 0
  s_cbranch_scc1 L_f_done
  s_sleep 2
  s_sub_u32 s38, s38, 1
  s_cmp_lg_u32 s38, 0
  s_cbranch_scc1 L_f_poll
L_f_done:""")
    stamp(2)
    a(f"""  s_lshl_b32 s31, s68, 8
  s_add_u32 s31, s31, {WS_CNT + 8192:#x}          ; S1 counter
  buffer_atomic_add v{ONE}, v{VZ}, s[24:27], s31 offen sc1
  {GO if GOEARLY else ""}
  s_mov_b32 s38, {SPIN}
L_q_poll:
  buffer_load_dword v{E1}, v{VZ}, s[24:27], s31 offen sc1
  s_waitcnt vmcnt(0)
  v_readfirstlane_b32 s39, v{E1}
  s_cmp_ge_u32 s39, 16
  s_cbranch_scc1 L_q_done
  s_sleep 2
  s_sub_u32 s38, s38, 1
  s_cmp_lg_u32 s38, 0
  s_cbranch_scc1 L_q_poll
L_q_done:
  s_mov_b64 exec, -1""")
    stamp(3)
    a(f"""  ; wave 0 fetches q[grp][b][512] (1 KB) and puts it into LDS
  s_lshl_b32 s31, s68, 13
  s_lshl_b32 s32, s46, 10
  s_add_u32 s31, s31, s32
  v_lshlrev_b32 v{E2}, 4, v{LANE}
  buffer_load_dwordx4 v[{W0}:{W0+3}], v{E2}, s[24:27], s31 offen sc1
  {"" if GOEARLY else GO}
  s_waitcnt vmcnt(0)
  ds_write_b128 v{E2}, v[{W0}:{W0+3}] offset:{L_Q}
  s_waitcnt lgkmcnt(0)
  s_branch L_q_wait
L_q_others:
  s_mov_b32 s38, {SPIN}
L_go_poll:
  ds_read_b32 v{E1}, v{CADDR} offset:4
  s_waitcnt lgkmcnt(0)
  v_readfirstlane_b32 s39, v{E1}
  s_cmp_lg_u32 s39, 0
  s_cbranch_scc1 L_go_done
  s_sleep 2
  s_sub_u32 s38, s38, 1
  s_cmp_lg_u32 s38, 0
  s_cbranch_scc1 L_go_poll
L_go_done:
  s_add_u32 s35, s30, 6""")
    setaddr("s35")
    kloads(1); vloads(1)
    a(f"""L_q_wait:
  s_barrier""")
    for i in range(16):
        a(f"  v_mov_b32 v{Q0+i}, 0")
    a(f"""  v_cmp_gt_u32 vcc, 4, v{NR}
  s_and_saveexec_b64 s[36:37], vcc""")
    for j in range(4):
        a(f"  ds_read_b128 v[{Q0+4*j}:{Q0+4*j+3}], v1 offset:{L_Q+j*64}")
    a("  s_mov_b64 exec, s[36:37]")
    for i in range(32):
        a(f"  v_mov_b32 v{O0+i}, 0")
    a(f"""  v_mov_b32 v{MRUN}, 0xff800000
  v_mov_b32 v{MC}, 0xff800000
  v_mov_b32 v{L}, 0
  s_waitcnt lgkmcnt(0)""")
    stamp(4)

    def body(st, issue, wk, wv, tag):
        K0 = KV0 + 64 * st
        V0 = K0 + 32
        a(f"  s_waitcnt vmcnt({wk})")
        for t in range(2):
            sreg = S0 if t == 0 else S1
            for j in range(4):
                r = K0 + (t * 4 + j) * 4
                c = "0" if j == 0 else f"v[{sreg}:{sreg+3}]"
                a(f"  v_mfma_f32_16x16x32_bf16 v[{sreg}:{sreg+3}], v[{r}:{r+3}], v[{Q0+4*j}:{Q0+4*j+3}], {c}")
        if issue:
            setaddr("s35")
            kloads(st)
            grab_read("s44")
        else:
            a("  s_nop 7")
        a(f"""  s_nop 1
  v_max3_f32 v{MX}, v{S0}, v{S0+1}, v{S0+2}
  v_max3_f32 v{MX}, v{MX}, v{S0+3}, v{S1}
  v_max3_f32 v{MX}, v{MX}, v{S1+1}, v{S1+2}
  v_max_f32 v{MX}, v{MX}, v{S1+3}
  v_cmp_gt_f32 vcc, v{MX}, v{MRUN}
  s_cbranch_vccz L_fast_{tag}
  v_mov_b32 v{T0}, v{MX}
  s_nop 1
  v_permlane16_swap_b32 v{MX}, v{T0}
  v_max_f32 v{MX}, v{MX}, v{T0}
  v_mov_b32 v{T0}, v{MX}
  s_nop 1
  v_permlane32_swap_b32 v{MX}, v{T0}
  v_max_f32 v{MX}, v{MX}, v{T0}
  v_max_f32 v{MX}, v{MX}, v{MRUN}      ; m_new
  v_sub_f32 v{T0}, v{MRUN}, v{MX}
  v_mul_f32 v{T0}, s42, v{T0}
  v_exp_f32 v{AL}, v{T0}
  v_mov_b32 v{MRUN}, v{MX}
  v_mul_f32 v{MC}, s42, v{MX}
  v_mul_f32 v{L}, v{L}, v{AL}""")
        for i in range(32):
            a(f"  v_mul_f32 v{O0+i}, v{O0+i}, v{AL}")
        a(f"L_fast_{tag}:")
        for i in range(8):
            a(f"  v_fma_f32 v{S0+i}, v{S0+i}, s42, -v{MC}")
        for i in range(8):
            a(f"  v_exp_f32 v{S0+i}, v{S0+i}")
        a(f"""  s_nop 0
  v_add_f32 v{T0}, v{S0}, v{S0+1}
  v_add_f32 v{T1}, v{S0+2}, v{S0+3}
  v_add_f32 v{L}, v{L}, v{T0}
  v_add_f32 v{L}, v{L}, v{T1}
  v_add_f32 v{T0}, v{S0+4}, v{S0+5}
  v_add_f32 v{T1}, v{S0+6}, v{S0+7}
  v_add_f32 v{L}, v{L}, v{T0}
  v_add_f32 v{L}, v{L}, v{T1}""")
        for q in range(4):
            a(f"  v_cvt_pk_bf16_f32 v{P0+q}, v{S0+2*q}, v{S0+2*q+1}")
        a(f"  s_waitcnt vmcnt({wv})")
        def perms(e):
            sel = "s40" if (e & 1) == 0 else "s41"
            base = A0 + 4 * (e % 3)
            for q in range(4):
                lo = V0 + 4 * (2 * q) + (e >> 1)
                hi = V0 + 4 * (2 * q + 1) + (e >> 1)
                a(f"  v_perm_b32 v{base+q}, v{hi}, v{lo}, {sel}")
        def pv(e):
            base = A0 + 4 * (e % 3)
            o = O0 + 4 * e
            a(f"  v_mfma_f32_16x16x32_bf16 v[{o}:{o+3}], v[{base}:{base+3}], v[{P0}:{P0+3}], v[{o}:{o+3}]")
        perms(0)
        for e in range(8):
            if e + 1 < 8:
                perms(e + 1)
            else:
                a("  s_nop 1")
            pv(e)
        if issue:
            vloads(st)

    a(f"""  s_cmp_lg_u32 s30, 0
  s_cbranch_scc1 L_first_grab""")
    grab(); grab_read("s35")
    a(f"""  s_cmp_ge_u32 s35, 128
  s_cbranch_scc1 L_loop_done""")
    setaddr("s35"); kloads(0); vloads(0)
    grab(); grab_read("s35")
    a(f"""  s_cmp_ge_u32 s35, 128
  s_cbranch_scc1 L_single""")
    setaddr("s35"); kloads(1); vloads(1)
    a("L_first_grab:")
    grab(); grab_read("s35")
    a("L_a_loop:")
    for st in range(2):
        a(f"""  s_cmp_ge_u32 s35, 128
  s_cbranch_scc1 L_drain_{st}""")
        grab()
        body(st, True, 24, 24, f"m{st}")
        a("  s_mov_b32 s35, s44")
    a("  s_branch L_a_loop")
    for st in range(2):
        a(f"L_drain_{st}:")
        body(st, False, 24, 16, f"d{st}a")
        body(1 - st, False, 8, 0, f"d{st}b")
        a("  s_branch L_loop_done")
    a("L_single:")
    body(0, False, 8, 0, "sg")
    a("L_loop_done:")
    stamp(5)
    WOR = KV0
    DO = KV0 + 16
    a(f"""  ; wo loads: rows hkv*512 + ksl*256 + w*32 + g*8 + i ; cols slab*64 + n*4 ; ksl = mem>>3, slab = mem&7
  v_lshlrev_b32 v{E0}, 13, v{GR}
  v_lshl_add_u32 v{E0}, v{NR}, 3, v{E0}    ; g*8192 + n*8
  s_lshr_b32 s69, s47, 3          ; ksl
  s_and_b32 s70, s47, 7           ; slab
  s_lshl_b32 s31, s29, 19         ; hkv*512*1024
  s_lshl_b32 s32, s69, 18
  s_add_u32 s31, s31, s32
  s_lshl_b32 s32, s30, 15
  s_add_u32 s31, s31, s32
  s_lshl_b32 s32, s70, 7
  s_add_u32 s31, s31, s32
  s_add_u32 s32, s31, 4096""")
    for i in range(8):
        a(f"  buffer_load_dwordx2 v[{WOR+2*i}:{WOR+2*i+1}], v{E0}, s[56:59], s{31+(i>>2)} offen offset:{(i&3)*1024}")
    a(f"""  s_nop 3
  ; vaddr = w*2048 + h*512 + g*128
  v_lshlrev_b32 v{E0}, 11, v3
  v_lshl_add_u32 v{E0}, v{NR}, 9, v{E0}
  v_lshl_add_u32 v{E0}, v{GR}, 7, v{E0}
  v_lshlrev_b32 v{E1}, 6, v3
  v_lshl_add_u32 v{E1}, v{NR}, 4, v{E1}
  v_lshl_add_u32 v{E1}, v{GR}, 2, v{E1}
  v_lshlrev_b32 v{E2}, 4, v3
  v_lshl_add_u32 v{E2}, v{NR}, 2, v{E2}
  v_cmp_gt_u32 vcc, 4, v{NR}
  s_and_saveexec_b64 s[36:37], vcc""")
    for e in range(8):
        for r in range(4):
            a(f"  ds_write_b32 v{E0}, v{O0+4*e+r} offset:{r*32+e*4}")
    a(f"""  ds_write_b32 v{E1}, v{L} offset:16384
  ds_write_b32 v{E2}, v{MRUN} offset:16896
  s_mov_b64 exec, s[36:37]
  s_waitcnt lgkmcnt(0)
  s_barrier
  v_lshrrev_b32 v4, 7, v0         ; h
  v_lshlrev_b32 v5, 2, v4         ; h*4
  v_lshlrev_b32 v6, 4, v4         ; h*16
  v_lshlrev_b32 v7, 2, v0         ; t*4 = h*512+dim*4""")
    for w in range(8):
        a(f"  ds_read_b32 v{20+w}, v5 offset:{16896+w*16}")
    for w in range(8):
        a(f"  ds_read_b128 v[{32+4*w}:{35+4*w}], v6 offset:{16384+w*64}")
    for w in range(8):
        a(f"  ds_read_b32 v{64+w}, v7 offset:{w*2048}")
    a(f"""  s_waitcnt lgkmcnt(0)
  v_max3_f32 v8, v20, v21, v22
  v_max3_f32 v8, v8, v23, v24
  v_max3_f32 v8, v8, v25, v26
  v_max_f32 v8, v8, v27""")
    for w in range(8):
        a(f"  v_sub_f32 v{20+w}, v{20+w}, v8")
    for w in range(8):
        a(f"  v_mul_f32 v{20+w}, s42, v{20+w}")
    for w in range(8):
        a(f"  v_exp_f32 v{20+w}, v{20+w}")
    a("""  s_nop 0
  v_mov_b32 v9, 0
  v_mov_b32 v10, 0""")
    for w in range(8):
        b = 32 + 4 * w
        a(f"""  v_add_f32 v{b}, v{b}, v{b+1}
  v_add_f32 v{b+2}, v{b+2}, v{b+3}
  v_add_f32 v{b}, v{b}, v{b+2}
  v_fmac_f32 v9, v{20+w}, v{b}
  v_fmac_f32 v10, v{20+w}, v{64+w}""")
    a(f"""  ; store O: WS_PO + wg*2048 + t*4
  s_lshl_b32 s31, s89, 11
  s_add_u32 s31, s31, {WS_PO:#x}
  buffer_store_dword v10, v7, s[24:27], s31 offen sc1
  v_and_b32 v11, 127, v0
  v_cmp_eq_u32 vcc, 0, v11
  v_lshlrev_b32 v12, 3, v4
  s_lshl_b32 s31, s89, 5
  s_add_u32 s31, s31, {WS_PML:#x}
  s_and_saveexec_b64 s[36:37], vcc
  buffer_store_dwordx2 v[8:9], v12, s[24:27], s31 offen sc1
  s_mov_b64 exec, s[36:37]
{'' if TAIL else '  s_branch L_fin'}
  s_waitcnt vmcnt(0)
  s_barrier""")
    stamp(6)
    a(f"""  s_cmp_lg_u32 s30, 0
  s_cbranch_scc1 L_p_wait
  s_lshl_b32 s31, s68, 8
  s_add_u32 s31, s31, {WS_CNT + 4096:#x}          ; S2 counter
  v_mov_b32 v{E1}, 1
  s_mov_b64 s[36:37], exec
  s_mov_b64 exec, 1
  buffer_atomic_add v{E1}, v{VZ}, s[24:27], s31 offen sc1
  s_mov_b32 s38, {SPIN}
L_p_poll:
  buffer_load_dword v{E1}, v{VZ}, s[24:27], s31 offen sc1
  s_waitcnt vmcnt(0)
  v_readfirstlane_b32 s39, v{E1}
  s_cmp_ge_u32 s39, 16
  s_cbranch_scc1 L_p_done
  s_sleep {PSLEEP}
  s_sub_u32 s38, s38, 1
  s_cmp_lg_u32 s38, 0
  s_cbranch_scc1 L_p_poll
L_p_done:
  s_mov_b64 exec, s[36:37]""")
    stamp(7)
    a(f"""L_p_wait:
  s_barrier
  v_lshrrev_b32 v7, 5, v{LANE}
  v_and_b32 v8, 31, v{LANE}
  v_lshlrev_b32 v9, 9, v7
  v_lshl_add_u32 v9, v8, 4, v9
  v_lshlrev_b32 v10, 3, v7         ; hi*8
  s_lshl_b32 s33, s68, 4
  s_lshl_b32 s34, s30, 1
  s_add_u32 s33, s33, s34          ; grp*16 + b'*2
  s_lshl_b32 s36, s33, 11
  s_lshl_b32 s37, s69, 10
  s_add_u32 s36, s36, s37
  s_add_u32 s36, s36, {WS_PO:#x}
  s_lshl_b32 s38, s33, 5
  s_lshl_b32 s37, s69, 4
  s_add_u32 s38, s38, s37
  s_add_u32 s38, s38, {WS_PML:#x}
  buffer_load_dwordx4 v[32:35], v9, s[24:27], s36 offen sc1
  buffer_load_dwordx4 v[36:39], v9, s[24:27], s36 offen offset:2048 sc1
  buffer_load_dwordx2 v[40:41], v10, s[24:27], s38 offen sc1
  buffer_load_dwordx2 v[42:43], v10, s[24:27], s38 offen offset:32 sc1""")
    for e in range(4):
        sel = "s40" if (e & 1) == 0 else "s41"
        for q in range(4):
            lo = WOR + 2 * (2 * q) + (e >> 1)
            hi = WOR + 2 * (2 * q + 1) + (e >> 1)
            a(f"  v_perm_b32 v{56+4*e+q}, v{hi}, v{lo}, {sel}")
    a(f"""  s_waitcnt vmcnt(0)
  v_max_f32 v44, v40, v42
  v_sub_f32 v40, v40, v44
  v_sub_f32 v42, v42, v44
  v_mul_f32 v40, s42, v40
  v_mul_f32 v42, s42, v42
  v_exp_f32 v40, v40
  v_exp_f32 v42, v42
  s_nop 0
  v_mul_f32 v45, v40, v41
  v_fmac_f32 v45, v42, v43
  v_rcp_f32 v45, v45
  s_nop 0
  v_mul_f32 v40, v40, v45
  v_mul_f32 v42, v42, v45""")
    for i in range(4):
        a(f"""  v_mul_f32 v{32+i}, v{32+i}, v40
  v_fmac_f32 v{32+i}, v{36+i}, v42""")
    a(f"""  v_cvt_pk_bf16_f32 v32, v32, v33
  v_cvt_pk_bf16_f32 v33, v34, v35
  v_lshlrev_b32 v11, 9, v3
  v_lshl_add_u32 v11, v{LANE}, 3, v11     ; b'*512 + lane*8
  ds_write_b64 v11, v[32:33] offset:{L_R1}
  s_waitcnt lgkmcnt(0)
  s_barrier
  v_lshlrev_b32 v11, 9, v{NR}
  v_lshl_add_u32 v11, v3, 6, v11
  v_lshl_add_u32 v11, v{GR}, 4, v11       ; n*512 + w*64 + g*16
  ds_read_b128 v[48:51], v11 offset:{L_R1}
  s_waitcnt lgkmcnt(0)
  s_nop 1""")
    for e in range(4):
        a(f"  v_mfma_f32_16x16x32_bf16 v[{DO+4*e}:{DO+4*e+3}], v[48:51], v[{56+4*e}:{59+4*e}], 0")
    a(f"""  v_lshlrev_b32 v8, 10, v{GR}
  v_lshl_add_u32 v8, v{NR}, 4, v8
  v_lshl_add_u32 v8, v3, 11, v8    ; w*2048 + g*1024 + n*16
  v_cmp_gt_u32 vcc, 32, v{LANE}
  s_nop 7
  s_nop 3
  s_and_saveexec_b64 s[36:37], vcc""")
    for e in range(4):
        for r in range(4):
            a(f"  ds_write_b32 v8, v{DO+4*e+r} offset:{L_R2+r*256+e*4}")
    a(f"""  s_mov_b64 exec, s[36:37]
  s_waitcnt lgkmcnt(0)
  s_barrier
  v_lshlrev_b32 v9, 2, v0""")
    for w in range(8):
        a(f"  ds_read_b32 v{16+w}, v9 offset:{L_R2+w*2048}")
    a(f"""  s_waitcnt lgkmcnt(0)
  v_add_f32 v16, v16, v17
  v_add_f32 v18, v18, v19
  v_add_f32 v20, v20, v21
  v_add_f32 v22, v22, v23
  v_add_f32 v16, v16, v18
  v_add_f32 v20, v20, v22
  v_add_f32 v16, v16, v20
  s_lshl_b32 s33, s28, 3
  s_add_u32 s33, s33, s70          ; p*8+slab
  s_lshl_b32 s34, s33, 15
  s_add_u32 s34, s34, {WS_POUT:#x}
  s_lshl_b32 s35, s29, 1
  s_add_u32 s35, s35, s69
  s_lshl_b32 s35, s35, 11
  s_add_u32 s35, s35, s34
  buffer_store_dword v16, v9, s[24:27], s35 offen sc1
  s_waitcnt vmcnt(0)
  s_barrier""")
    stamp(8)
    a(f"""
  s_cmp_lg_u32 s30, 0
  s_cbranch_scc1 L_o_wait
  s_lshl_b32 s31, s33, 8
  s_add_u32 s31, s31, {WS_CNT:#x}          ; S3 counter
  v_mov_b32 v{E1}, 1
  s_mov_b64 s[36:37], exec
  s_mov_b64 exec, 1
  buffer_atomic_add v{E1}, v{VZ}, s[24:27], s31 offen sc0 sc1
  s_waitcnt vmcnt(0)
  v_mov_b32 v{E2}, {L_R3}
  ds_write_b32 v{E2}, v{E1}
  s_waitcnt lgkmcnt(0)
  s_mov_b64 exec, s[36:37]
L_o_wait:
  s_barrier
  v_mov_b32 v{E2}, {L_R3}
  ds_read_b32 v{E1}, v{E2}
  s_waitcnt lgkmcnt(0)
  v_readfirstlane_b32 s39, v{E1}
  s_cmp_lg_u32 s39, 15
  s_cbranch_scc1 L_fin
  ; last arriver: reduce the 16 partials of (p,slab)""")
    for ks in range(16):
        a(f"""  s_add_u32 s35, s34, {ks*2048}
  buffer_load_dword v{16+ks}, v9, s[24:27], s35 offen sc1""")
    a(f"""  ; out byte = b'*2048 + p*1024 + slab*128 + col*2
  v_lshlrev_b32 v10, 11, v3
  v_lshl_add_u32 v10, v{LANE}, 1, v10
  s_lshl_b32 s35, s33, 7
  s_waitcnt vmcnt(0)""")
    for st in (1, 2, 4, 8):
        for i in range(0, 16, 2 * st):
            a(f"  v_add_f32 v{16+i}, v{16+i}, v{16+i+st}")
    a(f"""  v_cvt_pk_bf16_f32 v16, v16, v16
  buffer_store_short v16, v10, s[60:63], s35 offen
  s_waitcnt vmcnt(0)
L_fin:""")
    stamp(9)
    if STAMP:
        a(f"""  s_cmp_lg_u32 s30, 0
  s_cbranch_scc1 L_end
  v_lshlrev_b32 v10, 2, v{LANE}
  s_lshl_b32 s35, s2, 6
  s_add_u32 s35, s35, 0x180000
  v_cmp_gt_u32 vcc, 16, v{LANE}
  s_and_saveexec_b64 s[36:37], vcc
  buffer_store_dword v91, v10, s[24:27], s35 offen
  s_mov_b64 exec, s[36:37]""")
        if STAMP == 2:
            a(f"""  v_cmp_gt_u32 vcc, 11, v{LANE}
  s_and_saveexec_b64 s[36:37], vcc
  buffer_atomic_umax v91, v10, s[64:67], 0 offen offset:16 sc1
  s_mov_b64 exec, s[36:37]""")
    a(f"""L_end:
  s_endpgm""")
    acc = (nvgpr + 3) // 4 * 4
    a('.section .rodata,"a"')
    a(f""".p2align 6
.amdhsa_kernel {name}
  .amdhsa_next_free_vgpr {max(nvgpr,160)}
  .amdhsa_next_free_sgpr 96
  .amdhsa_accum_offset {max(acc,160)}
  .amdhsa_group_segment_fixed_size 0
  .amdhsa_kernarg_size 104
  .amdhsa_user_sgpr_count 2
  .amdhsa_user_sgpr_kernarg_segment_ptr 1
  .amdhsa_system_sgpr_workgroup_id_x 1
.end_amdhsa_kernel""")

TAILL = '''
; @launch kernel=oproj_kernel grid=(256,1,1) block=(512,1,1) lds=24576
; @launch kernel=final_kernel grid=(32,1,1) block=(256,1,1) lds=0'''
TAILM = '''
; @launch kernel=oproj_kernel grid=(256,1,1) block=(512,1,1) lds=24576'''
def main():
    out = sys.argv[1] if len(sys.argv) > 1 else f"cdna_kernels/{NAME}.s"
    opts = {}
    for kv in sys.argv[2:]:
        k, v = kv.split("=", 1)
        opts[k] = v
    a = Asm()
    a(f"""; concat_heads gqa decode: fused q-proj -> flash-decode -> combine -> out-proj (16-workgroup group hand-offs)
; @launch grid=(256,1,1) block=(512,1,1) lds={LDS_BYTES}
.amdgcn_target "amdgcn-amd-amdhsa--gfx950"
.text""")
    gen(a, opts)
    open(out, "w").write(a.text())

main()
```

```python
import math, struct, sys

NAME = "concat_heads__gqa_block_cached__gqa_block_cached__decode"

def f32bits(x):
    return struct.unpack("<I", struct.pack("<f", x))[0]

C_SCALE = (128.0 ** -0.5) * math.log2(math.e)
C_BITS = f32bits(C_SCALE)

WS_Q = 0
WS_PO = 0x40000
WS_PML = 0xC0000
WS_POUT = 0x100000
WS_CNT = 0x1C0000
WS_SIZE = 0x200000

L_R1 = 17408
L_R2 = 25600
L_R3 = 41984
L_Q = 42240
LDS_BYTES = 43264

SEL_LO = 0x05040100
SEL_HI = 0x07060302

class Asm:
    def __init__(self):
        self.lines = []
    def __call__(self, s):
        for ln in s.strip("\n").split("\n"):
            self.lines.append(ln)
    def text(self):
        return "\n".join(self.lines) + "\n"

def srd(a, d, lo, hi, size):
    a(f"""  s_mov_b32 s{d}, s{lo}
  s_and_b32 s{d+1}, s{hi}, 0xffff
  s_mov_b32 s{d+2}, {size:#x}
  s_mov_b32 s{d+3}, 0x00020000""")

def kernel_header(a, name):
    a(f""".globl {name}
.p2align 8
.type {name},@function
{name}:""")

def kernel_desc(a, name, vgpr, sgpr=96):
    acc = (vgpr + 3) // 4 * 4
    a(f""".p2align 6
.amdhsa_kernel {name}
  .amdhsa_next_free_vgpr {vgpr}
  .amdhsa_next_free_sgpr {sgpr}
  .amdhsa_accum_offset {acc}
  .amdhsa_group_segment_fixed_size 0
  .amdhsa_kernarg_size 104
  .amdhsa_user_sgpr_count 2
  .amdhsa_user_sgpr_kernarg_segment_ptr 1
  .amdhsa_system_sgpr_workgroup_id_x 1
.end_amdhsa_kernel""")

def gen_qproj(a, PF=0):
    name = "qproj_kernel"
    kernel_header(a, name)
    a(f"""  s_cmp_ge_u32 s2, 128
  s_cbranch_scc1 {'L_pf' if PF else 'L_q_end'}
  s_load_dwordx2 s[4:5], s[0:1], 0
  s_load_dwordx2 s[6:7], s[0:1], 24
  s_load_dwordx2 s[8:9], s[0:1], 40
  s_load_dwordx2 s[10:11], s[0:1], 64
  s_load_dwordx2 s[12:13], s[0:1], 96
  v_and_b32 v1, 63, v0
  v_lshrrev_b32 v5, 6, v0
  v_and_b32 v2, 15, v1            ; n
  v_lshrrev_b32 v3, 4, v1         ; g
  v_readfirstlane_b32 s30, v5
  s_lshr_b32 s28, s2, 6           ; p
  s_and_b32 s29, s2, 63           ; slab
  s_mov_b32 s40, {SEL_LO:#x}
  s_mov_b32 s41, {SEL_HI:#x}
  v_lshlrev_b32 v6, 16, v3        ; g*65536
  v_lshl_add_u32 v6, v2, 3, v6    ; + n*8  -> voffset W
  v_lshlrev_b32 v7, 10, v2        ; n*1024
  v_lshl_add_u32 v7, v3, 4, v7    ; + g*16 -> voffset x
  s_waitcnt lgkmcnt(0)
  s_cmp_eq_u32 s28, 0
  s_cselect_b32 s4, s4, s8
  s_cselect_b32 s5, s5, s9
  s_cselect_b32 s6, s6, s10
  s_cselect_b32 s7, s7, s11""")
    srd(a, 16, 4, 5, 8192)
    srd(a, 20, 6, 7, 512 * 4096 * 2)
    srd(a, 24, 12, 13, WS_SIZE)
    a(f"""  s_cmp_ge_u32 s2, 32
  s_cbranch_scc1 L_q_nocnt
  s_cmp_lg_u32 s30, 0
  s_cbranch_scc1 L_q_nocnt
  s_lshl_b32 s31, s2, 8
  s_add_u32 s31, s31, {WS_CNT:#x}
  v_mov_b32 v8, 0
  s_mov_b64 exec, 1
  buffer_store_dword v8, v8, s[24:27], s31 offen
  s_mov_b64 exec, -1
L_q_nocnt:""")
    a(f"""  s_lshl_b32 s31, s30, 19
  s_lshl_b32 s32, s29, 7
  s_add_u32 s31, s31, s32
  s_lshl_b32 s33, s30, 7          ; x soffset = w*64*2""")
    for i in range(16):
        a(f"""  s_add_u32 s34, s31, {((i>>3)*32+(i&7))*8192:#x}
  buffer_load_dwordx2 v[{16+2*i}:{17+2*i}], v6, s[20:23], s34 offen""")
    a(f"""  buffer_load_dwordx4 v[48:51], v7, s[16:19], s33 offen
  buffer_load_dwordx4 v[52:55], v7, s[16:19], s33 offen offset:64
  s_waitcnt vmcnt(0)""")
    for grp in range(2):
        wb = 16 + 16 * grp
        for e in range(4):
            sel = "s40" if (e & 1) == 0 else "s41"
            for q in range(4):
                lo = wb + 2 * (2 * q) + (e >> 1)
                hi = wb + 2 * (2 * q + 1) + (e >> 1)
                a(f"  v_perm_b32 v{56+4*e+q}, v{hi}, v{lo}, {sel}")
        a("  s_nop 1")
        for e in range(4):
            c = "0" if grp == 0 else f"v[{72+4*e}:{75+4*e}]"
            a(f"  v_mfma_f32_16x16x32_bf16 v[{72+4*e}:{75+4*e}], v[{48+4*grp}:{51+4*grp}], v[{56+4*e}:{59+4*e}], {c}")
    a(f"""  s_nop 7
  s_nop 7
  v_lshlrev_b32 v8, 10, v3        ; g*1024
  v_lshl_add_u32 v8, v2, 4, v8    ; + n*16
  v_lshl_add_u32 v8, v5, 11, v8   ; + w*2048
  v_cmp_gt_u32 vcc, 32, v1
  s_and_saveexec_b64 s[36:37], vcc""")
    for e in range(4):
        for r in range(4):
            a(f"  ds_write_b32 v8, v{72+4*e+r} offset:{r*256+e*4}")
    a(f"""  s_mov_b64 exec, s[36:37]
  s_waitcnt lgkmcnt(0)
  s_barrier
  v_lshlrev_b32 v9, 2, v0         ; t*4 = b*256 + col*4""")
    for w in range(8):
        a(f"  ds_read_b32 v{16+w}, v9 offset:{w*2048}")
    a(f"""  s_waitcnt lgkmcnt(0)
  v_add_f32 v16, v16, v17
  v_add_f32 v18, v18, v19
  v_add_f32 v20, v20, v21
  v_add_f32 v22, v22, v23
  v_add_f32 v16, v16, v18
  v_add_f32 v20, v20, v22
  v_add_f32 v16, v16, v20
  v_cvt_pk_bf16_f32 v16, v16, v16
  v_lshlrev_b32 v10, 13, v5
  v_lshl_add_u32 v10, v1, 1, v10
  s_lshl_b32 s34, s28, 16
  s_lshl_b32 s35, s29, 7
  s_add_u32 s34, s34, s35
  buffer_store_short v16, v10, s[24:27], s34 offen
L_q_end:
  s_endpgm""")
    if PF:
        a(f"""L_pf:
  s_cmp_ge_u32 s2, 384
  s_cbranch_scc1 L_q_end
  s_load_dwordx4 s[4:7], s[0:1], 8      ; A_k, A_v
  s_load_dwordx4 s[8:11], s[0:1], 48    ; B_k, B_v
  s_sub_u32 s3, s2, 128
  s_and_b32 s29, s3, 7            ; hkv
  s_lshr_b32 s28, s3, 7           ; p
  s_lshr_b32 s47, s3, 3
  s_and_b32 s47, s47, 15          ; mem
  s_lshr_b32 s46, s47, 1          ; b
  s_and_b32 s43, s47, 1           ; split
  s_lshl_b32 s31, s46, 3
  s_add_u32 s31, s31, s29
  s_lshl_b32 s31, s31, 21
  s_lshl_b32 s32, s43, 20
  s_add_u32 s31, s31, s32
  v_lshlrev_b32 v1, 4, v0
  s_waitcnt lgkmcnt(0)
  s_cmp_eq_u32 s28, 0
  s_cselect_b32 s4, s4, s8
  s_cselect_b32 s5, s5, s9
  s_cselect_b32 s6, s6, s10
  s_cselect_b32 s7, s7, s11""")
        srd(a, 16, 4, 5, 0x8000000)
        srd(a, 20, 6, 7, 0x8000000)
        for i in range(PF):
            a(f"""  s_add_u32 s32, s31, {i*8192}
  buffer_load_dwordx4 v[{8+8*(i%8)}:{11+8*(i%8)}], v1, s[16:19], s32 offen
  buffer_load_dwordx4 v[{12+8*(i%8)}:{15+8*(i%8)}], v1, s[20:23], s32 offen""")
            if i % 8 == 7:
                a("  s_waitcnt vmcnt(0)")
        a("""  s_waitcnt vmcnt(0)
  s_endpgm""")
    return name, 96

def gen_oproj(a, merge=False):
    name = "oproj_kernel"
    TAILA = f"""  ; POUT addr = WS_POUT + ((p*16+ks)*8 + b)*2048 + (slab*64+col)*4
  v_lshlrev_b32 v10, 11, v5
  v_lshl_add_u32 v10, v1, 2, v10
  s_lshl_b32 s33, s28, 4
  s_add_u32 s33, s33, s29
  s_lshl_b32 s33, s33, 14
  s_lshl_b32 s34, s43, 8
  s_add_u32 s33, s33, s34
  s_add_u32 s33, s33, {WS_POUT:#x}
  buffer_store_dword v16, v10, s[24:27], s33 offen"""
    sums = "\n".join(f"  v_add_f32 v{16+i}, v{16+i}, v{16+i+st}" for st in (1, 2, 4, 8) for i in range(0, 16, 2 * st))
    lds_ = "\n".join(f"  s_add_u32 s35, s34, {ks*2048}\n  buffer_load_dword v{16+ks}, v9, s[24:27], s35 offen sc1" for ks in range(16))
    TAILB = f"""  ; POUT byte = WS_POUT + ((p*8+slab)*16 + ks)*2048 + t*4
  s_lshl_b32 s33, s28, 3
  s_add_u32 s33, s33, s43          ; p*8+slab
  s_lshl_b32 s34, s33, 15
  s_add_u32 s34, s34, {WS_POUT:#x}
  s_lshl_b32 s35, s29, 11
  s_add_u32 s35, s35, s34
  buffer_store_dword v16, v9, s[24:27], s35 offen sc1
  s_waitcnt vmcnt(0)
  s_barrier
  s_cmp_lg_u32 s30, 0
  s_cbranch_scc1 L_oo_wait
  s_lshl_b32 s31, s33, 8
  s_add_u32 s31, s31, {WS_CNT:#x}
  v_mov_b32 v12, 1
  v_mov_b32 v13, 0
  s_mov_b64 exec, 1
  buffer_atomic_add v12, v13, s[24:27], s31 offen sc0 sc1
  s_waitcnt vmcnt(0)
  ds_write_b32 v13, v12
  s_waitcnt lgkmcnt(0)
  s_mov_b64 exec, -1
L_oo_wait:
  s_barrier
  v_mov_b32 v13, 0
  ds_read_b32 v12, v13
  s_waitcnt lgkmcnt(0)
  v_readfirstlane_b32 s39, v12
  s_cmp_lg_u32 s39, 15
  s_cbranch_scc1 L_o_end
{lds_}
  v_lshlrev_b32 v10, 11, v5
  v_lshl_add_u32 v10, v1, 1, v10
  s_lshl_b32 s35, s33, 7
  s_waitcnt vmcnt(0)
{sums}
  v_cvt_pk_bf16_f32 v16, v16, v16
  buffer_store_short v16, v10, s[60:63], s35 offen"""
    kernel_header(a, name)
    a(f"""  s_cmp_ge_u32 s2, 256
  s_cbranch_scc1 L_o_end
  s_load_dwordx2 s[4:5], s[0:1], 32     ; A_wo
  s_load_dwordx2 s[8:9], s[0:1], 72     ; B_wo
  s_load_dwordx2 s[12:13], s[0:1], 96   ; ws
  s_load_dwordx4 s[84:87], s[0:1], 80
  v_and_b32 v1, 63, v0
  v_lshrrev_b32 v5, 6, v0
  v_and_b32 v2, 15, v1            ; n
  v_lshrrev_b32 v3, 4, v1         ; g
  v_readfirstlane_b32 s30, v5
  s_lshr_b32 s28, s2, 7           ; p
  s_lshr_b32 s29, s2, 3
  s_and_b32 s29, s29, 15          ; ks
  s_and_b32 s43, s2, 7            ; slab
  s_mov_b32 s40, {SEL_LO:#x}
  s_mov_b32 s41, {SEL_HI:#x}
  s_mov_b32 s42, {C_BITS:#x}
  v_lshlrev_b32 v6, 13, v3        ; g*8192
  v_lshl_add_u32 v6, v2, 3, v6    ; + n*8
  s_waitcnt lgkmcnt(0)
  s_cmp_eq_u32 s28, 0
  s_cselect_b32 s4, s4, s8
  s_cselect_b32 s5, s5, s9""")
    srd(a, 20, 4, 5, 4096 * 512 * 2)
    srd(a, 24, 12, 13, WS_SIZE)
    srd(a, 60, 84, 85, 8192 * 2)
    srd(a, 64, 86, 87, 256)
    a(f"""  ; wo soffset = (ks*256 + w*32)*1024 + slab*128
  s_lshl_b32 s31, s29, 18
  s_lshl_b32 s32, s30, 15
  s_add_u32 s31, s31, s32
  s_lshl_b32 s32, s43, 7
  s_add_u32 s31, s31, s32
  s_add_u32 s32, s31, 4096""")
    for i in range(8):
        a(f"  buffer_load_dwordx2 v[{16+2*i}:{17+2*i}], v6, s[20:23], s{31+(i>>2)} offen offset:{(i&3)*1024}")
    a(f"""  v_lshrrev_b32 v7, 5, v1         ; hi
  v_and_b32 v8, 31, v1
  v_lshlrev_b32 v9, 9, v7         ; hi*512
  v_lshl_add_u32 v9, v8, 4, v9
  v_lshlrev_b32 v10, 3, v7        ; hi*8
  s_lshl_b32 s33, s28, 6
  s_lshl_b32 s34, s30, 3
  s_add_u32 s33, s33, s34
  s_lshr_b32 s34, s29, 1
  s_add_u32 s33, s33, s34         ; unit
  s_and_b32 s35, s29, 1           ; ks&1
  s_lshl_b32 s36, s33, 12         ; unit*2*2048
  s_lshl_b32 s37, s35, 10         ; (ks&1)*2*512
  s_add_u32 s36, s36, s37
  s_add_u32 s36, s36, {WS_PO:#x}
  s_lshl_b32 s38, s33, 6          ; unit*2*32
  s_lshl_b32 s37, s35, 4
  s_add_u32 s38, s38, s37
  s_add_u32 s38, s38, {WS_PML:#x}
  buffer_load_dwordx4 v[32:35], v9, s[24:27], s36 offen
  buffer_load_dwordx4 v[36:39], v9, s[24:27], s36 offen offset:2048
  buffer_load_dwordx2 v[40:41], v10, s[24:27], s38 offen
  buffer_load_dwordx2 v[42:43], v10, s[24:27], s38 offen offset:32
  s_waitcnt vmcnt(0)
  v_max_f32 v44, v40, v42
  v_sub_f32 v40, v40, v44
  v_sub_f32 v42, v42, v44
  v_mul_f32 v40, s42, v40
  v_mul_f32 v42, s42, v42
  v_exp_f32 v40, v40
  v_exp_f32 v42, v42
  s_nop 0
  v_mul_f32 v45, v40, v41
  v_fmac_f32 v45, v42, v43
  v_rcp_f32 v45, v45
  s_nop 0
  v_mul_f32 v40, v40, v45
  v_mul_f32 v42, v42, v45""")
    for i in range(4):
        a(f"""  v_mul_f32 v{32+i}, v{32+i}, v40
  v_fmac_f32 v{32+i}, v{36+i}, v42""")
    a(f"""  v_cvt_pk_bf16_f32 v32, v32, v33
  v_cvt_pk_bf16_f32 v33, v34, v35
  v_lshlrev_b32 v11, 9, v5
  v_lshl_add_u32 v11, v1, 3, v11
  ds_write_b64 v11, v[32:33]
  s_waitcnt lgkmcnt(0)
  s_barrier
  v_lshlrev_b32 v11, 9, v2
  v_lshl_add_u32 v11, v5, 6, v11
  v_lshl_add_u32 v11, v3, 4, v11
  ds_read_b128 v[48:51], v11""")
    for e in range(4):
        sel = "s40" if (e & 1) == 0 else "s41"
        for q in range(4):
            lo = 16 + 2 * (2 * q) + (e >> 1)
            hi = 16 + 2 * (2 * q + 1) + (e >> 1)
            a(f"  v_perm_b32 v{56+4*e+q}, v{hi}, v{lo}, {sel}")
    a("  s_waitcnt lgkmcnt(0)")
    a("  s_nop 1")
    for e in range(4):
        a(f"  v_mfma_f32_16x16x32_bf16 v[{72+4*e}:{75+4*e}], v[48:51], v[{56+4*e}:{59+4*e}], 0")
    a(f"""  s_nop 7
  s_nop 7
  v_lshlrev_b32 v8, 10, v3        ; g*1024
  v_lshl_add_u32 v8, v2, 4, v8    ; + n*16
  v_lshl_add_u32 v8, v5, 11, v8   ; + w*2048
  v_cmp_gt_u32 vcc, 32, v1
  s_and_saveexec_b64 s[44:45], vcc""")
    for e in range(4):
        for r in range(4):
            a(f"  ds_write_b32 v8, v{72+4*e+r} offset:{8192+r*256+e*4}")
    a(f"""  s_mov_b64 exec, s[44:45]
  s_waitcnt lgkmcnt(0)
  s_barrier
  v_lshlrev_b32 v9, 2, v0""")
    for w in range(8):
        a(f"  ds_read_b32 v{16+w}, v9 offset:{8192+w*2048}")
    a(f"""  s_waitcnt lgkmcnt(0)
  v_add_f32 v16, v16, v17
  v_add_f32 v18, v18, v19
  v_add_f32 v20, v20, v21
  v_add_f32 v22, v22, v23
  v_add_f32 v16, v16, v18
  v_add_f32 v20, v20, v22
  v_add_f32 v16, v16, v20
{TAILA if not merge else TAILB}
L_o_end:
  s_endpgm""")
    return name, 96

def gen_final(a):
    name = "final_kernel"
    kernel_header(a, name)
    a(f"""  s_cmp_ge_u32 s2, 32
  s_cbranch_scc1 L_f_end
  s_load_dwordx2 s[4:5], s[0:1], 80     ; out
  s_load_dwordx2 s[12:13], s[0:1], 96   ; ws
  s_lshl_b32 s3, s2, 8
  v_add_u32 v1, s3, v0            ; o = b*1024 + p*512 + n
  v_lshrrev_b32 v2, 10, v1        ; b
  v_bfe_u32 v3, v1, 9, 1          ; p
  v_and_b32 v4, 511, v1           ; n
  v_lshlrev_b32 v5, 18, v3
  v_lshl_add_u32 v5, v2, 11, v5
  v_lshl_add_u32 v5, v4, 2, v5
  v_lshlrev_b32 v6, 1, v1
  s_waitcnt lgkmcnt(0)""")
    srd(a, 16, 4, 5, 8192 * 2)
    srd(a, 24, 12, 13, WS_SIZE)
    for ks in range(16):
        a(f"""  s_mov_b32 s30, {WS_POUT + ks*16384:#x}
  buffer_load_dword v{16+ks}, v5, s[24:27], s30 offen""")
    a("  s_waitcnt vmcnt(0)")
    for st in (1, 2, 4, 8):
        for i in range(0, 16, 2 * st):
            a(f"  v_add_f32 v{16+i}, v{16+i}, v{16+i+st}")
    a(f"""  v_cvt_pk_bf16_f32 v16, v16, v16
  buffer_store_short v16, v6, s[16:19], 0 offen
L_f_end:
  s_endpgm""")
    return name, 40

def gen(a, opts):
    TAIL = 1
    GOEARLY = int(opts.get('goearly','1'))
    WIN = int(opts.get('win','2'))
    STAMP = int(opts.get("stamp", "0"))
    def stamp(idx):
        if not STAMP:
            return
        a(f"""  s_memrealtime s[90:91]
  s_waitcnt lgkmcnt(0)
  s_mov_b32 s{92 if False else 88}, s90
  v_writelane_b32 v{91}, s90, {idx}""")
        if idx == 0:
            a(f"""  s_not_b32 s90, s90
  v_writelane_b32 v91, s90, 10""")
    name = NAME + "_kernel"
    NIT = 16
    ldflags = opts.get("ldflags", "nt")
    depth = 2
    PSLEEP = int(opts.get("psleep", "1"))
    SPIN = int(opts.get("spin", "400000"))
    Q0 = 4; O0 = 20; S0 = 52; S1 = 56; P0 = 60; A0 = 64
    MRUN = 76; MC = 77; L = 78; T0 = 79; T1 = 80; MX = 81; AL = 82
    NR = 83; GR = 84; VQ = 85; E0 = 86; E1 = 87; E2 = 88; LANE = 89; VZ = 90; GRB = 85; CADDR = 92; ONE = 93
    KV0 = 96
    nvgpr = KV0 + 64 * depth
    STEP = 8192 * 8
    W0 = 20; X0 = 36; B0 = 44; D0 = 52
    a(f""".globl {name}
.p2align 8
.type {name},@function
{name}:
  s_cmp_ge_u32 s2, 256
  s_cbranch_scc1 L_end
  s_load_dwordx8 s[4:11], s[0:1], 0     ; A_x, A_k, A_v, A_wq
  s_load_dwordx8 s[72:79], s[0:1], 32   ; A_wo, B_x, B_k, B_v
  s_load_dwordx8 s[80:87], s[0:1], 64
  s_load_dwordx2 s[12:13], s[0:1], 96   ; ws
  v_and_b32 v{LANE}, 63, v0
  v_lshrrev_b32 v3, 6, v0
  v_and_b32 v{NR}, 15, v{LANE}          ; n / h
  v_lshrrev_b32 v{GR}, 4, v{LANE}       ; g
  v_readfirstlane_b32 s30, v3
  s_and_b32 s29, s2, 7            ; hkv
  s_lshr_b32 s28, s2, 7           ; p
  s_lshr_b32 s47, s2, 3
  s_and_b32 s47, s47, 15          ; mem
  s_lshl_b32 s68, s28, 3
  s_add_u32 s68, s68, s29
  s_lshl_b32 s89, s68, 4
  s_add_u32 s89, s89, s47         ; grp*16+mem
  s_lshr_b32 s46, s47, 1          ; b
  s_and_b32 s43, s47, 1           ; split
{'' if TAIL else '''  s_lshl_b32 s89, s28, 6
  s_lshl_b32 s31, s46, 3
  s_add_u32 s89, s89, s31
  s_add_u32 s89, s89, s29
  s_lshl_b32 s89, s89, 1
  s_add_u32 s89, s89, s43'''}
  s_mov_b32 s40, {SEL_LO:#x}
  s_mov_b32 s41, {SEL_HI:#x}
  s_mov_b32 s42, {C_BITS:#x}
  v_lshlrev_b32 v1, 8, v{NR}
  v_lshl_add_u32 v1, v{GR}, 4, v1
  v_lshlrev_b32 v2, 10, v{GR}
  v_lshl_add_u32 v2, v{NR}, 4, v2  ; voffV = g*1024 + n*16
  v_lshlrev_b32 v{E0}, 16, v{GR}
  v_lshl_add_u32 v{E0}, v{NR}, 2, v{E0}   ; voffW = g*65536 + n*4
  v_lshlrev_b32 v{E1}, 10, v{NR}
  v_lshl_add_u32 v{E1}, v{GR}, 4, v{E1}   ; voffX = n*1024 + g*16
  v_mov_b32 v{VZ}, 0
  s_waitcnt lgkmcnt(0)
  s_cmp_eq_u32 s28, 0
  s_cselect_b32 s4, s4, s74       ; x
  s_cselect_b32 s5, s5, s75
  s_cselect_b32 s6, s6, s76       ; k
  s_cselect_b32 s7, s7, s77
  s_cselect_b32 s8, s8, s78       ; v
  s_cselect_b32 s9, s9, s79
  s_cselect_b32 s10, s10, s80     ; wq
  s_cselect_b32 s11, s11, s81
  s_cselect_b32 s72, s72, s82     ; wo
  s_cselect_b32 s73, s73, s83""")
    srd(a, 48, 10, 11, 512 * 4096 * 2)
    srd(a, 52, 4, 5, 8192)
    srd(a, 16, 6, 7, 0x8000000)
    srd(a, 20, 8, 9, 0x8000000)
    srd(a, 24, 12, 13, WS_SIZE)
    srd(a, 56, 72, 73, 4096 * 512 * 2)
    srd(a, 60, 84, 85, 8192 * 2)
    srd(a, 64, 86, 87, 256)
    stamp(0)
    a(f"""  ; K/V byte base = (b*8+hkv)*2MiB + split*1MiB
  s_lshl_b32 s71, s46, 3
  s_add_u32 s71, s71, s29
  s_lshl_b32 s71, s71, 21
  s_lshl_b32 s34, s43, 20
  s_add_u32 s71, s71, s34""")

    ROT = int(opts.get('rot', '0'))
    if ROT:
        a(f"""  s_mul_i32 s45, s2, {ROT}
  s_and_b32 s45, s45, 127""")
    def setaddr(tile_sreg):
        if ROT:
            a(f"""  s_add_u32 s33, {tile_sreg}, s45
  s_and_b32 s33, s33, 127
  s_lshl_b32 s33, s33, 13
  s_add_u32 s33, s33, s71
  s_add_u32 s34, s33, 4096""")
            return
        a(f"""  s_lshl_b32 s33, {tile_sreg}, 13
  s_add_u32 s33, s33, s71
  s_add_u32 s34, s33, 4096""")
    def kloads(st):
        K0 = KV0 + 64 * st
        for t in range(2):
            for j in range(4):
                r = K0 + (t * 4 + j) * 4
                a(f"  buffer_load_dwordx4 v[{r}:{r+3}], v1, s[16:19], s{33+t} offen offset:{j*64} {ldflags}")
    def vloads(st):
        V0 = KV0 + 64 * st + 32
        for i in range(8):
            r = V0 + i * 4
            a(f"  buffer_load_dwordx4 v[{r}:{r+3}], v2, s[20:23], s{33+(i>>2)} offen offset:{(i&3)*256} {ldflags}")
    def grab():
        a(f"""  s_mov_b64 exec, 1
  ds_add_rtn_u32 v{GRB}, v{CADDR}, v{ONE}
  s_mov_b64 exec, -1""")
    def grab_read(sreg):
        a(f"""  s_waitcnt lgkmcnt(0)
  v_readfirstlane_b32 {sreg}, v{GRB}""")

    a(f"""  v_mov_b32 v{CADDR}, {L_R3+16}
  v_mov_b32 v{ONE}, 1
  s_or_b32 s31, s2, s30
  s_cmp_lg_u32 s31, 0
  s_cbranch_scc1 L_nozero
  v_lshlrev_b32 v{E2}, 8, v{LANE}
  v_cmp_gt_u32 vcc, 48, v{LANE}
  s_mov_b32 s31, {WS_CNT:#x}
  s_and_saveexec_b64 s[36:37], vcc
  buffer_store_dword v{VZ}, v{E2}, s[24:27], s31 offen sc1
  s_mov_b64 exec, s[36:37]
L_nozero:
  s_lshl_b32 s31, s30, 19         ; w*64*8192
  s_lshl_b32 s32, s29, 10         ; hkv*1024
  s_add_u32 s31, s31, s32
  s_lshl_b32 s32, s47, 6          ; mem*64
  s_add_u32 s31, s31, s32
  s_lshl_b32 s33, s30, 7          ; x soffset""")
    for i in range(16):
        a(f"""  s_add_u32 s34, s31, {((i>>3)*32+(i&7))*8192:#x}
  buffer_load_dword v{W0+i}, v{E0}, s[48:51], s34 offen""")
    a(f"""  buffer_load_dwordx4 v[{X0}:{X0+3}], v{E1}, s[52:55], s33 offen
  buffer_load_dwordx4 v[{X0+4}:{X0+7}], v{E1}, s[52:55], s33 offen offset:64
  s_cmp_eq_u32 s30, 0
  s_cbranch_scc1 L_w0_nopf
  s_sub_u32 s35, s30, 1""")
    setaddr("s35")
    a(f"""  s_waitcnt vmcnt(0)
  s_cmp_gt_u32 s30, {WIN}
  s_cbranch_scc1 L_w_join""")
    kloads(0); vloads(0)
    a(f"""  s_branch L_w_join
L_w0_nopf:
  v_mov_b32 v{GRB}, 14
  s_mov_b64 exec, 1
  ds_write_b32 v{CADDR}, v{GRB}
  ds_write_b32 v{CADDR}, v{VZ} offset:4
  s_mov_b64 exec, -1
  s_waitcnt vmcnt(0)
  s_cmp_lg_u32 s2, 0
  s_cbranch_scc1 L_w_join
  s_mov_b64 exec, 1
  buffer_store_dword v{ONE}, v{VZ}, s[64:67], 0 offen sc1
  s_mov_b64 exec, -1
L_w_join:""")
    stamp(1)
    for g32 in range(2):
        wb = W0 + 8 * g32
        for e in range(2):
            sel = "s40" if e == 0 else "s41"
            for q in range(4):
                a(f"  v_perm_b32 v{B0+4*e+q}, v{wb+2*q+1}, v{wb+2*q}, {sel}")
        a("  s_nop 1")
        for e in range(2):
            c = "0" if g32 == 0 else f"v[{D0+4*e}:{D0+4*e+3}]"
            a(f"  v_mfma_f32_16x16x32_bf16 v[{D0+4*e}:{D0+4*e+3}], v[{X0+4*g32}:{X0+4*g32+3}], v[{B0+4*e}:{B0+4*e+3}], {c}")
    a(f"""  s_nop 7
  s_nop 3
  v_lshlrev_b32 v{E2}, 10, v3          ; w*1024
  v_lshl_add_u32 v{E2}, v{GR}, 9, v{E2}   ; + g*512
  v_lshl_add_u32 v{E2}, v{NR}, 3, v{E2}   ; + n*8
  v_cmp_gt_u32 vcc, 32, v{LANE}
  s_and_saveexec_b64 s[36:37], vcc""")
    for e in range(2):
        for r in range(4):
            a(f"  ds_write_b32 v{E2}, v{D0+4*e+r} offset:{r*128+e*4}")
    a(f"""  s_mov_b64 exec, s[36:37]
  s_waitcnt lgkmcnt(0)
  s_barrier
  s_cmp_lg_u32 s30, 0
  s_cbranch_scc1 L_q_others
  v_lshlrev_b32 v{E2}, 4, v{LANE}""")
    for w in range(8):
        a(f"  ds_read_b128 v[{W0+4*w}:{W0+4*w+3}], v{E2} offset:{w*1024}")
    a("  s_waitcnt lgkmcnt(0)")
    for st in (1, 2, 4):
        for w in range(0, 8, 2 * st):
            for c in range(4):
                a(f"  v_add_f32 v{W0+4*w+c}, v{W0+4*w+c}, v{W0+4*(w+st)+c}")
    GO = "ds_write_b32 v%d, v%d offset:4" % (CADDR, ONE)
    a(f"""  v_cvt_pk_bf16_f32 v{W0}, v{W0}, v{W0+1}
  v_cvt_pk_bf16_f32 v{W0+1}, v{W0+2}, v{W0+3}
  v_lshrrev_b32 v{E2}, 3, v{LANE}
  v_lshlrev_b32 v{E2}, 10, v{E2}
  v_and_b32 v{E1}, 7, v{LANE}
  v_lshl_add_u32 v{E2}, v{E1}, 3, v{E2}
  s_lshl_b32 s31, s68, 13
  s_lshl_b32 s32, s47, 6
  s_add_u32 s31, s31, s32
  buffer_store_dwordx2 v[{W0}:{W0+1}], v{E2}, s[24:27], s31 offen sc1
  s_mov_b64 exec, 1
  s_mov_b32 s38, {SPIN}
L_f_poll:
  buffer_load_dword v{E1}, v{VZ}, s[64:67], 0 offen sc1
  s_waitcnt vmcnt(0)
  v_readfirstlane_b32 s39, v{E1}
  s_cmp_lg_u32 s39, 0
  s_cbranch_scc1 L_f_done
  s_sleep 2
  s_sub_u32 s38, s38, 1
  s_cmp_lg_u32 s38, 0
  s_cbranch_scc1 L_f_poll
L_f_done:""")
    stamp(2)
    a(f"""  s_lshl_b32 s31, s68, 8
  s_add_u32 s31, s31, {WS_CNT + 8192:#x}          ; S1 counter
  buffer_atomic_add v{ONE}, v{VZ}, s[24:27], s31 offen sc1
  s_mov_b32 s38, {SPIN}
L_q_poll:
  buffer_load_dword v{E1}, v{VZ}, s[24:27], s31 offen sc1
  s_waitcnt vmcnt(0)
  v_readfirstlane_b32 s39, v{E1}
  s_cmp_ge_u32 s39, 16
  s_cbranch_scc1 L_q_done
  s_sleep 2
  s_sub_u32 s38, s38, 1
  s_cmp_lg_u32 s38, 0
  s_cbranch_scc1 L_q_poll
L_q_done:
  s_mov_b64 exec, -1""")
    stamp(3)
    a(f"""  ; wave 0 fetches q[grp][b][512] (1 KB) and puts it into LDS
  s_lshl_b32 s31, s68, 13
  s_lshl_b32 s32, s46, 10
  s_add_u32 s31, s31, s32
  v_lshlrev_b32 v{E2}, 4, v{LANE}
  buffer_load_dwordx4 v[{W0}:{W0+3}], v{E2}, s[24:27], s31 offen sc1
  s_waitcnt vmcnt(0)
  ds_write_b128 v{E2}, v[{W0}:{W0+3}] offset:{L_Q}
  s_waitcnt lgkmcnt(0)
  s_branch L_q_wait
L_q_others:
  s_cmp_le_u32 s30, {WIN}
  s_cbranch_scc1 L_slot0_issued
  s_sub_u32 s32, s30, {WIN}
  s_mov_b32 s38, {SPIN}
L_tok0:
  ds_read_b32 v{E1}, v{CADDR} offset:4
  s_waitcnt lgkmcnt(0)
  v_readfirstlane_b32 s39, v{E1}
  s_cmp_ge_u32 s39, s32
  s_cbranch_scc1 L_tok0_ok
  s_sleep 1
  s_sub_u32 s38, s38, 1
  s_cmp_lg_u32 s38, 0
  s_cbranch_scc1 L_tok0
L_tok0_ok:""")
    kloads(0); vloads(0)
    a(f"""L_slot0_issued:
  s_waitcnt vmcnt(0)
  s_mov_b64 exec, 1
  ds_add_u32 v{CADDR}, v{ONE} offset:4
  s_mov_b64 exec, -1
  s_add_u32 s32, s30, {7 - WIN}     ; (w-1+7) - (WIN-1)
  s_mov_b32 s38, {SPIN}
L_tok1:
  ds_read_b32 v{E1}, v{CADDR} offset:4
  s_waitcnt lgkmcnt(0)
  v_readfirstlane_b32 s39, v{E1}
  s_cmp_ge_u32 s39, s32
  s_cbranch_scc1 L_tok1_ok
  s_sleep 1
  s_sub_u32 s38, s38, 1
  s_cmp_lg_u32 s38, 0
  s_cbranch_scc1 L_tok1
L_tok1_ok:
  s_add_u32 s35, s30, 6""")
    setaddr("s35")
    kloads(1); vloads(1)
    a(f"""  s_waitcnt vmcnt(0)
  s_mov_b64 exec, 1
  ds_add_u32 v{CADDR}, v{ONE} offset:4
  s_mov_b64 exec, -1
  s_waitcnt lgkmcnt(0)""")
    a(f"""L_q_wait:
  s_barrier""")
    for i in range(16):
        a(f"  v_mov_b32 v{Q0+i}, 0")
    a(f"""  v_cmp_gt_u32 vcc, 4, v{NR}
  s_and_saveexec_b64 s[36:37], vcc""")
    for j in range(4):
        a(f"  ds_read_b128 v[{Q0+4*j}:{Q0+4*j+3}], v1 offset:{L_Q+j*64}")
    a("  s_mov_b64 exec, s[36:37]")
    for i in range(32):
        a(f"  v_mov_b32 v{O0+i}, 0")
    a(f"""  v_mov_b32 v{MRUN}, 0xff800000
  v_mov_b32 v{MC}, 0xff800000
  v_mov_b32 v{L}, 0
  s_waitcnt lgkmcnt(0)""")
    stamp(4)

    def body(st, issue, wk, wv, tag):
        K0 = KV0 + 64 * st
        V0 = K0 + 32
        a(f"  s_waitcnt vmcnt({wk})")
        for t in range(2):
            sreg = S0 if t == 0 else S1
            for j in range(4):
                r = K0 + (t * 4 + j) * 4
                c = "0" if j == 0 else f"v[{sreg}:{sreg+3}]"
                a(f"  v_mfma_f32_16x16x32_bf16 v[{sreg}:{sreg+3}], v[{r}:{r+3}], v[{Q0+4*j}:{Q0+4*j+3}], {c}")
        if issue:
            setaddr("s35")
            kloads(st)
            grab_read("s44")
        else:
            a("  s_nop 7")
        a(f"""  s_nop 1
  v_max3_f32 v{MX}, v{S0}, v{S0+1}, v{S0+2}
  v_max3_f32 v{MX}, v{MX}, v{S0+3}, v{S1}
  v_max3_f32 v{MX}, v{MX}, v{S1+1}, v{S1+2}
  v_max_f32 v{MX}, v{MX}, v{S1+3}
  v_cmp_gt_f32 vcc, v{MX}, v{MRUN}
  s_cbranch_vccz L_fast_{tag}
  v_mov_b32 v{T0}, v{MX}
  s_nop 1
  v_permlane16_swap_b32 v{MX}, v{T0}
  v_max_f32 v{MX}, v{MX}, v{T0}
  v_mov_b32 v{T0}, v{MX}
  s_nop 1
  v_permlane32_swap_b32 v{MX}, v{T0}
  v_max_f32 v{MX}, v{MX}, v{T0}
  v_max_f32 v{MX}, v{MX}, v{MRUN}      ; m_new
  v_sub_f32 v{T0}, v{MRUN}, v{MX}
  v_mul_f32 v{T0}, s42, v{T0}
  v_exp_f32 v{AL}, v{T0}
  v_mov_b32 v{MRUN}, v{MX}
  v_mul_f32 v{MC}, s42, v{MX}
  v_mul_f32 v{L}, v{L}, v{AL}""")
        for i in range(32):
            a(f"  v_mul_f32 v{O0+i}, v{O0+i}, v{AL}")
        a(f"L_fast_{tag}:")
        for i in range(8):
            a(f"  v_fma_f32 v{S0+i}, v{S0+i}, s42, -v{MC}")
        for i in range(8):
            a(f"  v_exp_f32 v{S0+i}, v{S0+i}")
        a(f"""  s_nop 0
  v_add_f32 v{T0}, v{S0}, v{S0+1}
  v_add_f32 v{T1}, v{S0+2}, v{S0+3}
  v_add_f32 v{L}, v{L}, v{T0}
  v_add_f32 v{L}, v{L}, v{T1}
  v_add_f32 v{T0}, v{S0+4}, v{S0+5}
  v_add_f32 v{T1}, v{S0+6}, v{S0+7}
  v_add_f32 v{L}, v{L}, v{T0}
  v_add_f32 v{L}, v{L}, v{T1}""")
        for q in range(4):
            a(f"  v_cvt_pk_bf16_f32 v{P0+q}, v{S0+2*q}, v{S0+2*q+1}")
        a(f"  s_waitcnt vmcnt({wv})")
        def perms(e):
            sel = "s40" if (e & 1) == 0 else "s41"
            base = A0 + 4 * (e % 3)
            for q in range(4):
                lo = V0 + 4 * (2 * q) + (e >> 1)
                hi = V0 + 4 * (2 * q + 1) + (e >> 1)
                a(f"  v_perm_b32 v{base+q}, v{hi}, v{lo}, {sel}")
        def pv(e):
            base = A0 + 4 * (e % 3)
            o = O0 + 4 * e
            a(f"  v_mfma_f32_16x16x32_bf16 v[{o}:{o+3}], v[{base}:{base+3}], v[{P0}:{P0+3}], v[{o}:{o+3}]")
        perms(0)
        for e in range(8):
            if e + 1 < 8:
                perms(e + 1)
            else:
                a("  s_nop 1")
            pv(e)
        if issue:
            vloads(st)

    a(f"""  s_cmp_lg_u32 s30, 0
  s_cbranch_scc1 L_first_grab""")
    grab(); grab_read("s35")
    a(f"""  s_cmp_ge_u32 s35, 128
  s_cbranch_scc1 L_loop_done""")
    setaddr("s35"); kloads(0); vloads(0)
    grab(); grab_read("s35")
    a(f"""  s_cmp_ge_u32 s35, 128
  s_cbranch_scc1 L_single""")
    setaddr("s35"); kloads(1); vloads(1)
    a("L_first_grab:")
    grab(); grab_read("s35")
    a("L_a_loop:")
    for st in range(2):
        a(f"""  s_cmp_ge_u32 s35, 128
  s_cbranch_scc1 L_drain_{st}""")
        grab()
        body(st, True, 24, 24, f"m{st}")
        a("  s_mov_b32 s35, s44")
    a("  s_branch L_a_loop")
    for st in range(2):
        a(f"L_drain_{st}:")
        body(st, False, 24, 16, f"d{st}a")
        body(1 - st, False, 8, 0, f"d{st}b")
        a("  s_branch L_loop_done")
    a("L_single:")
    body(0, False, 8, 0, "sg")
    a("L_loop_done:")
    stamp(5)
    WOR = KV0
    DO = KV0 + 16
    a(f"""  ; wo loads: rows hkv*512 + ksl*256 + w*32 + g*8 + i ; cols slab*64 + n*4 ; ksl = mem>>3, slab = mem&7
  v_lshlrev_b32 v{E0}, 13, v{GR}
  v_lshl_add_u32 v{E0}, v{NR}, 3, v{E0}    ; g*8192 + n*8
  s_lshr_b32 s69, s47, 3          ; ksl
  s_and_b32 s70, s47, 7           ; slab
  s_lshl_b32 s31, s29, 19         ; hkv*512*1024
  s_lshl_b32 s32, s69, 18
  s_add_u32 s31, s31, s32
  s_lshl_b32 s32, s30, 15
  s_add_u32 s31, s31, s32
  s_lshl_b32 s32, s70, 7
  s_add_u32 s31, s31, s32
  s_add_u32 s32, s31, 4096""")
    for i in range(8):
        a(f"  buffer_load_dwordx2 v[{WOR+2*i}:{WOR+2*i+1}], v{E0}, s[56:59], s{31+(i>>2)} offen offset:{(i&3)*1024}")
    a(f"""  s_nop 3
  ; vaddr = w*2048 + h*512 + g*128
  v_lshlrev_b32 v{E0}, 11, v3
  v_lshl_add_u32 v{E0}, v{NR}, 9, v{E0}
  v_lshl_add_u32 v{E0}, v{GR}, 7, v{E0}
  v_lshlrev_b32 v{E1}, 6, v3
  v_lshl_add_u32 v{E1}, v{NR}, 4, v{E1}
  v_lshl_add_u32 v{E1}, v{GR}, 2, v{E1}
  v_lshlrev_b32 v{E2}, 4, v3
  v_lshl_add_u32 v{E2}, v{NR}, 2, v{E2}
  v_cmp_gt_u32 vcc, 4, v{NR}
  s_and_saveexec_b64 s[36:37], vcc""")
    for e in range(8):
        for r in range(4):
            a(f"  ds_write_b32 v{E0}, v{O0+4*e+r} offset:{r*32+e*4}")
    a(f"""  ds_write_b32 v{E1}, v{L} offset:16384
  ds_write_b32 v{E2}, v{MRUN} offset:16896
  s_mov_b64 exec, s[36:37]
  s_waitcnt lgkmcnt(0)
  s_barrier
  v_lshrrev_b32 v4, 7, v0         ; h
  v_lshlrev_b32 v5, 2, v4         ; h*4
  v_lshlrev_b32 v6, 4, v4         ; h*16
  v_lshlrev_b32 v7, 2, v0         ; t*4 = h*512+dim*4""")
    for w in range(8):
        a(f"  ds_read_b32 v{20+w}, v5 offset:{16896+w*16}")
    for w in range(8):
        a(f"  ds_read_b128 v[{32+4*w}:{35+4*w}], v6 offset:{16384+w*64}")
    for w in range(8):
        a(f"  ds_read_b32 v{64+w}, v7 offset:{w*2048}")
    a(f"""  s_waitcnt lgkmcnt(0)
  v_max3_f32 v8, v20, v21, v22
  v_max3_f32 v8, v8, v23, v24
  v_max3_f32 v8, v8, v25, v26
  v_max_f32 v8, v8, v27""")
    for w in range(8):
        a(f"  v_sub_f32 v{20+w}, v{20+w}, v8")
    for w in range(8):
        a(f"  v_mul_f32 v{20+w}, s42, v{20+w}")
    for w in range(8):
        a(f"  v_exp_f32 v{20+w}, v{20+w}")
    a("""  s_nop 0
  v_mov_b32 v9, 0
  v_mov_b32 v10, 0""")
    for w in range(8):
        b = 32 + 4 * w
        a(f"""  v_add_f32 v{b}, v{b}, v{b+1}
  v_add_f32 v{b+2}, v{b+2}, v{b+3}
  v_add_f32 v{b}, v{b}, v{b+2}
  v_fmac_f32 v9, v{20+w}, v{b}
  v_fmac_f32 v10, v{20+w}, v{64+w}""")
    a(f"""  ; store O: WS_PO + wg*2048 + t*4
  s_lshl_b32 s31, s89, 11
  s_add_u32 s31, s31, {WS_PO:#x}
  buffer_store_dword v10, v7, s[24:27], s31 offen sc1
  v_and_b32 v11, 127, v0
  v_cmp_eq_u32 vcc, 0, v11
  v_lshlrev_b32 v12, 3, v4
  s_lshl_b32 s31, s89, 5
  s_add_u32 s31, s31, {WS_PML:#x}
  s_and_saveexec_b64 s[36:37], vcc
  buffer_store_dwordx2 v[8:9], v12, s[24:27], s31 offen sc1
  s_mov_b64 exec, s[36:37]
{'' if TAIL else '  s_branch L_fin'}
  s_waitcnt vmcnt(0)
  s_barrier""")
    stamp(6)
    a(f"""  s_cmp_lg_u32 s30, 0
  s_cbranch_scc1 L_p_wait
  s_lshl_b32 s31, s68, 8
  s_add_u32 s31, s31, {WS_CNT + 4096:#x}          ; S2 counter
  v_mov_b32 v{E1}, 1
  s_mov_b64 s[36:37], exec
  s_mov_b64 exec, 1
  buffer_atomic_add v{E1}, v{VZ}, s[24:27], s31 offen sc1
  s_mov_b32 s38, {SPIN}
L_p_poll:
  buffer_load_dword v{E1}, v{VZ}, s[24:27], s31 offen sc1
  s_waitcnt vmcnt(0)
  v_readfirstlane_b32 s39, v{E1}
  s_cmp_ge_u32 s39, 16
  s_cbranch_scc1 L_p_done
  s_sleep {PSLEEP}
  s_sub_u32 s38, s38, 1
  s_cmp_lg_u32 s38, 0
  s_cbranch_scc1 L_p_poll
L_p_done:
  s_mov_b64 exec, s[36:37]""")
    stamp(7)
    a(f"""L_p_wait:
  s_barrier
  v_lshrrev_b32 v7, 5, v{LANE}
  v_and_b32 v8, 31, v{LANE}
  v_lshlrev_b32 v9, 9, v7
  v_lshl_add_u32 v9, v8, 4, v9
  v_lshlrev_b32 v10, 3, v7         ; hi*8
  s_lshl_b32 s33, s68, 4
  s_lshl_b32 s34, s30, 1
  s_add_u32 s33, s33, s34          ; grp*16 + b'*2
  s_lshl_b32 s36, s33, 11
  s_lshl_b32 s37, s69, 10
  s_add_u32 s36, s36, s37
  s_add_u32 s36, s36, {WS_PO:#x}
  s_lshl_b32 s38, s33, 5
  s_lshl_b32 s37, s69, 4
  s_add_u32 s38, s38, s37
  s_add_u32 s38, s38, {WS_PML:#x}
  buffer_load_dwordx4 v[32:35], v9, s[24:27], s36 offen sc1
  buffer_load_dwordx4 v[36:39], v9, s[24:27], s36 offen offset:2048 sc1
  buffer_load_dwordx2 v[40:41], v10, s[24:27], s38 offen sc1
  buffer_load_dwordx2 v[42:43], v10, s[24:27], s38 offen offset:32 sc1""")
    for e in range(4):
        sel = "s40" if (e & 1) == 0 else "s41"
        for q in range(4):
            lo = WOR + 2 * (2 * q) + (e >> 1)
            hi = WOR + 2 * (2 * q + 1) + (e >> 1)
            a(f"  v_perm_b32 v{56+4*e+q}, v{hi}, v{lo}, {sel}")
    a(f"""  s_waitcnt vmcnt(0)
  v_max_f32 v44, v40, v42
  v_sub_f32 v40, v40, v44
  v_sub_f32 v42, v42, v44
  v_mul_f32 v40, s42, v40
  v_mul_f32 v42, s42, v42
  v_exp_f32 v40, v40
  v_exp_f32 v42, v42
  s_nop 0
  v_mul_f32 v45, v40, v41
  v_fmac_f32 v45, v42, v43
  v_rcp_f32 v45, v45
  s_nop 0
  v_mul_f32 v40, v40, v45
  v_mul_f32 v42, v42, v45""")
    for i in range(4):
        a(f"""  v_mul_f32 v{32+i}, v{32+i}, v40
  v_fmac_f32 v{32+i}, v{36+i}, v42""")
    a(f"""  v_cvt_pk_bf16_f32 v32, v32, v33
  v_cvt_pk_bf16_f32 v33, v34, v35
  v_lshlrev_b32 v11, 9, v3
  v_lshl_add_u32 v11, v{LANE}, 3, v11     ; b'*512 + lane*8
  ds_write_b64 v11, v[32:33] offset:{L_R1}
  s_waitcnt lgkmcnt(0)
  s_barrier
  v_lshlrev_b32 v11, 9, v{NR}
  v_lshl_add_u32 v11, v3, 6, v11
  v_lshl_add_u32 v11, v{GR}, 4, v11       ; n*512 + w*64 + g*16
  ds_read_b128 v[48:51], v11 offset:{L_R1}
  s_waitcnt lgkmcnt(0)
  s_nop 1""")
    for e in range(4):
        a(f"  v_mfma_f32_16x16x32_bf16 v[{DO+4*e}:{DO+4*e+3}], v[48:51], v[{56+4*e}:{59+4*e}], 0")
    a(f"""  v_lshlrev_b32 v8, 10, v{GR}
  v_lshl_add_u32 v8, v{NR}, 4, v8
  v_lshl_add_u32 v8, v3, 11, v8    ; w*2048 + g*1024 + n*16
  v_cmp_gt_u32 vcc, 32, v{LANE}
  s_nop 7
  s_nop 3
  s_and_saveexec_b64 s[36:37], vcc""")
    for e in range(4):
        for r in range(4):
            a(f"  ds_write_b32 v8, v{DO+4*e+r} offset:{L_R2+r*256+e*4}")
    a(f"""  s_mov_b64 exec, s[36:37]
  s_waitcnt lgkmcnt(0)
  s_barrier
  v_lshlrev_b32 v9, 2, v0""")
    for w in range(8):
        a(f"  ds_read_b32 v{16+w}, v9 offset:{L_R2+w*2048}")
    a(f"""  s_waitcnt lgkmcnt(0)
  v_add_f32 v16, v16, v17
  v_add_f32 v18, v18, v19
  v_add_f32 v20, v20, v21
  v_add_f32 v22, v22, v23
  v_add_f32 v16, v16, v18
  v_add_f32 v20, v20, v22
  v_add_f32 v16, v16, v20
  s_lshl_b32 s33, s28, 3
  s_add_u32 s33, s33, s70          ; p*8+slab
  s_lshl_b32 s34, s33, 15
  s_add_u32 s34, s34, {WS_POUT:#x}
  s_lshl_b32 s35, s29, 1
  s_add_u32 s35, s35, s69
  s_lshl_b32 s35, s35, 11
  s_add_u32 s35, s35, s34
  buffer_store_dword v16, v9, s[24:27], s35 offen sc1
  s_waitcnt vmcnt(0)
  s_barrier""")
    stamp(8)
    a(f"""
  s_cmp_lg_u32 s30, 0
  s_cbranch_scc1 L_o_wait
  s_lshl_b32 s31, s33, 8
  s_add_u32 s31, s31, {WS_CNT:#x}          ; S3 counter
  v_mov_b32 v{E1}, 1
  s_mov_b64 s[36:37], exec
  s_mov_b64 exec, 1
  buffer_atomic_add v{E1}, v{VZ}, s[24:27], s31 offen sc0 sc1
  s_waitcnt vmcnt(0)
  v_mov_b32 v{E2}, {L_R3}
  ds_write_b32 v{E2}, v{E1}
  s_waitcnt lgkmcnt(0)
  s_mov_b64 exec, s[36:37]
L_o_wait:
  s_barrier
  v_mov_b32 v{E2}, {L_R3}
  ds_read_b32 v{E1}, v{E2}
  s_waitcnt lgkmcnt(0)
  v_readfirstlane_b32 s39, v{E1}
  s_cmp_lg_u32 s39, 15
  s_cbranch_scc1 L_fin
  ; last arriver: reduce the 16 partials of (p,slab)""")
    for ks in range(16):
        a(f"""  s_add_u32 s35, s34, {ks*2048}
  buffer_load_dword v{16+ks}, v9, s[24:27], s35 offen sc1""")
    a(f"""  ; out byte = b'*2048 + p*1024 + slab*128 + col*2
  v_lshlrev_b32 v10, 11, v3
  v_lshl_add_u32 v10, v{LANE}, 1, v10
  s_lshl_b32 s35, s33, 7
  s_waitcnt vmcnt(0)""")
    for st in (1, 2, 4, 8):
        for i in range(0, 16, 2 * st):
            a(f"  v_add_f32 v{16+i}, v{16+i}, v{16+i+st}")
    a(f"""  v_cvt_pk_bf16_f32 v16, v16, v16
  buffer_store_short v16, v10, s[60:63], s35 offen
  s_waitcnt vmcnt(0)
L_fin:""")
    stamp(9)
    if STAMP:
        a(f"""  s_cmp_lg_u32 s30, 0
  s_cbranch_scc1 L_end
  v_lshlrev_b32 v10, 2, v{LANE}
  s_lshl_b32 s35, s2, 6
  s_add_u32 s35, s35, 0x180000
  v_cmp_gt_u32 vcc, 16, v{LANE}
  s_and_saveexec_b64 s[36:37], vcc
  buffer_store_dword v91, v10, s[24:27], s35 offen
  s_mov_b64 exec, s[36:37]""")
        if STAMP == 2:
            a(f"""  v_cmp_gt_u32 vcc, 11, v{LANE}
  s_and_saveexec_b64 s[36:37], vcc
  buffer_atomic_umax v91, v10, s[64:67], 0 offen offset:16 sc1
  s_mov_b64 exec, s[36:37]""")
    a(f"""L_end:
  s_endpgm""")
    acc = (nvgpr + 3) // 4 * 4
    a('.section .rodata,"a"')
    a(f""".p2align 6
.amdhsa_kernel {name}
  .amdhsa_next_free_vgpr {max(nvgpr,160)}
  .amdhsa_next_free_sgpr 96
  .amdhsa_accum_offset {max(acc,160)}
  .amdhsa_group_segment_fixed_size 0
  .amdhsa_kernarg_size 104
  .amdhsa_user_sgpr_count 2
  .amdhsa_user_sgpr_kernarg_segment_ptr 1
  .amdhsa_system_sgpr_workgroup_id_x 1
.end_amdhsa_kernel""")

TAILL = '''
; @launch kernel=oproj_kernel grid=(256,1,1) block=(512,1,1) lds=24576
; @launch kernel=final_kernel grid=(32,1,1) block=(256,1,1) lds=0'''
TAILM = '''
; @launch kernel=oproj_kernel grid=(256,1,1) block=(512,1,1) lds=24576'''
def main():
    out = sys.argv[1] if len(sys.argv) > 1 else f"cdna_kernels/{NAME}.s"
    opts = {}
    for kv in sys.argv[2:]:
        k, v = kv.split("=", 1)
        opts[k] = v
    a = Asm()
    a(f"""; concat_heads gqa decode: fused q-proj -> flash-decode -> combine -> out-proj (16-workgroup group hand-offs)
; @launch grid=(256,1,1) block=(512,1,1) lds={LDS_BYTES}
.amdgcn_target "amdgcn-amd-amdhsa--gfx950"
.text""")
    gen(a, opts)
    open(out, "w").write(a.text())

main()
```

```python
import math, struct, sys

NAME = "concat_heads__gqa_block_cached__gqa_block_cached__decode"

def f32bits(x):
    return struct.unpack("<I", struct.pack("<f", x))[0]

C_SCALE = (128.0 ** -0.5) * math.log2(math.e)
C_BITS = f32bits(C_SCALE)

WS_Q = 0
WS_PO = 0x40000
WS_PML = 0xC0000
WS_POUT = 0x100000
WS_CNT = 0x1C0000
WS_QP = 0x200000
WS_SIZE = 0x600000

L_R1 = 17408
L_R2 = 25600
L_R3 = 41984
L_Q = 42240
LDS_BYTES = 43264

SEL_LO = 0x05040100
SEL_HI = 0x07060302

class Asm:
    def __init__(self):
        self.lines = []
    def __call__(self, s):
        for ln in s.strip("\n").split("\n"):
            self.lines.append(ln)
    def text(self):
        return "\n".join(self.lines) + "\n"

def srd(a, d, lo, hi, size):
    a(f"""  s_mov_b32 s{d}, s{lo}
  s_and_b32 s{d+1}, s{hi}, 0xffff
  s_mov_b32 s{d+2}, {size:#x}
  s_mov_b32 s{d+3}, 0x00020000""")

def kernel_header(a, name):
    a(f""".globl {name}
.p2align 8
.type {name},@function
{name}:""")

def kernel_desc(a, name, vgpr, sgpr=96):
    acc = (vgpr + 3) // 4 * 4
    a(f""".p2align 6
.amdhsa_kernel {name}
  .amdhsa_next_free_vgpr {vgpr}
  .amdhsa_next_free_sgpr {sgpr}
  .amdhsa_accum_offset {acc}
  .amdhsa_group_segment_fixed_size 0
  .amdhsa_kernarg_size 104
  .amdhsa_user_sgpr_count 2
  .amdhsa_user_sgpr_kernarg_segment_ptr 1
  .amdhsa_system_sgpr_workgroup_id_x 1
.end_amdhsa_kernel""")

def gen_qproj(a, PF=0):
    name = "qproj_kernel"
    kernel_header(a, name)
    a(f"""  s_cmp_ge_u32 s2, 128
  s_cbranch_scc1 {'L_pf' if PF else 'L_q_end'}
  s_load_dwordx2 s[4:5], s[0:1], 0
  s_load_dwordx2 s[6:7], s[0:1], 24
  s_load_dwordx2 s[8:9], s[0:1], 40
  s_load_dwordx2 s[10:11], s[0:1], 64
  s_load_dwordx2 s[12:13], s[0:1], 96
  v_and_b32 v1, 63, v0
  v_lshrrev_b32 v5, 6, v0
  v_and_b32 v2, 15, v1            ; n
  v_lshrrev_b32 v3, 4, v1         ; g
  v_readfirstlane_b32 s30, v5
  s_lshr_b32 s28, s2, 6           ; p
  s_and_b32 s29, s2, 63           ; slab
  s_mov_b32 s40, {SEL_LO:#x}
  s_mov_b32 s41, {SEL_HI:#x}
  v_lshlrev_b32 v6, 16, v3        ; g*65536
  v_lshl_add_u32 v6, v2, 3, v6    ; + n*8  -> voffset W
  v_lshlrev_b32 v7, 10, v2        ; n*1024
  v_lshl_add_u32 v7, v3, 4, v7    ; + g*16 -> voffset x
  s_waitcnt lgkmcnt(0)
  s_cmp_eq_u32 s28, 0
  s_cselect_b32 s4, s4, s8
  s_cselect_b32 s5, s5, s9
  s_cselect_b32 s6, s6, s10
  s_cselect_b32 s7, s7, s11""")
    srd(a, 16, 4, 5, 8192)
    srd(a, 20, 6, 7, 512 * 4096 * 2)
    srd(a, 24, 12, 13, WS_SIZE)
    a(f"""  s_cmp_ge_u32 s2, 32
  s_cbranch_scc1 L_q_nocnt
  s_cmp_lg_u32 s30, 0
  s_cbranch_scc1 L_q_nocnt
  s_lshl_b32 s31, s2, 8
  s_add_u32 s31, s31, {WS_CNT:#x}
  v_mov_b32 v8, 0
  s_mov_b64 exec, 1
  buffer_store_dword v8, v8, s[24:27], s31 offen
  s_mov_b64 exec, -1
L_q_nocnt:""")
    a(f"""  s_lshl_b32 s31, s30, 19
  s_lshl_b32 s32, s29, 7
  s_add_u32 s31, s31, s32
  s_lshl_b32 s33, s30, 7          ; x soffset = w*64*2""")
    for i in range(16):
        a(f"""  s_add_u32 s34, s31, {((i>>3)*32+(i&7))*8192:#x}
  buffer_load_dwordx2 v[{16+2*i}:{17+2*i}], v6, s[20:23], s34 offen""")
    a(f"""  buffer_load_dwordx4 v[48:51], v7, s[16:19], s33 offen
  buffer_load_dwordx4 v[52:55], v7, s[16:19], s33 offen offset:64
  s_waitcnt vmcnt(0)""")
    for grp in range(2):
        wb = 16 + 16 * grp
        for e in range(4):
            sel = "s40" if (e & 1) == 0 else "s41"
            for q in range(4):
                lo = wb + 2 * (2 * q) + (e >> 1)
                hi = wb + 2 * (2 * q + 1) + (e >> 1)
                a(f"  v_perm_b32 v{56+4*e+q}, v{hi}, v{lo}, {sel}")
        a("  s_nop 1")
        for e in range(4):
            c = "0" if grp == 0 else f"v[{72+4*e}:{75+4*e}]"
            a(f"  v_mfma_f32_16x16x32_bf16 v[{72+4*e}:{75+4*e}], v[{48+4*grp}:{51+4*grp}], v[{56+4*e}:{59+4*e}], {c}")
    a(f"""  s_nop 7
  s_nop 7
  v_lshlrev_b32 v8, 10, v3        ; g*1024
  v_lshl_add_u32 v8, v2, 4, v8    ; + n*16
  v_lshl_add_u32 v8, v5, 11, v8   ; + w*2048
  v_cmp_gt_u32 vcc, 32, v1
  s_and_saveexec_b64 s[36:37], vcc""")
    for e in range(4):
        for r in range(4):
            a(f"  ds_write_b32 v8, v{72+4*e+r} offset:{r*256+e*4}")
    a(f"""  s_mov_b64 exec, s[36:37]
  s_waitcnt lgkmcnt(0)
  s_barrier
  v_lshlrev_b32 v9, 2, v0         ; t*4 = b*256 + col*4""")
    for w in range(8):
        a(f"  ds_read_b32 v{16+w}, v9 offset:{w*2048}")
    a(f"""  s_waitcnt lgkmcnt(0)
  v_add_f32 v16, v16, v17
  v_add_f32 v18, v18, v19
  v_add_f32 v20, v20, v21
  v_add_f32 v22, v22, v23
  v_add_f32 v16, v16, v18
  v_add_f32 v20, v20, v22
  v_add_f32 v16, v16, v20
  v_cvt_pk_bf16_f32 v16, v16, v16
  v_lshlrev_b32 v10, 13, v5
  v_lshl_add_u32 v10, v1, 1, v10
  s_lshl_b32 s34, s28, 16
  s_lshl_b32 s35, s29, 7
  s_add_u32 s34, s34, s35
  buffer_store_short v16, v10, s[24:27], s34 offen
L_q_end:
  s_endpgm""")
    if PF:
        a(f"""L_pf:
  s_cmp_ge_u32 s2, 384
  s_cbranch_scc1 L_q_end
  s_load_dwordx4 s[4:7], s[0:1], 8      ; A_k, A_v
  s_load_dwordx4 s[8:11], s[0:1], 48    ; B_k, B_v
  s_sub_u32 s3, s2, 128
  s_and_b32 s29, s3, 7            ; hkv
  s_lshr_b32 s28, s3, 7           ; p
  s_lshr_b32 s47, s3, 3
  s_and_b32 s47, s47, 15          ; mem
  s_lshr_b32 s46, s47, 1          ; b
  s_and_b32 s43, s47, 1           ; split
  s_lshl_b32 s31, s46, 3
  s_add_u32 s31, s31, s29
  s_lshl_b32 s31, s31, 21
  s_lshl_b32 s32, s43, 20
  s_add_u32 s31, s31, s32
  v_lshlrev_b32 v1, 4, v0
  s_waitcnt lgkmcnt(0)
  s_cmp_eq_u32 s28, 0
  s_cselect_b32 s4, s4, s8
  s_cselect_b32 s5, s5, s9
  s_cselect_b32 s6, s6, s10
  s_cselect_b32 s7, s7, s11""")
        srd(a, 16, 4, 5, 0x8000000)
        srd(a, 20, 6, 7, 0x8000000)
        for i in range(PF):
            a(f"""  s_add_u32 s32, s31, {i*8192}
  buffer_load_dwordx4 v[{8+8*(i%8)}:{11+8*(i%8)}], v1, s[16:19], s32 offen
  buffer_load_dwordx4 v[{12+8*(i%8)}:{15+8*(i%8)}], v1, s[20:23], s32 offen""")
            if i % 8 == 7:
                a("  s_waitcnt vmcnt(0)")
        a("""  s_waitcnt vmcnt(0)
  s_endpgm""")
    return name, 96

def gen_oproj(a, merge=False):
    name = "oproj_kernel"
    TAILA = f"""  ; POUT addr = WS_POUT + ((p*16+ks)*8 + b)*2048 + (slab*64+col)*4
  v_lshlrev_b32 v10, 11, v5
  v_lshl_add_u32 v10, v1, 2, v10
  s_lshl_b32 s33, s28, 4
  s_add_u32 s33, s33, s29
  s_lshl_b32 s33, s33, 14
  s_lshl_b32 s34, s43, 8
  s_add_u32 s33, s33, s34
  s_add_u32 s33, s33, {WS_POUT:#x}
  buffer_store_dword v16, v10, s[24:27], s33 offen"""
    sums = "\n".join(f"  v_add_f32 v{16+i}, v{16+i}, v{16+i+st}" for st in (1, 2, 4, 8) for i in range(0, 16, 2 * st))
    lds_ = "\n".join(f"  s_add_u32 s35, s34, {ks*2048}\n  buffer_load_dword v{16+ks}, v9, s[24:27], s35 offen sc1" for ks in range(16))
    TAILB = f"""  ; POUT byte = WS_POUT + ((p*8+slab)*16 + ks)*2048 + t*4
  s_lshl_b32 s33, s28, 3
  s_add_u32 s33, s33, s43          ; p*8+slab
  s_lshl_b32 s34, s33, 15
  s_add_u32 s34, s34, {WS_POUT:#x}
  s_lshl_b32 s35, s29, 11
  s_add_u32 s35, s35, s34
  buffer_store_dword v16, v9, s[24:27], s35 offen sc1
  s_waitcnt vmcnt(0)
  s_barrier
  s_cmp_lg_u32 s30, 0
  s_cbranch_scc1 L_oo_wait
  s_lshl_b32 s31, s33, 8
  s_add_u32 s31, s31, {WS_CNT:#x}
  v_mov_b32 v12, 1
  v_mov_b32 v13, 0
  s_mov_b64 exec, 1
  buffer_atomic_add v12, v13, s[24:27], s31 offen sc0 sc1
  s_waitcnt vmcnt(0)
  ds_write_b32 v13, v12
  s_waitcnt lgkmcnt(0)
  s_mov_b64 exec, -1
L_oo_wait:
  s_barrier
  v_mov_b32 v13, 0
  ds_read_b32 v12, v13
  s_waitcnt lgkmcnt(0)
  v_readfirstlane_b32 s39, v12
  s_cmp_lg_u32 s39, 15
  s_cbranch_scc1 L_o_end
{lds_}
  v_lshlrev_b32 v10, 11, v5
  v_lshl_add_u32 v10, v1, 1, v10
  s_lshl_b32 s35, s33, 7
  s_waitcnt vmcnt(0)
{sums}
  v_cvt_pk_bf16_f32 v16, v16, v16
  buffer_store_short v16, v10, s[60:63], s35 offen"""
    kernel_header(a, name)
    a(f"""  s_cmp_ge_u32 s2, 256
  s_cbranch_scc1 L_o_end
  s_load_dwordx2 s[4:5], s[0:1], 32     ; A_wo
  s_load_dwordx2 s[8:9], s[0:1], 72     ; B_wo
  s_load_dwordx2 s[12:13], s[0:1], 96   ; ws
  s_load_dwordx4 s[84:87], s[0:1], 80
  v_and_b32 v1, 63, v0
  v_lshrrev_b32 v5, 6, v0
  v_and_b32 v2, 15, v1            ; n
  v_lshrrev_b32 v3, 4, v1         ; g
  v_readfirstlane_b32 s30, v5
  s_lshr_b32 s28, s2, 7           ; p
  s_lshr_b32 s29, s2, 3
  s_and_b32 s29, s29, 15          ; ks
  s_and_b32 s43, s2, 7            ; slab
  s_mov_b32 s40, {SEL_LO:#x}
  s_mov_b32 s41, {SEL_HI:#x}
  s_mov_b32 s42, {C_BITS:#x}
  v_lshlrev_b32 v6, 13, v3        ; g*8192
  v_lshl_add_u32 v6, v2, 3, v6    ; + n*8
  s_waitcnt lgkmcnt(0)
  s_cmp_eq_u32 s28, 0
  s_cselect_b32 s4, s4, s8
  s_cselect_b32 s5, s5, s9""")
    srd(a, 20, 4, 5, 4096 * 512 * 2)
    srd(a, 24, 12, 13, WS_SIZE)
    srd(a, 60, 84, 85, 8192 * 2)
    srd(a, 64, 86, 87, 256)
    a(f"""  ; wo soffset = (ks*256 + w*32)*1024 + slab*128
  s_lshl_b32 s31, s29, 18
  s_lshl_b32 s32, s30, 15
  s_add_u32 s31, s31, s32
  s_lshl_b32 s32, s43, 7
  s_add_u32 s31, s31, s32
  s_add_u32 s32, s31, 4096""")
    for i in range(8):
        a(f"  buffer_load_dwordx2 v[{16+2*i}:{17+2*i}], v6, s[20:23], s{31+(i>>2)} offen offset:{(i&3)*1024}")
    a(f"""  v_lshrrev_b32 v7, 5, v1         ; hi
  v_and_b32 v8, 31, v1
  v_lshlrev_b32 v9, 9, v7         ; hi*512
  v_lshl_add_u32 v9, v8, 4, v9
  v_lshlrev_b32 v10, 3, v7        ; hi*8
  s_lshl_b32 s33, s28, 6
  s_lshl_b32 s34, s30, 3
  s_add_u32 s33, s33, s34
  s_lshr_b32 s34, s29, 1
  s_add_u32 s33, s33, s34         ; unit
  s_and_b32 s35, s29, 1           ; ks&1
  s_lshl_b32 s36, s33, 12         ; unit*2*2048
  s_lshl_b32 s37, s35, 10         ; (ks&1)*2*512
  s_add_u32 s36, s36, s37
  s_add_u32 s36, s36, {WS_PO:#x}
  s_lshl_b32 s38, s33, 6          ; unit*2*32
  s_lshl_b32 s37, s35, 4
  s_add_u32 s38, s38, s37
  s_add_u32 s38, s38, {WS_PML:#x}
  buffer_load_dwordx4 v[32:35], v9, s[24:27], s36 offen
  buffer_load_dwordx4 v[36:39], v9, s[24:27], s36 offen offset:2048
  buffer_load_dwordx2 v[40:41], v10, s[24:27], s38 offen
  buffer_load_dwordx2 v[42:43], v10, s[24:27], s38 offen offset:32
  s_waitcnt vmcnt(0)
  v_max_f32 v44, v40, v42
  v_sub_f32 v40, v40, v44
  v_sub_f32 v42, v42, v44
  v_mul_f32 v40, s42, v40
  v_mul_f32 v42, s42, v42
  v_exp_f32 v40, v40
  v_exp_f32 v42, v42
  s_nop 0
  v_mul_f32 v45, v40, v41
  v_fmac_f32 v45, v42, v43
  v_rcp_f32 v45, v45
  s_nop 0
  v_mul_f32 v40, v40, v45
  v_mul_f32 v42, v42, v45""")
    for i in range(4):
        a(f"""  v_mul_f32 v{32+i}, v{32+i}, v40
  v_fmac_f32 v{32+i}, v{36+i}, v42""")
    a(f"""  v_cvt_pk_bf16_f32 v32, v32, v33
  v_cvt_pk_bf16_f32 v33, v34, v35
  v_lshlrev_b32 v11, 9, v5
  v_lshl_add_u32 v11, v1, 3, v11
  ds_write_b64 v11, v[32:33]
  s_waitcnt lgkmcnt(0)
  s_barrier
  v_lshlrev_b32 v11, 9, v2
  v_lshl_add_u32 v11, v5, 6, v11
  v_lshl_add_u32 v11, v3, 4, v11
  ds_read_b128 v[48:51], v11""")
    for e in range(4):
        sel = "s40" if (e & 1) == 0 else "s41"
        for q in range(4):
            lo = 16 + 2 * (2 * q) + (e >> 1)
            hi = 16 + 2 * (2 * q + 1) + (e >> 1)
            a(f"  v_perm_b32 v{56+4*e+q}, v{hi}, v{lo}, {sel}")
    a("  s_waitcnt lgkmcnt(0)")
    a("  s_nop 1")
    for e in range(4):
        a(f"  v_mfma_f32_16x16x32_bf16 v[{72+4*e}:{75+4*e}], v[48:51], v[{56+4*e}:{59+4*e}], 0")
    a(f"""  s_nop 7
  s_nop 7
  v_lshlrev_b32 v8, 10, v3        ; g*1024
  v_lshl_add_u32 v8, v2, 4, v8    ; + n*16
  v_lshl_add_u32 v8, v5, 11, v8   ; + w*2048
  v_cmp_gt_u32 vcc, 32, v1
  s_and_saveexec_b64 s[44:45], vcc""")
    for e in range(4):
        for r in range(4):
            a(f"  ds_write_b32 v8, v{72+4*e+r} offset:{8192+r*256+e*4}")
    a(f"""  s_mov_b64 exec, s[44:45]
  s_waitcnt lgkmcnt(0)
  s_barrier
  v_lshlrev_b32 v9, 2, v0""")
    for w in range(8):
        a(f"  ds_read_b32 v{16+w}, v9 offset:{8192+w*2048}")
    a(f"""  s_waitcnt lgkmcnt(0)
  v_add_f32 v16, v16, v17
  v_add_f32 v18, v18, v19
  v_add_f32 v20, v20, v21
  v_add_f32 v22, v22, v23
  v_add_f32 v16, v16, v18
  v_add_f32 v20, v20, v22
  v_add_f32 v16, v16, v20
{TAILA if not merge else TAILB}
L_o_end:
  s_endpgm""")
    return name, 96

def gen_final(a):
    name = "final_kernel"
    kernel_header(a, name)
    a(f"""  s_cmp_ge_u32 s2, 32
  s_cbranch_scc1 L_f_end
  s_load_dwordx2 s[4:5], s[0:1], 80     ; out
  s_load_dwordx2 s[12:13], s[0:1], 96   ; ws
  s_lshl_b32 s3, s2, 8
  v_add_u32 v1, s3, v0            ; o = b*1024 + p*512 + n
  v_lshrrev_b32 v2, 10, v1        ; b
  v_bfe_u32 v3, v1, 9, 1          ; p
  v_and_b32 v4, 511, v1           ; n
  v_lshlrev_b32 v5, 18, v3
  v_lshl_add_u32 v5, v2, 11, v5
  v_lshl_add_u32 v5, v4, 2, v5
  v_lshlrev_b32 v6, 1, v1
  s_waitcnt lgkmcnt(0)""")
    srd(a, 16, 4, 5, 8192 * 2)
    srd(a, 24, 12, 13, WS_SIZE)
    for ks in range(16):
        a(f"""  s_mov_b32 s30, {WS_POUT + ks*16384:#x}
  buffer_load_dword v{16+ks}, v5, s[24:27], s30 offen""")
    a("  s_waitcnt vmcnt(0)")
    for st in (1, 2, 4, 8):
        for i in range(0, 16, 2 * st):
            a(f"  v_add_f32 v{16+i}, v{16+i}, v{16+i+st}")
    a(f"""  v_cvt_pk_bf16_f32 v16, v16, v16
  buffer_store_short v16, v6, s[16:19], 0 offen
L_f_end:
  s_endpgm""")
    return name, 40

def gen(a, opts):
    TAIL = 1
    GOEARLY = int(opts.get('goearly','1'))
    WFIRST = int(opts.get('wfirst','0'))
    STAMP = int(opts.get("stamp", "0"))
    def stamp(idx):
        if not STAMP:
            return
        a(f"""  s_memrealtime s[90:91]
  s_waitcnt lgkmcnt(0)
  s_mov_b32 s{92 if False else 88}, s90
  v_writelane_b32 v{91}, s90, {idx}""")
        if idx == 0:
            a(f"""  s_not_b32 s90, s90
  v_writelane_b32 v91, s90, 10""")
    name = NAME + "_kernel"
    NIT = 16
    ldflags = opts.get("ldflags", "nt")
    depth = 2
    PSLEEP = int(opts.get("psleep", "1"))
    SPIN = int(opts.get("spin", "400000"))
    Q0 = 4; O0 = 20; S0 = 52; S1 = 56; P0 = 60; A0 = 64
    MRUN = 76; MC = 77; L = 78; T0 = 79; T1 = 80; MX = 81; AL = 82
    NR = 83; GR = 84; VQ = 85; E0 = 86; E1 = 87; E2 = 88; LANE = 89; VZ = 90; GRB = 85; CADDR = 92; ONE = 93
    KV0 = 96
    nvgpr = KV0 + 64 * depth
    STEP = 8192 * 8
    W0 = 20; X0 = 36; B0 = 44; D0 = 52
    a(f""".globl {name}
.p2align 8
.type {name},@function
{name}:
  s_cmp_ge_u32 s2, 256
  s_cbranch_scc1 L_end
  s_load_dwordx8 s[4:11], s[0:1], 0     ; A_x, A_k, A_v, A_wq
  s_load_dwordx8 s[72:79], s[0:1], 32   ; A_wo, B_x, B_k, B_v
  s_load_dwordx8 s[80:87], s[0:1], 64
  s_load_dwordx2 s[12:13], s[0:1], 96   ; ws
  v_and_b32 v{LANE}, 63, v0
  v_lshrrev_b32 v3, 6, v0
  v_and_b32 v{NR}, 15, v{LANE}          ; n / h
  v_lshrrev_b32 v{GR}, 4, v{LANE}       ; g
  v_readfirstlane_b32 s30, v3
  s_and_b32 s29, s2, 7            ; hkv
  s_lshr_b32 s28, s2, 7           ; p
  s_lshr_b32 s47, s2, 3
  s_and_b32 s47, s47, 15          ; mem
  s_lshl_b32 s68, s28, 3
  s_add_u32 s68, s68, s29
  s_lshl_b32 s89, s68, 4
  s_add_u32 s89, s89, s47         ; grp*16+mem
  s_lshr_b32 s46, s47, 1          ; b
  s_and_b32 s43, s47, 1           ; split
{'' if TAIL else '''  s_lshl_b32 s89, s28, 6
  s_lshl_b32 s31, s46, 3
  s_add_u32 s89, s89, s31
  s_add_u32 s89, s89, s29
  s_lshl_b32 s89, s89, 1
  s_add_u32 s89, s89, s43'''}
  s_mov_b32 s40, {SEL_LO:#x}
  s_mov_b32 s41, {SEL_HI:#x}
  s_mov_b32 s42, {C_BITS:#x}
  v_lshlrev_b32 v1, 8, v{NR}
  v_lshl_add_u32 v1, v{GR}, 4, v1
  v_lshlrev_b32 v2, 10, v{GR}
  v_lshl_add_u32 v2, v{NR}, 4, v2  ; voffV = g*1024 + n*16
  v_lshlrev_b32 v{E0}, 16, v{GR}
  v_lshl_add_u32 v{E0}, v{NR}, 3, v{E0}   ; voffW = g*65536 + n*8
  v_lshlrev_b32 v{E1}, 10, v{NR}
  v_lshl_add_u32 v{E1}, v{GR}, 4, v{E1}   ; voffX = n*1024 + g*16
  v_mov_b32 v{VZ}, 0
  s_waitcnt lgkmcnt(0)
  s_cmp_eq_u32 s28, 0
  s_cselect_b32 s4, s4, s74       ; x
  s_cselect_b32 s5, s5, s75
  s_cselect_b32 s6, s6, s76       ; k
  s_cselect_b32 s7, s7, s77
  s_cselect_b32 s8, s8, s78       ; v
  s_cselect_b32 s9, s9, s79
  s_cselect_b32 s10, s10, s80     ; wq
  s_cselect_b32 s11, s11, s81
  s_cselect_b32 s72, s72, s82     ; wo
  s_cselect_b32 s73, s73, s83""")
    srd(a, 48, 10, 11, 512 * 4096 * 2)
    srd(a, 52, 4, 5, 8192)
    srd(a, 16, 6, 7, 0x8000000)
    srd(a, 20, 8, 9, 0x8000000)
    srd(a, 24, 12, 13, WS_SIZE)
    srd(a, 56, 72, 73, 4096 * 512 * 2)
    srd(a, 60, 84, 85, 8192 * 2)
    srd(a, 64, 86, 87, 256)
    stamp(0)
    a(f"""  ; K/V byte base = (b*8+hkv)*2MiB + split*1MiB
  s_lshl_b32 s71, s46, 3
  s_add_u32 s71, s71, s29
  s_lshl_b32 s71, s71, 21
  s_lshl_b32 s34, s43, 20
  s_add_u32 s71, s71, s34""")

    ROT = int(opts.get('rot', '0'))
    if ROT:
        a(f"""  s_mul_i32 s45, s2, {ROT}
  s_and_b32 s45, s45, 127""")
    def setaddr(tile_sreg):
        if ROT:
            a(f"""  s_add_u32 s33, {tile_sreg}, s45
  s_and_b32 s33, s33, 127
  s_lshl_b32 s33, s33, 13
  s_add_u32 s33, s33, s71
  s_add_u32 s34, s33, 4096""")
            return
        a(f"""  s_lshl_b32 s33, {tile_sreg}, 13
  s_add_u32 s33, s33, s71
  s_add_u32 s34, s33, 4096""")
    def kloads(st):
        K0 = KV0 + 64 * st
        for t in range(2):
            for j in range(4):
                r = K0 + (t * 4 + j) * 4
                a(f"  buffer_load_dwordx4 v[{r}:{r+3}], v1, s[16:19], s{33+t} offen offset:{j*64} {ldflags}")
    def vloads(st):
        V0 = KV0 + 64 * st + 32
        for i in range(8):
            r = V0 + i * 4
            a(f"  buffer_load_dwordx4 v[{r}:{r+3}], v2, s[20:23], s{33+(i>>2)} offen offset:{(i&3)*256} {ldflags}")
    def grab():
        a(f"""  s_mov_b64 exec, 1
  ds_add_rtn_u32 v{GRB}, v{CADDR}, v{ONE}
  s_mov_b64 exec, -1""")
    def grab_read(sreg):
        a(f"""  s_waitcnt lgkmcnt(0)
  v_readfirstlane_b32 {sreg}, v{GRB}""")

    a(f"""  v_mov_b32 v{CADDR}, {L_R3+16}
  v_mov_b32 v{ONE}, 1
  s_or_b32 s31, s2, s30
  s_cmp_lg_u32 s31, 0
  s_cbranch_scc1 L_nozero
  v_lshlrev_b32 v{E2}, 8, v{LANE}
  v_cmp_gt_u32 vcc, 48, v{LANE}
  s_mov_b32 s31, {WS_CNT:#x}
  s_and_saveexec_b64 s[36:37], vcc
  buffer_store_dword v{VZ}, v{E2}, s[24:27], s31 offen sc1
  s_mov_b64 exec, s[36:37]
L_nozero:
  s_lshl_b32 s31, s47, 18         ; mem*32*8192
  s_lshl_b32 s32, s29, 10         ; hkv*1024
  s_add_u32 s31, s31, s32
  s_lshl_b32 s32, s30, 7          ; w*128
  s_add_u32 s31, s31, s32
  s_lshl_b32 s33, s47, 6""")
    for i in range(8):
        a(f"""  s_add_u32 s34, s31, {i*8192:#x}
  buffer_load_dwordx2 v[{W0+2*i}:{W0+2*i+1}], v{E0}, s[48:51], s34 offen""")
    a(f"""  buffer_load_dwordx4 v[{X0}:{X0+3}], v{E1}, s[52:55], s33 offen
  s_cmp_lg_u32 s30, 0
  s_cbranch_scc1 L_w_join
  v_mov_b32 v{GRB}, 14
  s_mov_b64 exec, 1
  ds_write_b32 v{CADDR}, v{GRB}
  ds_write_b32 v{CADDR}, v{VZ} offset:4
  s_mov_b64 exec, -1
  s_cmp_lg_u32 s2, 0
  s_cbranch_scc1 L_w_join
  s_waitcnt vmcnt(9)
  s_mov_b64 exec, 1
  buffer_store_dword v{ONE}, v{VZ}, s[64:67], 0 offen sc1
  s_mov_b64 exec, -1
L_w_join:
  s_waitcnt vmcnt(0)""")
    stamp(1)
    QB = 44
    QD = 60
    for e in range(4):
        sel = "s40" if (e & 1) == 0 else "s41"
        for q in range(4):
            lo = W0 + 2 * (2 * q) + (e >> 1)
            hi = W0 + 2 * (2 * q + 1) + (e >> 1)
            a(f"  v_perm_b32 v{QB+4*e+q}, v{hi}, v{lo}, {sel}")
    a("  s_nop 1")
    for e in range(4):
        a(f"  v_mfma_f32_16x16x32_bf16 v[{QD+4*e}:{QD+4*e+3}], v[{X0}:{X0+3}], v[{QB+4*e}:{QB+4*e+3}], 0")
    a(f"""  ; partial q store: WS_QP + (grp*16+mem)*16384 + (g*4+r)*2048 + w*256 + n*16
  v_lshlrev_b32 v{E2}, 13, v{GR}
  v_lshl_add_u32 v{E2}, v{NR}, 4, v{E2}
  s_lshl_b32 s31, s89, 14
  s_lshl_b32 s32, s30, 8
  s_add_u32 s31, s31, s32
  s_add_u32 s31, s31, {WS_QP:#x}
  s_add_u32 s32, s31, 4096
  v_cmp_gt_u32 vcc, 32, v{LANE}
  s_nop 7""")
    for r in range(4):
        for e in range(4):
            a(f"  v_mov_b32 v{W0+4*r+e}, v{QD+4*e+r}")
    a("  s_and_saveexec_b64 s[36:37], vcc")
    for r in range(4):
        a(f"  buffer_store_dwordx4 v[{W0+4*r}:{W0+4*r+3}], v{E2}, s[24:27], s{31+(r>>1)} offen offset:{(r&1)*2048} sc1")
    a(f"""  s_mov_b64 exec, s[36:37]
  s_waitcnt vmcnt(0)
  s_cmp_eq_u32 s30, 0
  s_cbranch_scc1 L_b1
  s_sub_u32 s35, s30, 1""")
    setaddr("s35")
    kloads(0); vloads(0)
    GO = "ds_write_b32 v%d, v%d offset:4" % (CADDR, ONE)
    a(f"""L_b1:
  s_waitcnt lgkmcnt(0)
  s_barrier
  s_cmp_lg_u32 s30, 0
  s_cbranch_scc1 L_q_others
  s_mov_b64 exec, 1
  s_mov_b32 s38, {SPIN}
L_f_poll:
  buffer_load_dword v{E1}, v{VZ}, s[64:67], 0 offen sc1
  s_waitcnt vmcnt(0)
  v_readfirstlane_b32 s39, v{E1}
  s_cmp_lg_u32 s39, 0
  s_cbranch_scc1 L_f_done
  s_sleep 2
  s_sub_u32 s38, s38, 1
  s_cmp_lg_u32 s38, 0
  s_cbranch_scc1 L_f_poll
L_f_done:""")
    stamp(2)
    a(f"""  s_lshl_b32 s31, s68, 8
  s_add_u32 s31, s31, {WS_CNT + 8192:#x}          ; S1 counter
  buffer_atomic_add v{ONE}, v{VZ}, s[24:27], s31 offen sc1
  {GO if GOEARLY else ""}
  s_mov_b32 s38, {SPIN}
L_q_poll:
  buffer_load_dword v{E1}, v{VZ}, s[24:27], s31 offen sc1
  s_waitcnt vmcnt(0)
  v_readfirstlane_b32 s39, v{E1}
  s_cmp_ge_u32 s39, 16
  s_cbranch_scc1 L_q_done
  s_sleep 2
  s_sub_u32 s38, s38, 1
  s_cmp_lg_u32 s38, 0
  s_cbranch_scc1 L_q_poll
L_q_done:
  s_mov_b64 exec, -1""")
    stamp(3)
    a(f"""  ; wave 0 sums the 16 partial q rows of its batch: WS_QP + (grp*16+m)*16384 + b*2048
  s_lshl_b32 s31, s68, 18
  s_lshl_b32 s32, s46, 11
  s_add_u32 s31, s31, s32
  s_add_u32 s31, s31, {WS_QP:#x}
  v_lshlrev_b32 v{E2}, 4, v{LANE}""")
    for m in range(16):
        a(f"""  s_add_u32 s32, s31, {m*16384}
  buffer_load_dwordx4 v[{KV0+8*m}:{KV0+8*m+3}], v{E2}, s[24:27], s32 offen sc1
  buffer_load_dwordx4 v[{KV0+8*m+4}:{KV0+8*m+7}], v{E2}, s[24:27], s32 offen offset:1024 sc1""")
    a(f"""  {"" if GOEARLY else GO}
  s_waitcnt vmcnt(0)""")
    for st in (1, 2, 4, 8):
        for m in range(0, 16, 2 * st):
            for c in range(8):
                a(f"  v_add_f32 v{KV0+8*m+c}, v{KV0+8*m+c}, v{KV0+8*(m+st)+c}")
    a(f"""  v_cvt_pk_bf16_f32 v{KV0}, v{KV0}, v{KV0+1}
  v_cvt_pk_bf16_f32 v{KV0+1}, v{KV0+2}, v{KV0+3}
  v_cvt_pk_bf16_f32 v{KV0+2}, v{KV0+4}, v{KV0+5}
  v_cvt_pk_bf16_f32 v{KV0+3}, v{KV0+6}, v{KV0+7}
  v_lshlrev_b32 v{E2}, 3, v{LANE}
  ds_write_b64 v{E2}, v[{KV0}:{KV0+1}] offset:{L_Q}
  ds_write_b64 v{E2}, v[{KV0+2}:{KV0+3}] offset:{L_Q+512}
  s_waitcnt lgkmcnt(0)
  s_branch L_q_wait
L_q_others:
  s_mov_b32 s38, {SPIN}
L_go_poll:
  ds_read_b32 v{E1}, v{CADDR} offset:4
  s_waitcnt lgkmcnt(0)
  v_readfirstlane_b32 s39, v{E1}
  s_cmp_lg_u32 s39, 0
  s_cbranch_scc1 L_go_done
  s_sleep 2
  s_sub_u32 s38, s38, 1
  s_cmp_lg_u32 s38, 0
  s_cbranch_scc1 L_go_poll
L_go_done:
  s_add_u32 s35, s30, 6""")
    setaddr("s35")
    kloads(1); vloads(1)
    a(f"""L_q_wait:
  s_barrier""")
    for i in range(16):
        a(f"  v_mov_b32 v{Q0+i}, 0")
    a(f"""  v_cmp_gt_u32 vcc, 4, v{NR}
  s_and_saveexec_b64 s[36:37], vcc""")
    for j in range(4):
        a(f"  ds_read_b128 v[{Q0+4*j}:{Q0+4*j+3}], v1 offset:{L_Q+j*64}")
    a("  s_mov_b64 exec, s[36:37]")
    for i in range(32):
        a(f"  v_mov_b32 v{O0+i}, 0")
    a(f"""  v_mov_b32 v{MRUN}, 0xff800000
  v_mov_b32 v{MC}, 0xff800000
  v_mov_b32 v{L}, 0
  s_waitcnt lgkmcnt(0)""")
    stamp(4)

    def body(st, issue, wk, wv, tag):
        K0 = KV0 + 64 * st
        V0 = K0 + 32
        a(f"  s_waitcnt vmcnt({wk})")
        for t in range(2):
            sreg = S0 if t == 0 else S1
            for j in range(4):
                r = K0 + (t * 4 + j) * 4
                c = "0" if j == 0 else f"v[{sreg}:{sreg+3}]"
                a(f"  v_mfma_f32_16x16x32_bf16 v[{sreg}:{sreg+3}], v[{r}:{r+3}], v[{Q0+4*j}:{Q0+4*j+3}], {c}")
        if issue:
            setaddr("s35")
            kloads(st)
            grab_read("s44")
        else:
            a("  s_nop 7")
        a(f"""  s_nop 1
  v_max3_f32 v{MX}, v{S0}, v{S0+1}, v{S0+2}
  v_max3_f32 v{MX}, v{MX}, v{S0+3}, v{S1}
  v_max3_f32 v{MX}, v{MX}, v{S1+1}, v{S1+2}
  v_max_f32 v{MX}, v{MX}, v{S1+3}
  v_cmp_gt_f32 vcc, v{MX}, v{MRUN}
  s_cbranch_vccz L_fast_{tag}
  v_mov_b32 v{T0}, v{MX}
  s_nop 1
  v_permlane16_swap_b32 v{MX}, v{T0}
  v_max_f32 v{MX}, v{MX}, v{T0}
  v_mov_b32 v{T0}, v{MX}
  s_nop 1
  v_permlane32_swap_b32 v{MX}, v{T0}
  v_max_f32 v{MX}, v{MX}, v{T0}
  v_max_f32 v{MX}, v{MX}, v{MRUN}      ; m_new
  v_sub_f32 v{T0}, v{MRUN}, v{MX}
  v_mul_f32 v{T0}, s42, v{T0}
  v_exp_f32 v{AL}, v{T0}
  v_mov_b32 v{MRUN}, v{MX}
  v_mul_f32 v{MC}, s42, v{MX}
  v_mul_f32 v{L}, v{L}, v{AL}""")
        for i in range(32):
            a(f"  v_mul_f32 v{O0+i}, v{O0+i}, v{AL}")
        a(f"L_fast_{tag}:")
        for i in range(8):
            a(f"  v_fma_f32 v{S0+i}, v{S0+i}, s42, -v{MC}")
        for i in range(8):
            a(f"  v_exp_f32 v{S0+i}, v{S0+i}")
        a(f"""  s_nop 0
  v_add_f32 v{T0}, v{S0}, v{S0+1}
  v_add_f32 v{T1}, v{S0+2}, v{S0+3}
  v_add_f32 v{L}, v{L}, v{T0}
  v_add_f32 v{L}, v{L}, v{T1}
  v_add_f32 v{T0}, v{S0+4}, v{S0+5}
  v_add_f32 v{T1}, v{S0+6}, v{S0+7}
  v_add_f32 v{L}, v{L}, v{T0}
  v_add_f32 v{L}, v{L}, v{T1}""")
        for q in range(4):
            a(f"  v_cvt_pk_bf16_f32 v{P0+q}, v{S0+2*q}, v{S0+2*q+1}")
        a(f"  s_waitcnt vmcnt({wv})")
        def perms(e):
            sel = "s40" if (e & 1) == 0 else "s41"
            base = A0 + 4 * (e % 3)
            for q in range(4):
                lo = V0 + 4 * (2 * q) + (e >> 1)
                hi = V0 + 4 * (2 * q + 1) + (e >> 1)
                a(f"  v_perm_b32 v{base+q}, v{hi}, v{lo}, {sel}")
        def pv(e):
            base = A0 + 4 * (e % 3)
            o = O0 + 4 * e
            a(f"  v_mfma_f32_16x16x32_bf16 v[{o}:{o+3}], v[{base}:{base+3}], v[{P0}:{P0+3}], v[{o}:{o+3}]")
        perms(0)
        for e in range(8):
            if e + 1 < 8:
                perms(e + 1)
            else:
                a("  s_nop 1")
            pv(e)
        if issue:
            vloads(st)

    a(f"""  s_cmp_lg_u32 s30, 0
  s_cbranch_scc1 L_first_grab""")
    grab(); grab_read("s35")
    a(f"""  s_cmp_ge_u32 s35, 128
  s_cbranch_scc1 L_loop_done""")
    setaddr("s35"); kloads(0); vloads(0)
    grab(); grab_read("s35")
    a(f"""  s_cmp_ge_u32 s35, 128
  s_cbranch_scc1 L_single""")
    setaddr("s35"); kloads(1); vloads(1)
    a("L_first_grab:")
    grab(); grab_read("s35")
    a("L_a_loop:")
    for st in range(2):
        a(f"""  s_cmp_ge_u32 s35, 128
  s_cbranch_scc1 L_drain_{st}""")
        grab()
        body(st, True, 24, 24, f"m{st}")
        a("  s_mov_b32 s35, s44")
    a("  s_branch L_a_loop")
    for st in range(2):
        a(f"L_drain_{st}:")
        body(st, False, 24, 16, f"d{st}a")
        body(1 - st, False, 8, 0, f"d{st}b")
        a("  s_branch L_loop_done")
    a("L_single:")
    body(0, False, 8, 0, "sg")
    a("L_loop_done:")
    stamp(5)
    WOR = KV0
    DO = KV0 + 16
    a(f"""  ; wo loads: rows hkv*512 + ksl*256 + w*32 + g*8 + i ; cols slab*64 + n*4 ; ksl = mem>>3, slab = mem&7
  v_lshlrev_b32 v{E0}, 13, v{GR}
  v_lshl_add_u32 v{E0}, v{NR}, 3, v{E0}    ; g*8192 + n*8
  s_lshr_b32 s69, s47, 3          ; ksl
  s_and_b32 s70, s47, 7           ; slab
  s_lshl_b32 s31, s29, 19         ; hkv*512*1024
  s_lshl_b32 s32, s69, 18
  s_add_u32 s31, s31, s32
  s_lshl_b32 s32, s30, 15
  s_add_u32 s31, s31, s32
  s_lshl_b32 s32, s70, 7
  s_add_u32 s31, s31, s32
  s_add_u32 s32, s31, 4096""")
    for i in range(8):
        a(f"  buffer_load_dwordx2 v[{WOR+2*i}:{WOR+2*i+1}], v{E0}, s[56:59], s{31+(i>>2)} offen offset:{(i&3)*1024}")
    a(f"""  s_nop 3
  ; vaddr = w*2048 + h*512 + g*128
  v_lshlrev_b32 v{E0}, 11, v3
  v_lshl_add_u32 v{E0}, v{NR}, 9, v{E0}
  v_lshl_add_u32 v{E0}, v{GR}, 7, v{E0}
  v_lshlrev_b32 v{E1}, 6, v3
  v_lshl_add_u32 v{E1}, v{NR}, 4, v{E1}
  v_lshl_add_u32 v{E1}, v{GR}, 2, v{E1}
  v_lshlrev_b32 v{E2}, 4, v3
  v_lshl_add_u32 v{E2}, v{NR}, 2, v{E2}
  v_cmp_gt_u32 vcc, 4, v{NR}
  s_and_saveexec_b64 s[36:37], vcc""")
    for e in range(8):
        for r in range(4):
            a(f"  ds_write_b32 v{E0}, v{O0+4*e+r} offset:{r*32+e*4}")
    a(f"""  ds_write_b32 v{E1}, v{L} offset:16384
  ds_write_b32 v{E2}, v{MRUN} offset:16896
  s_mov_b64 exec, s[36:37]
  s_waitcnt lgkmcnt(0)
  s_barrier
  v_lshrrev_b32 v4, 7, v0         ; h
  v_lshlrev_b32 v5, 2, v4         ; h*4
  v_lshlrev_b32 v6, 4, v4         ; h*16
  v_lshlrev_b32 v7, 2, v0         ; t*4 = h*512+dim*4""")
    for w in range(8):
        a(f"  ds_read_b32 v{20+w}, v5 offset:{16896+w*16}")
    for w in range(8):
        a(f"  ds_read_b128 v[{32+4*w}:{35+4*w}], v6 offset:{16384+w*64}")
    for w in range(8):
        a(f"  ds_read_b32 v{64+w}, v7 offset:{w*2048}")
    a(f"""  s_waitcnt lgkmcnt(0)
  v_max3_f32 v8, v20, v21, v22
  v_max3_f32 v8, v8, v23, v24
  v_max3_f32 v8, v8, v25, v26
  v_max_f32 v8, v8, v27""")
    for w in range(8):
        a(f"  v_sub_f32 v{20+w}, v{20+w}, v8")
    for w in range(8):
        a(f"  v_mul_f32 v{20+w}, s42, v{20+w}")
    for w in range(8):
        a(f"  v_exp_f32 v{20+w}, v{20+w}")
    a("""  s_nop 0
  v_mov_b32 v9, 0
  v_mov_b32 v10, 0""")
    for w in range(8):
        b = 32 + 4 * w
        a(f"""  v_add_f32 v{b}, v{b}, v{b+1}
  v_add_f32 v{b+2}, v{b+2}, v{b+3}
  v_add_f32 v{b}, v{b}, v{b+2}
  v_fmac_f32 v9, v{20+w}, v{b}
  v_fmac_f32 v10, v{20+w}, v{64+w}""")
    a(f"""  ; store O: WS_PO + wg*2048 + t*4
  s_lshl_b32 s31, s89, 11
  s_add_u32 s31, s31, {WS_PO:#x}
  buffer_store_dword v10, v7, s[24:27], s31 offen sc1
  v_and_b32 v11, 127, v0
  v_cmp_eq_u32 vcc, 0, v11
  v_lshlrev_b32 v12, 3, v4
  s_lshl_b32 s31, s89, 5
  s_add_u32 s31, s31, {WS_PML:#x}
  s_and_saveexec_b64 s[36:37], vcc
  buffer_store_dwordx2 v[8:9], v12, s[24:27], s31 offen sc1
  s_mov_b64 exec, s[36:37]
{'' if TAIL else '  s_branch L_fin'}
  s_waitcnt vmcnt(0)
  s_barrier""")
    stamp(6)
    a(f"""  s_cmp_lg_u32 s30, 0
  s_cbranch_scc1 L_p_wait
  s_lshl_b32 s31, s68, 8
  s_add_u32 s31, s31, {WS_CNT + 4096:#x}          ; S2 counter
  v_mov_b32 v{E1}, 1
  s_mov_b64 s[36:37], exec
  s_mov_b64 exec, 1
  buffer_atomic_add v{E1}, v{VZ}, s[24:27], s31 offen sc1
  s_mov_b32 s38, {SPIN}
L_p_poll:
  buffer_load_dword v{E1}, v{VZ}, s[24:27], s31 offen sc1
  s_waitcnt vmcnt(0)
  v_readfirstlane_b32 s39, v{E1}
  s_cmp_ge_u32 s39, 16
  s_cbranch_scc1 L_p_done
  s_sleep {PSLEEP}
  s_sub_u32 s38, s38, 1
  s_cmp_lg_u32 s38, 0
  s_cbranch_scc1 L_p_poll
L_p_done:
  s_mov_b64 exec, s[36:37]""")
    stamp(7)
    a(f"""L_p_wait:
  s_barrier
  v_lshrrev_b32 v7, 5, v{LANE}
  v_and_b32 v8, 31, v{LANE}
  v_lshlrev_b32 v9, 9, v7
  v_lshl_add_u32 v9, v8, 4, v9
  v_lshlrev_b32 v10, 3, v7         ; hi*8
  s_lshl_b32 s33, s68, 4
  s_lshl_b32 s34, s30, 1
  s_add_u32 s33, s33, s34          ; grp*16 + b'*2
  s_lshl_b32 s36, s33, 11
  s_lshl_b32 s37, s69, 10
  s_add_u32 s36, s36, s37
  s_add_u32 s36, s36, {WS_PO:#x}
  s_lshl_b32 s38, s33, 5
  s_lshl_b32 s37, s69, 4
  s_add_u32 s38, s38, s37
  s_add_u32 s38, s38, {WS_PML:#x}
  buffer_load_dwordx4 v[32:35], v9, s[24:27], s36 offen sc1
  buffer_load_dwordx4 v[36:39], v9, s[24:27], s36 offen offset:2048 sc1
  buffer_load_dwordx2 v[40:41], v10, s[24:27], s38 offen sc1
  buffer_load_dwordx2 v[42:43], v10, s[24:27], s38 offen offset:32 sc1""")
    for e in range(4):
        sel = "s40" if (e & 1) == 0 else "s41"
        for q in range(4):
            lo = WOR + 2 * (2 * q) + (e >> 1)
            hi = WOR + 2 * (2 * q + 1) + (e >> 1)
            a(f"  v_perm_b32 v{56+4*e+q}, v{hi}, v{lo}, {sel}")
    a(f"""  s_waitcnt vmcnt(0)
  v_max_f32 v44, v40, v42
  v_sub_f32 v40, v40, v44
  v_sub_f32 v42, v42, v44
  v_mul_f32 v40, s42, v40
  v_mul_f32 v42, s42, v42
  v_exp_f32 v40, v40
  v_exp_f32 v42, v42
  s_nop 0
  v_mul_f32 v45, v40, v41
  v_fmac_f32 v45, v42, v43
  v_rcp_f32 v45, v45
  s_nop 0
  v_mul_f32 v40, v40, v45
  v_mul_f32 v42, v42, v45""")
    for i in range(4):
        a(f"""  v_mul_f32 v{32+i}, v{32+i}, v40
  v_fmac_f32 v{32+i}, v{36+i}, v42""")
    a(f"""  v_cvt_pk_bf16_f32 v32, v32, v33
  v_cvt_pk_bf16_f32 v33, v34, v35
  v_lshlrev_b32 v11, 9, v3
  v_lshl_add_u32 v11, v{LANE}, 3, v11     ; b'*512 + lane*8
  ds_write_b64 v11, v[32:33] offset:{L_R1}
  s_waitcnt lgkmcnt(0)
  s_barrier
  v_lshlrev_b32 v11, 9, v{NR}
  v_lshl_add_u32 v11, v3, 6, v11
  v_lshl_add_u32 v11, v{GR}, 4, v11       ; n*512 + w*64 + g*16
  ds_read_b128 v[48:51], v11 offset:{L_R1}
  s_waitcnt lgkmcnt(0)
  s_nop 1""")
    for e in range(4):
        a(f"  v_mfma_f32_16x16x32_bf16 v[{DO+4*e}:{DO+4*e+3}], v[48:51], v[{56+4*e}:{59+4*e}], 0")
    a(f"""  v_lshlrev_b32 v8, 10, v{GR}
  v_lshl_add_u32 v8, v{NR}, 4, v8
  v_lshl_add_u32 v8, v3, 11, v8    ; w*2048 + g*1024 + n*16
  v_cmp_gt_u32 vcc, 32, v{LANE}
  s_nop 7
  s_nop 3
  s_and_saveexec_b64 s[36:37], vcc""")
    for e in range(4):
        for r in range(4):
            a(f"  ds_write_b32 v8, v{DO+4*e+r} offset:{L_R2+r*256+e*4}")
    a(f"""  s_mov_b64 exec, s[36:37]
  s_waitcnt lgkmcnt(0)
  s_barrier
  v_lshlrev_b32 v9, 2, v0""")
    for w in range(8):
        a(f"  ds_read_b32 v{16+w}, v9 offset:{L_R2+w*2048}")
    a(f"""  s_waitcnt lgkmcnt(0)
  v_add_f32 v16, v16, v17
  v_add_f32 v18, v18, v19
  v_add_f32 v20, v20, v21
  v_add_f32 v22, v22, v23
  v_add_f32 v16, v16, v18
  v_add_f32 v20, v20, v22
  v_add_f32 v16, v16, v20
  s_lshl_b32 s33, s28, 3
  s_add_u32 s33, s33, s70          ; p*8+slab
  s_lshl_b32 s34, s33, 15
  s_add_u32 s34, s34, {WS_POUT:#x}
  s_lshl_b32 s35, s29, 1
  s_add_u32 s35, s35, s69
  s_lshl_b32 s35, s35, 11
  s_add_u32 s35, s35, s34
  buffer_store_dword v16, v9, s[24:27], s35 offen sc1
  s_waitcnt vmcnt(0)
  s_barrier""")
    stamp(8)
    a(f"""
  s_cmp_lg_u32 s30, 0
  s_cbranch_scc1 L_o_wait
  s_lshl_b32 s31, s33, 8
  s_add_u32 s31, s31, {WS_CNT:#x}          ; S3 counter
  v_mov_b32 v{E1}, 1
  s_mov_b64 s[36:37], exec
  s_mov_b64 exec, 1
  buffer_atomic_add v{E1}, v{VZ}, s[24:27], s31 offen sc0 sc1
  s_waitcnt vmcnt(0)
  v_mov_b32 v{E2}, {L_R3}
  ds_write_b32 v{E2}, v{E1}
  s_waitcnt lgkmcnt(0)
  s_mov_b64 exec, s[36:37]
L_o_wait:
  s_barrier
  v_mov_b32 v{E2}, {L_R3}
  ds_read_b32 v{E1}, v{E2}
  s_waitcnt lgkmcnt(0)
  v_readfirstlane_b32 s39, v{E1}
  s_cmp_lg_u32 s39, 15
  s_cbranch_scc1 L_fin
  ; last arriver: reduce the 16 partials of (p,slab)""")
    for ks in range(16):
        a(f"""  s_add_u32 s35, s34, {ks*2048}
  buffer_load_dword v{16+ks}, v9, s[24:27], s35 offen sc1""")
    a(f"""  ; out byte = b'*2048 + p*1024 + slab*128 + col*2
  v_lshlrev_b32 v10, 11, v3
  v_lshl_add_u32 v10, v{LANE}, 1, v10
  s_lshl_b32 s35, s33, 7
  s_waitcnt vmcnt(0)""")
    for st in (1, 2, 4, 8):
        for i in range(0, 16, 2 * st):
            a(f"  v_add_f32 v{16+i}, v{16+i}, v{16+i+st}")
    a(f"""  v_cvt_pk_bf16_f32 v16, v16, v16
  buffer_store_short v16, v10, s[60:63], s35 offen
  s_waitcnt vmcnt(0)
L_fin:""")
    stamp(9)
    if STAMP:
        a(f"""  s_cmp_lg_u32 s30, 0
  s_cbranch_scc1 L_end
  v_lshlrev_b32 v10, 2, v{LANE}
  s_lshl_b32 s35, s2, 6
  s_add_u32 s35, s35, 0x180000
  v_cmp_gt_u32 vcc, 16, v{LANE}
  s_and_saveexec_b64 s[36:37], vcc
  buffer_store_dword v91, v10, s[24:27], s35 offen
  s_mov_b64 exec, s[36:37]""")
        if STAMP == 2:
            a(f"""  v_cmp_gt_u32 vcc, 11, v{LANE}
  s_and_saveexec_b64 s[36:37], vcc
  buffer_atomic_umax v91, v10, s[64:67], 0 offen offset:16 sc1
  s_mov_b64 exec, s[36:37]""")
    a(f"""L_end:
  s_endpgm""")
    acc = (nvgpr + 3) // 4 * 4
    a('.section .rodata,"a"')
    a(f""".p2align 6
.amdhsa_kernel {name}
  .amdhsa_next_free_vgpr {max(nvgpr,160)}
  .amdhsa_next_free_sgpr 96
  .amdhsa_accum_offset {max(acc,160)}
  .amdhsa_group_segment_fixed_size 0
  .amdhsa_kernarg_size 104
  .amdhsa_user_sgpr_count 2
  .amdhsa_user_sgpr_kernarg_segment_ptr 1
  .amdhsa_system_sgpr_workgroup_id_x 1
.end_amdhsa_kernel""")

TAILL = '''
; @launch kernel=oproj_kernel grid=(256,1,1) block=(512,1,1) lds=24576
; @launch kernel=final_kernel grid=(32,1,1) block=(256,1,1) lds=0'''
TAILM = '''
; @launch kernel=oproj_kernel grid=(256,1,1) block=(512,1,1) lds=24576'''
def main():
    out = sys.argv[1] if len(sys.argv) > 1 else f"cdna_kernels/{NAME}.s"
    opts = {}
    for kv in sys.argv[2:]:
        k, v = kv.split("=", 1)
        opts[k] = v
    a = Asm()
    a(f"""; concat_heads gqa decode: fused q-proj -> flash-decode -> combine -> out-proj (16-workgroup group hand-offs)
; @launch grid=(256,1,1) block=(512,1,1) lds={LDS_BYTES}
.amdgcn_target "amdgcn-amd-amdhsa--gfx950"
.text""")
    gen(a, opts)
    open(out, "w").write(a.text())

main()
```

```python
import math, struct, sys

NAME = "concat_heads__gqa_block_cached__gqa_block_cached__decode"

def f32bits(x):
    return struct.unpack("<I", struct.pack("<f", x))[0]

C_SCALE = (128.0 ** -0.5) * math.log2(math.e)
C_BITS = f32bits(C_SCALE)

WS_Q = 0
WS_PO = 0x40000
WS_PML = 0xC0000
WS_POUT = 0x100000
WS_CNT = 0x1C0000
WS_SIZE = 0x200000

L_R1 = 17408
L_R2 = 25600
L_R3 = 41984
L_Q = 42240
LDS_BYTES = 43264

SEL_LO = 0x05040100
SEL_HI = 0x07060302

class Asm:
    def __init__(self):
        self.lines = []
    def __call__(self, s):
        for ln in s.strip("\n").split("\n"):
            self.lines.append(ln)
    def text(self):
        return "\n".join(self.lines) + "\n"

def srd(a, d, lo, hi, size):
    a(f"""  s_mov_b32 s{d}, s{lo}
  s_and_b32 s{d+1}, s{hi}, 0xffff
  s_mov_b32 s{d+2}, {size:#x}
  s_mov_b32 s{d+3}, 0x00020000""")

def kernel_header(a, name):
    a(f""".globl {name}
.p2align 8
.type {name},@function
{name}:""")

def kernel_desc(a, name, vgpr, sgpr=96):
    acc = (vgpr + 3) // 4 * 4
    a(f""".p2align 6
.amdhsa_kernel {name}
  .amdhsa_next_free_vgpr {vgpr}
  .amdhsa_next_free_sgpr {sgpr}
  .amdhsa_accum_offset {acc}
  .amdhsa_group_segment_fixed_size 0
  .amdhsa_kernarg_size 104
  .amdhsa_user_sgpr_count 2
  .amdhsa_user_sgpr_kernarg_segment_ptr 1
  .amdhsa_system_sgpr_workgroup_id_x 1
.end_amdhsa_kernel""")

def gen_qproj(a, PF=0):
    name = "qproj_kernel"
    kernel_header(a, name)
    a(f"""  s_cmp_ge_u32 s2, 128
  s_cbranch_scc1 {'L_pf' if PF else 'L_q_end'}
  s_load_dwordx2 s[4:5], s[0:1], 0
  s_load_dwordx2 s[6:7], s[0:1], 24
  s_load_dwordx2 s[8:9], s[0:1], 40
  s_load_dwordx2 s[10:11], s[0:1], 64
  s_load_dwordx2 s[12:13], s[0:1], 96
  v_and_b32 v1, 63, v0
  v_lshrrev_b32 v5, 6, v0
  v_and_b32 v2, 15, v1            ; n
  v_lshrrev_b32 v3, 4, v1         ; g
  v_readfirstlane_b32 s30, v5
  s_lshr_b32 s28, s2, 6           ; p
  s_and_b32 s29, s2, 63           ; slab
  s_mov_b32 s40, {SEL_LO:#x}
  s_mov_b32 s41, {SEL_HI:#x}
  v_lshlrev_b32 v6, 16, v3        ; g*65536
  v_lshl_add_u32 v6, v2, 3, v6    ; + n*8  -> voffset W
  v_lshlrev_b32 v7, 10, v2        ; n*1024
  v_lshl_add_u32 v7, v3, 4, v7    ; + g*16 -> voffset x
  s_waitcnt lgkmcnt(0)
  s_cmp_eq_u32 s28, 0
  s_cselect_b32 s4, s4, s8
  s_cselect_b32 s5, s5, s9
  s_cselect_b32 s6, s6, s10
  s_cselect_b32 s7, s7, s11""")
    srd(a, 16, 4, 5, 8192)
    srd(a, 20, 6, 7, 512 * 4096 * 2)
    srd(a, 24, 12, 13, WS_SIZE)
    a(f"""  s_cmp_ge_u32 s2, 32
  s_cbranch_scc1 L_q_nocnt
  s_cmp_lg_u32 s30, 0
  s_cbranch_scc1 L_q_nocnt
  s_lshl_b32 s31, s2, 8
  s_add_u32 s31, s31, {WS_CNT:#x}
  v_mov_b32 v8, 0
  s_mov_b64 exec, 1
  buffer_store_dword v8, v8, s[24:27], s31 offen
  s_mov_b64 exec, -1
L_q_nocnt:""")
    a(f"""  s_lshl_b32 s31, s30, 19
  s_lshl_b32 s32, s29, 7
  s_add_u32 s31, s31, s32
  s_lshl_b32 s33, s30, 7          ; x soffset = w*64*2""")
    for i in range(16):
        a(f"""  s_add_u32 s34, s31, {((i>>3)*32+(i&7))*8192:#x}
  buffer_load_dwordx2 v[{16+2*i}:{17+2*i}], v6, s[20:23], s34 offen""")
    a(f"""  buffer_load_dwordx4 v[48:51], v7, s[16:19], s33 offen
  buffer_load_dwordx4 v[52:55], v7, s[16:19], s33 offen offset:64
  s_waitcnt vmcnt(0)""")
    for grp in range(2):
        wb = 16 + 16 * grp
        for e in range(4):
            sel = "s40" if (e & 1) == 0 else "s41"
            for q in range(4):
                lo = wb + 2 * (2 * q) + (e >> 1)
                hi = wb + 2 * (2 * q + 1) + (e >> 1)
                a(f"  v_perm_b32 v{56+4*e+q}, v{hi}, v{lo}, {sel}")
        a("  s_nop 1")
        for e in range(4):
            c = "0" if grp == 0 else f"v[{72+4*e}:{75+4*e}]"
            a(f"  v_mfma_f32_16x16x32_bf16 v[{72+4*e}:{75+4*e}], v[{48+4*grp}:{51+4*grp}], v[{56+4*e}:{59+4*e}], {c}")
    a(f"""  s_nop 7
  s_nop 7
  v_lshlrev_b32 v8, 10, v3        ; g*1024
  v_lshl_add_u32 v8, v2, 4, v8    ; + n*16
  v_lshl_add_u32 v8, v5, 11, v8   ; + w*2048
  v_cmp_gt_u32 vcc, 32, v1
  s_and_saveexec_b64 s[36:37], vcc""")
    for e in range(4):
        for r in range(4):
            a(f"  ds_write_b32 v8, v{72+4*e+r} offset:{r*256+e*4}")
    a(f"""  s_mov_b64 exec, s[36:37]
  s_waitcnt lgkmcnt(0)
  s_barrier
  v_lshlrev_b32 v9, 2, v0         ; t*4 = b*256 + col*4""")
    for w in range(8):
        a(f"  ds_read_b32 v{16+w}, v9 offset:{w*2048}")
    a(f"""  s_waitcnt lgkmcnt(0)
  v_add_f32 v16, v16, v17
  v_add_f32 v18, v18, v19
  v_add_f32 v20, v20, v21
  v_add_f32 v22, v22, v23
  v_add_f32 v16, v16, v18
  v_add_f32 v20, v20, v22
  v_add_f32 v16, v16, v20
  v_cvt_pk_bf16_f32 v16, v16, v16
  v_lshlrev_b32 v10, 13, v5
  v_lshl_add_u32 v10, v1, 1, v10
  s_lshl_b32 s34, s28, 16
  s_lshl_b32 s35, s29, 7
  s_add_u32 s34, s34, s35
  buffer_store_short v16, v10, s[24:27], s34 offen
L_q_end:
  s_endpgm""")
    if PF:
        a(f"""L_pf:
  s_cmp_ge_u32 s2, 384
  s_cbranch_scc1 L_q_end
  s_load_dwordx4 s[4:7], s[0:1], 8      ; A_k, A_v
  s_load_dwordx4 s[8:11], s[0:1], 48    ; B_k, B_v
  s_sub_u32 s3, s2, 128
  s_and_b32 s29, s3, 7            ; hkv
  s_lshr_b32 s28, s3, 7           ; p
  s_lshr_b32 s47, s3, 3
  s_and_b32 s47, s47, 15          ; mem
  s_lshr_b32 s46, s47, 1          ; b
  s_and_b32 s43, s47, 1           ; split
  s_lshl_b32 s31, s46, 3
  s_add_u32 s31, s31, s29
  s_lshl_b32 s31, s31, 21
  s_lshl_b32 s32, s43, 20
  s_add_u32 s31, s31, s32
  v_lshlrev_b32 v1, 4, v0
  s_waitcnt lgkmcnt(0)
  s_cmp_eq_u32 s28, 0
  s_cselect_b32 s4, s4, s8
  s_cselect_b32 s5, s5, s9
  s_cselect_b32 s6, s6, s10
  s_cselect_b32 s7, s7, s11""")
        srd(a, 16, 4, 5, 0x8000000)
        srd(a, 20, 6, 7, 0x8000000)
        for i in range(PF):
            a(f"""  s_add_u32 s32, s31, {i*8192}
  buffer_load_dwordx4 v[{8+8*(i%8)}:{11+8*(i%8)}], v1, s[16:19], s32 offen
  buffer_load_dwordx4 v[{12+8*(i%8)}:{15+8*(i%8)}], v1, s[20:23], s32 offen""")
            if i % 8 == 7:
                a("  s_waitcnt vmcnt(0)")
        a("""  s_waitcnt vmcnt(0)
  s_endpgm""")
    return name, 96

def gen_oproj(a, merge=False):
    name = "oproj_kernel"
    TAILA = f"""  ; POUT addr = WS_POUT + ((p*16+ks)*8 + b)*2048 + (slab*64+col)*4
  v_lshlrev_b32 v10, 11, v5
  v_lshl_add_u32 v10, v1, 2, v10
  s_lshl_b32 s33, s28, 4
  s_add_u32 s33, s33, s29
  s_lshl_b32 s33, s33, 14
  s_lshl_b32 s34, s43, 8
  s_add_u32 s33, s33, s34
  s_add_u32 s33, s33, {WS_POUT:#x}
  buffer_store_dword v16, v10, s[24:27], s33 offen"""
    sums = "\n".join(f"  v_add_f32 v{16+i}, v{16+i}, v{16+i+st}" for st in (1, 2, 4, 8) for i in range(0, 16, 2 * st))
    lds_ = "\n".join(f"  s_add_u32 s35, s34, {ks*2048}\n  buffer_load_dword v{16+ks}, v9, s[24:27], s35 offen sc1" for ks in range(16))
    TAILB = f"""  ; POUT byte = WS_POUT + ((p*8+slab)*16 + ks)*2048 + t*4
  s_lshl_b32 s33, s28, 3
  s_add_u32 s33, s33, s43          ; p*8+slab
  s_lshl_b32 s34, s33, 15
  s_add_u32 s34, s34, {WS_POUT:#x}
  s_lshl_b32 s35, s29, 11
  s_add_u32 s35, s35, s34
  buffer_store_dword v16, v9, s[24:27], s35 offen sc1
  s_waitcnt vmcnt(0)
  s_barrier
  s_cmp_lg_u32 s30, 0
  s_cbranch_scc1 L_oo_wait
  s_lshl_b32 s31, s33, 8
  s_add_u32 s31, s31, {WS_CNT:#x}
  v_mov_b32 v12, 1
  v_mov_b32 v13, 0
  s_mov_b64 exec, 1
  buffer_atomic_add v12, v13, s[24:27], s31 offen sc0 sc1
  s_waitcnt vmcnt(0)
  ds_write_b32 v13, v12
  s_waitcnt lgkmcnt(0)
  s_mov_b64 exec, -1
L_oo_wait:
  s_barrier
  v_mov_b32 v13, 0
  ds_read_b32 v12, v13
  s_waitcnt lgkmcnt(0)
  v_readfirstlane_b32 s39, v12
  s_cmp_lg_u32 s39, 15
  s_cbranch_scc1 L_o_end
{lds_}
  v_lshlrev_b32 v10, 11, v5
  v_lshl_add_u32 v10, v1, 1, v10
  s_lshl_b32 s35, s33, 7
  s_waitcnt vmcnt(0)
{sums}
  v_cvt_pk_bf16_f32 v16, v16, v16
  buffer_store_short v16, v10, s[60:63], s35 offen"""
    kernel_header(a, name)
    a(f"""  s_cmp_ge_u32 s2, 256
  s_cbranch_scc1 L_o_end
  s_load_dwordx2 s[4:5], s[0:1], 32     ; A_wo
  s_load_dwordx2 s[8:9], s[0:1], 72     ; B_wo
  s_load_dwordx2 s[12:13], s[0:1], 96   ; ws
  s_load_dwordx4 s[84:87], s[0:1], 80
  v_and_b32 v1, 63, v0
  v_lshrrev_b32 v5, 6, v0
  v_and_b32 v2, 15, v1            ; n
  v_lshrrev_b32 v3, 4, v1         ; g
  v_readfirstlane_b32 s30, v5
  s_lshr_b32 s28, s2, 7           ; p
  s_lshr_b32 s29, s2, 3
  s_and_b32 s29, s29, 15          ; ks
  s_and_b32 s43, s2, 7            ; slab
  s_mov_b32 s40, {SEL_LO:#x}
  s_mov_b32 s41, {SEL_HI:#x}
  s_mov_b32 s42, {C_BITS:#x}
  v_lshlrev_b32 v6, 13, v3        ; g*8192
  v_lshl_add_u32 v6, v2, 3, v6    ; + n*8
  s_waitcnt lgkmcnt(0)
  s_cmp_eq_u32 s28, 0
  s_cselect_b32 s4, s4, s8
  s_cselect_b32 s5, s5, s9""")
    srd(a, 20, 4, 5, 4096 * 512 * 2)
    srd(a, 24, 12, 13, WS_SIZE)
    srd(a, 60, 84, 85, 8192 * 2)
    srd(a, 64, 86, 87, 256)
    a(f"""  ; wo soffset = (ks*256 + w*32)*1024 + slab*128
  s_lshl_b32 s31, s29, 18
  s_lshl_b32 s32, s30, 15
  s_add_u32 s31, s31, s32
  s_lshl_b32 s32, s43, 7
  s_add_u32 s31, s31, s32
  s_add_u32 s32, s31, 4096""")
    for i in range(8):
        a(f"  buffer_load_dwordx2 v[{16+2*i}:{17+2*i}], v6, s[20:23], s{31+(i>>2)} offen offset:{(i&3)*1024}")
    a(f"""  v_lshrrev_b32 v7, 5, v1         ; hi
  v_and_b32 v8, 31, v1
  v_lshlrev_b32 v9, 9, v7         ; hi*512
  v_lshl_add_u32 v9, v8, 4, v9
  v_lshlrev_b32 v10, 3, v7        ; hi*8
  s_lshl_b32 s33, s28, 6
  s_lshl_b32 s34, s30, 3
  s_add_u32 s33, s33, s34
  s_lshr_b32 s34, s29, 1
  s_add_u32 s33, s33, s34         ; unit
  s_and_b32 s35, s29, 1           ; ks&1
  s_lshl_b32 s36, s33, 12         ; unit*2*2048
  s_lshl_b32 s37, s35, 10         ; (ks&1)*2*512
  s_add_u32 s36, s36, s37
  s_add_u32 s36, s36, {WS_PO:#x}
  s_lshl_b32 s38, s33, 6          ; unit*2*32
  s_lshl_b32 s37, s35, 4
  s_add_u32 s38, s38, s37
  s_add_u32 s38, s38, {WS_PML:#x}
  buffer_load_dwordx4 v[32:35], v9, s[24:27], s36 offen
  buffer_load_dwordx4 v[36:39], v9, s[24:27], s36 offen offset:2048
  buffer_load_dwordx2 v[40:41], v10, s[24:27], s38 offen
  buffer_load_dwordx2 v[42:43], v10, s[24:27], s38 offen offset:32
  s_waitcnt vmcnt(0)
  v_max_f32 v44, v40, v42
  v_sub_f32 v40, v40, v44
  v_sub_f32 v42, v42, v44
  v_mul_f32 v40, s42, v40
  v_mul_f32 v42, s42, v42
  v_exp_f32 v40, v40
  v_exp_f32 v42, v42
  s_nop 0
  v_mul_f32 v45, v40, v41
  v_fmac_f32 v45, v42, v43
  v_rcp_f32 v45, v45
  s_nop 0
  v_mul_f32 v40, v40, v45
  v_mul_f32 v42, v42, v45""")
    for i in range(4):
        a(f"""  v_mul_f32 v{32+i}, v{32+i}, v40
  v_fmac_f32 v{32+i}, v{36+i}, v42""")
    a(f"""  v_cvt_pk_bf16_f32 v32, v32, v33
  v_cvt_pk_bf16_f32 v33, v34, v35
  v_lshlrev_b32 v11, 9, v5
  v_lshl_add_u32 v11, v1, 3, v11
  ds_write_b64 v11, v[32:33]
  s_waitcnt lgkmcnt(0)
  s_barrier
  v_lshlrev_b32 v11, 9, v2
  v_lshl_add_u32 v11, v5, 6, v11
  v_lshl_add_u32 v11, v3, 4, v11
  ds_read_b128 v[48:51], v11""")
    for e in range(4):
        sel = "s40" if (e & 1) == 0 else "s41"
        for q in range(4):
            lo = 16 + 2 * (2 * q) + (e >> 1)
            hi = 16 + 2 * (2 * q + 1) + (e >> 1)
            a(f"  v_perm_b32 v{56+4*e+q}, v{hi}, v{lo}, {sel}")
    a("  s_waitcnt lgkmcnt(0)")
    a("  s_nop 1")
    for e in range(4):
        a(f"  v_mfma_f32_16x16x32_bf16 v[{72+4*e}:{75+4*e}], v[48:51], v[{56+4*e}:{59+4*e}], 0")
    a(f"""  s_nop 7
  s_nop 7
  v_lshlrev_b32 v8, 10, v3        ; g*1024
  v_lshl_add_u32 v8, v2, 4, v8    ; + n*16
  v_lshl_add_u32 v8, v5, 11, v8   ; + w*2048
  v_cmp_gt_u32 vcc, 32, v1
  s_and_saveexec_b64 s[44:45], vcc""")
    for e in range(4):
        for r in range(4):
            a(f"  ds_write_b32 v8, v{72+4*e+r} offset:{8192+r*256+e*4}")
    a(f"""  s_mov_b64 exec, s[44:45]
  s_waitcnt lgkmcnt(0)
  s_barrier
  v_lshlrev_b32 v9, 2, v0""")
    for w in range(8):
        a(f"  ds_read_b32 v{16+w}, v9 offset:{8192+w*2048}")
    a(f"""  s_waitcnt lgkmcnt(0)
  v_add_f32 v16, v16, v17
  v_add_f32 v18, v18, v19
  v_add_f32 v20, v20, v21
  v_add_f32 v22, v22, v23
  v_add_f32 v16, v16, v18
  v_add_f32 v20, v20, v22
  v_add_f32 v16, v16, v20
{TAILA if not merge else TAILB}
L_o_end:
  s_endpgm""")
    return name, 96

def gen_final(a):
    name = "final_kernel"
    kernel_header(a, name)
    a(f"""  s_cmp_ge_u32 s2, 32
  s_cbranch_scc1 L_f_end
  s_load_dwordx2 s[4:5], s[0:1], 80     ; out
  s_load_dwordx2 s[12:13], s[0:1], 96   ; ws
  s_lshl_b32 s3, s2, 8
  v_add_u32 v1, s3, v0            ; o = b*1024 + p*512 + n
  v_lshrrev_b32 v2, 10, v1        ; b
  v_bfe_u32 v3, v1, 9, 1          ; p
  v_and_b32 v4, 511, v1           ; n
  v_lshlrev_b32 v5, 18, v3
  v_lshl_add_u32 v5, v2, 11, v5
  v_lshl_add_u32 v5, v4, 2, v5
  v_lshlrev_b32 v6, 1, v1
  s_waitcnt lgkmcnt(0)""")
    srd(a, 16, 4, 5, 8192 * 2)
    srd(a, 24, 12, 13, WS_SIZE)
    for ks in range(16):
        a(f"""  s_mov_b32 s30, {WS_POUT + ks*16384:#x}
  buffer_load_dword v{16+ks}, v5, s[24:27], s30 offen""")
    a("  s_waitcnt vmcnt(0)")
    for st in (1, 2, 4, 8):
        for i in range(0, 16, 2 * st):
            a(f"  v_add_f32 v{16+i}, v{16+i}, v{16+i+st}")
    a(f"""  v_cvt_pk_bf16_f32 v16, v16, v16
  buffer_store_short v16, v6, s[16:19], 0 offen
L_f_end:
  s_endpgm""")
    return name, 40

def gen(a, opts):
    TAIL = 1
    GOEARLY = int(opts.get('goearly','1'))
    WFIRST = int(opts.get('wfirst','0'))
    STAMP = int(opts.get("stamp", "0"))
    def stamp(idx):
        if not STAMP:
            return
        a(f"""  s_memrealtime s[90:91]
  s_waitcnt lgkmcnt(0)
  s_mov_b32 s{92 if False else 88}, s90
  v_writelane_b32 v{91}, s90, {idx}""")
        if idx == 0:
            a(f"""  s_not_b32 s90, s90
  v_writelane_b32 v91, s90, 10""")
    name = NAME + "_kernel"
    NIT = 16
    ldflags = opts.get("ldflags", "nt")
    depth = 2
    PSLEEP = int(opts.get("psleep", "1"))
    SPIN = int(opts.get("spin", "400000"))
    Q0 = 4; O0 = 20; S0 = 52; S1 = 56; P0 = 60; A0 = 64
    MRUN = 76; MC = 77; L = 78; T0 = 79; T1 = 80; MX = 81; AL = 82
    NR = 83; GR = 84; VQ = 85; E0 = 86; E1 = 87; E2 = 88; LANE = 89; VZ = 90; GRB = 85; CADDR = 92; ONE = 93
    KV0 = 96
    nvgpr = KV0 + 64 * depth
    STEP = 8192 * 8
    W0 = 20; X0 = 36; B0 = 44; D0 = 52
    a(f""".globl {name}
.p2align 8
.type {name},@function
{name}:
  s_cmp_ge_u32 s2, 256
  s_cbranch_scc1 L_end
  s_load_dwordx8 s[4:11], s[0:1], 0     ; A_x, A_k, A_v, A_wq
  s_load_dwordx8 s[72:79], s[0:1], 32   ; A_wo, B_x, B_k, B_v
  s_load_dwordx8 s[80:87], s[0:1], 64
  s_load_dwordx2 s[12:13], s[0:1], 96   ; ws
  v_and_b32 v{LANE}, 63, v0
  v_lshrrev_b32 v3, 6, v0
  v_and_b32 v{NR}, 15, v{LANE}          ; n / h
  v_lshrrev_b32 v{GR}, 4, v{LANE}       ; g
  v_readfirstlane_b32 s30, v3
  s_and_b32 s29, s2, 7            ; hkv
  s_lshr_b32 s28, s2, 7           ; p
  s_lshr_b32 s47, s2, 3
  s_and_b32 s47, s47, 15          ; mem
  s_lshl_b32 s68, s28, 3
  s_add_u32 s68, s68, s29
  s_lshl_b32 s89, s68, 4
  s_add_u32 s89, s89, s47         ; grp*16+mem
  s_lshr_b32 s46, s47, 1          ; b
  s_and_b32 s43, s47, 1           ; split
{'' if TAIL else '''  s_lshl_b32 s89, s28, 6
  s_lshl_b32 s31, s46, 3
  s_add_u32 s89, s89, s31
  s_add_u32 s89, s89, s29
  s_lshl_b32 s89, s89, 1
  s_add_u32 s89, s89, s43'''}
  s_mov_b32 s40, {SEL_LO:#x}
  s_mov_b32 s41, {SEL_HI:#x}
  s_mov_b32 s42, {C_BITS:#x}
  v_lshlrev_b32 v1, 8, v{NR}
  v_lshl_add_u32 v1, v{GR}, 4, v1
  v_lshlrev_b32 v2, 10, v{GR}
  v_lshl_add_u32 v2, v{NR}, 4, v2  ; voffV = g*1024 + n*16
  v_lshlrev_b32 v{E0}, 16, v{GR}
  v_lshl_add_u32 v{E0}, v{NR}, 2, v{E0}   ; voffW = g*65536 + n*4
  v_lshlrev_b32 v{E1}, 10, v{NR}
  v_lshl_add_u32 v{E1}, v{GR}, 4, v{E1}   ; voffX = n*1024 + g*16
  v_mov_b32 v{VZ}, 0
  s_waitcnt lgkmcnt(0)
  s_cmp_eq_u32 s28, 0
  s_cselect_b32 s4, s4, s74       ; x
  s_cselect_b32 s5, s5, s75
  s_cselect_b32 s6, s6, s76       ; k
  s_cselect_b32 s7, s7, s77
  s_cselect_b32 s8, s8, s78       ; v
  s_cselect_b32 s9, s9, s79
  s_cselect_b32 s10, s10, s80     ; wq
  s_cselect_b32 s11, s11, s81
  s_cselect_b32 s72, s72, s82     ; wo
  s_cselect_b32 s73, s73, s83""")
    srd(a, 48, 10, 11, 512 * 4096 * 2)
    srd(a, 52, 4, 5, 8192)
    srd(a, 16, 6, 7, 0x8000000)
    srd(a, 20, 8, 9, 0x8000000)
    srd(a, 24, 12, 13, WS_SIZE)
    srd(a, 56, 72, 73, 4096 * 512 * 2)
    srd(a, 60, 84, 85, 8192 * 2)
    srd(a, 64, 86, 87, 256)
    stamp(0)
    a(f"""  ; K/V byte base = (b*8+hkv)*2MiB + split*1MiB
  s_lshl_b32 s71, s46, 3
  s_add_u32 s71, s71, s29
  s_lshl_b32 s71, s71, 21
  s_lshl_b32 s34, s43, 20
  s_add_u32 s71, s71, s34""")

    ROT = int(opts.get('rot', '0'))
    if ROT:
        a(f"""  s_mul_i32 s45, s2, {ROT}
  s_and_b32 s45, s45, 127""")
    def setaddr(tile_sreg):
        if ROT:
            a(f"""  s_add_u32 s33, {tile_sreg}, s45
  s_and_b32 s33, s33, 127
  s_lshl_b32 s33, s33, 13
  s_add_u32 s33, s33, s71
  s_add_u32 s34, s33, 4096""")
            return
        a(f"""  s_lshl_b32 s33, {tile_sreg}, 13
  s_add_u32 s33, s33, s71
  s_add_u32 s34, s33, 4096""")
    def kloads(st):
        K0 = KV0 + 64 * st
        for t in range(2):
            for j in range(4):
                r = K0 + (t * 4 + j) * 4
                a(f"  buffer_load_dwordx4 v[{r}:{r+3}], v1, s[16:19], s{33+t} offen offset:{j*64} {ldflags}")
    def vloads(st):
        V0 = KV0 + 64 * st + 32
        for i in range(8):
            r = V0 + i * 4
            a(f"  buffer_load_dwordx4 v[{r}:{r+3}], v2, s[20:23], s{33+(i>>2)} offen offset:{(i&3)*256} {ldflags}")
    def grab():
        a(f"""  s_mov_b64 exec, 1
  ds_add_rtn_u32 v{GRB}, v{CADDR}, v{ONE}
  s_mov_b64 exec, -1""")
    def grab_read(sreg):
        a(f"""  s_waitcnt lgkmcnt(0)
  v_readfirstlane_b32 {sreg}, v{GRB}""")

    a(f"""  v_mov_b32 v{CADDR}, {L_R3+16}
  v_mov_b32 v{ONE}, 1
  s_or_b32 s31, s2, s30
  s_cmp_lg_u32 s31, 0
  s_cbranch_scc1 L_nozero
  v_lshlrev_b32 v{E2}, 8, v{LANE}
  v_cmp_gt_u32 vcc, 48, v{LANE}
  s_mov_b32 s31, {WS_CNT:#x}
  s_and_saveexec_b64 s[36:37], vcc
  buffer_store_dword v{VZ}, v{E2}, s[24:27], s31 offen sc1
  s_mov_b64 exec, s[36:37]
L_nozero:
  s_lshl_b32 s31, s30, 19         ; w*64*8192
  s_lshl_b32 s32, s29, 10         ; hkv*1024
  s_add_u32 s31, s31, s32
  s_lshl_b32 s32, s47, 6          ; mem*64
  s_add_u32 s31, s31, s32
  s_lshl_b32 s33, s30, 7          ; x soffset""")
    for i in range(16):
        a(f"""  s_add_u32 s34, s31, {((i>>3)*32+(i&7))*8192:#x}
  buffer_load_dword v{W0+i}, v{E0}, s[48:51], s34 offen""")
    a(f"""  buffer_load_dwordx4 v[{X0}:{X0+3}], v{E1}, s[52:55], s33 offen
  buffer_load_dwordx4 v[{X0+4}:{X0+7}], v{E1}, s[52:55], s33 offen offset:64
  s_cmp_eq_u32 s30, 0
  s_cbranch_scc1 L_w0_nopf
  s_sub_u32 s35, s30, 1""")
    setaddr("s35")
    if WFIRST:
        a("  s_waitcnt vmcnt(0)")
    kloads(0); vloads(0)
    a(f"""  s_waitcnt vmcnt(16)
  s_branch L_w_join
L_w0_nopf:
  v_mov_b32 v{GRB}, 14
  s_mov_b64 exec, 1
  ds_write_b32 v{CADDR}, v{GRB}
  ds_write_b32 v{CADDR}, v{VZ} offset:4
  s_mov_b64 exec, -1
  s_cmp_lg_u32 s2, 0
  s_cbranch_scc1 L_w0_noflag
  s_waitcnt vmcnt(18)
  s_mov_b64 exec, 1
  buffer_store_dword v{ONE}, v{VZ}, s[64:67], 0 offen sc1
  s_mov_b64 exec, -1
L_w0_noflag:
  s_waitcnt vmcnt(0)
L_w_join:""")
    stamp(1)
    for g32 in range(2):
        wb = W0 + 8 * g32
        for e in range(2):
            sel = "s40" if e == 0 else "s41"
            for q in range(4):
                a(f"  v_perm_b32 v{B0+4*e+q}, v{wb+2*q+1}, v{wb+2*q}, {sel}")
        a("  s_nop 1")
        for e in range(2):
            c = "0" if g32 == 0 else f"v[{D0+4*e}:{D0+4*e+3}]"
            a(f"  v_mfma_f32_16x16x32_bf16 v[{D0+4*e}:{D0+4*e+3}], v[{X0+4*g32}:{X0+4*g32+3}], v[{B0+4*e}:{B0+4*e+3}], {c}")
    a(f"""  s_nop 7
  s_nop 3
  v_lshlrev_b32 v{E2}, 10, v3          ; w*1024
  v_lshl_add_u32 v{E2}, v{GR}, 9, v{E2}   ; + g*512
  v_lshl_add_u32 v{E2}, v{NR}, 3, v{E2}   ; + n*8
  v_cmp_gt_u32 vcc, 32, v{LANE}
  s_and_saveexec_b64 s[36:37], vcc""")
    for e in range(2):
        for r in range(4):
            a(f"  ds_write_b32 v{E2}, v{D0+4*e+r} offset:{r*128+e*4}")
    a(f"""  s_mov_b64 exec, s[36:37]
  s_waitcnt lgkmcnt(0)
  s_barrier
  s_cmp_lg_u32 s30, 0
  s_cbranch_scc1 L_q_others
  v_lshlrev_b32 v{E2}, 4, v{LANE}""")
    for w in range(8):
        a(f"  ds_read_b128 v[{W0+4*w}:{W0+4*w+3}], v{E2} offset:{w*1024}")
    a("  s_waitcnt lgkmcnt(0)")
    for st in (1, 2, 4):
        for w in range(0, 8, 2 * st):
            for c in range(4):
                a(f"  v_add_f32 v{W0+4*w+c}, v{W0+4*w+c}, v{W0+4*(w+st)+c}")
    GO = "ds_write_b32 v%d, v%d offset:4" % (CADDR, ONE)
    a(f"""  v_cvt_pk_bf16_f32 v{W0}, v{W0}, v{W0+1}
  v_cvt_pk_bf16_f32 v{W0+1}, v{W0+2}, v{W0+3}
  v_lshrrev_b32 v{E2}, 3, v{LANE}
  v_lshlrev_b32 v{E2}, 10, v{E2}
  v_and_b32 v{E1}, 7, v{LANE}
  v_lshl_add_u32 v{E2}, v{E1}, 3, v{E2}
  s_lshl_b32 s31, s68, 13
  s_lshl_b32 s32, s47, 6
  s_add_u32 s31, s31, s32
  buffer_store_dwordx2 v[{W0}:{W0+1}], v{E2}, s[24:27], s31 offen sc1
  s_mov_b64 exec, 1
  s_mov_b32 s38, {SPIN}
L_f_poll:
  buffer_load_dword v{E1}, v{VZ}, s[64:67], 0 offen sc1
  s_waitcnt vmcnt(0)
  v_readfirstlane_b32 s39, v{E1}
  s_cmp_lg_u32 s39, 0
  s_cbranch_scc1 L_f_done
  s_sleep 2
  s_sub_u32 s38, s38, 1
  s_cmp_lg_u32 s38, 0
  s_cbranch_scc1 L_f_poll
L_f_done:""")
    stamp(2)
    a(f"""  s_lshl_b32 s31, s68, 8
  s_add_u32 s31, s31, {WS_CNT + 8192:#x}          ; S1 counter
  buffer_atomic_add v{ONE}, v{VZ}, s[24:27], s31 offen sc1
  {GO if GOEARLY else ""}
  s_mov_b32 s38, {SPIN}
L_q_poll:
  buffer_load_dword v{E1}, v{VZ}, s[24:27], s31 offen sc1
  s_waitcnt vmcnt(0)
  v_readfirstlane_b32 s39, v{E1}
  s_cmp_ge_u32 s39, 16
  s_cbranch_scc1 L_q_done
  s_sleep 2
  s_sub_u32 s38, s38, 1
  s_cmp_lg_u32 s38, 0
  s_cbranch_scc1 L_q_poll
L_q_done:
  s_mov_b64 exec, -1""")
    stamp(3)
    a(f"""  ; wave 0 fetches q[grp][b][512] (1 KB) and puts it into LDS
  s_lshl_b32 s31, s68, 13
  s_lshl_b32 s32, s46, 10
  s_add_u32 s31, s31, s32
  v_lshlrev_b32 v{E2}, 4, v{LANE}
  buffer_load_dwordx4 v[{W0}:{W0+3}], v{E2}, s[24:27], s31 offen sc1
  {"" if GOEARLY else GO}
  s_waitcnt vmcnt(0)
  ds_write_b128 v{E2}, v[{W0}:{W0+3}] offset:{L_Q}
  s_waitcnt lgkmcnt(0)
  s_branch L_q_wait
L_q_others:
  s_mov_b32 s38, {SPIN}
L_go_poll:
  ds_read_b32 v{E1}, v{CADDR} offset:4
  s_waitcnt lgkmcnt(0)
  v_readfirstlane_b32 s39, v{E1}
  s_cmp_lg_u32 s39, 0
  s_cbranch_scc1 L_go_done
  s_sleep 2
  s_sub_u32 s38, s38, 1
  s_cmp_lg_u32 s38, 0
  s_cbranch_scc1 L_go_poll
L_go_done:
  s_add_u32 s35, s30, 6""")
    setaddr("s35")
    kloads(1); vloads(1)
    a(f"""L_q_wait:
  s_barrier""")
    for i in range(16):
        a(f"  v_mov_b32 v{Q0+i}, 0")
    a(f"""  v_cmp_gt_u32 vcc, 4, v{NR}
  s_and_saveexec_b64 s[36:37], vcc""")
    for j in range(4):
        a(f"  ds_read_b128 v[{Q0+4*j}:{Q0+4*j+3}], v1 offset:{L_Q+j*64}")
    a("  s_mov_b64 exec, s[36:37]")
    for i in range(32):
        a(f"  v_mov_b32 v{O0+i}, 0")
    a(f"""  v_mov_b32 v{MRUN}, 0xff800000
  v_mov_b32 v{MC}, 0xff800000
  v_mov_b32 v{L}, 0
  s_waitcnt lgkmcnt(0)""")
    stamp(4)

    def body(st, issue, wk, wv, tag):
        K0 = KV0 + 64 * st
        V0 = K0 + 32
        a(f"  s_waitcnt vmcnt({wk})")
        for t in range(2):
            sreg = S0 if t == 0 else S1
            for j in range(4):
                r = K0 + (t * 4 + j) * 4
                c = "0" if j == 0 else f"v[{sreg}:{sreg+3}]"
                a(f"  v_mfma_f32_16x16x32_bf16 v[{sreg}:{sreg+3}], v[{r}:{r+3}], v[{Q0+4*j}:{Q0+4*j+3}], {c}")
        if issue:
            setaddr("s35")
            kloads(st)
            grab_read("s44")
        else:
            a("  s_nop 7")
        a(f"""  s_nop 1
  v_max3_f32 v{MX}, v{S0}, v{S0+1}, v{S0+2}
  v_max3_f32 v{MX}, v{MX}, v{S0+3}, v{S1}
  v_max3_f32 v{MX}, v{MX}, v{S1+1}, v{S1+2}
  v_max_f32 v{MX}, v{MX}, v{S1+3}
  v_cmp_gt_f32 vcc, v{MX}, v{MRUN}
  s_cbranch_vccz L_fast_{tag}
  v_mov_b32 v{T0}, v{MX}
  s_nop 1
  v_permlane16_swap_b32 v{MX}, v{T0}
  v_max_f32 v{MX}, v{MX}, v{T0}
  v_mov_b32 v{T0}, v{MX}
  s_nop 1
  v_permlane32_swap_b32 v{MX}, v{T0}
  v_max_f32 v{MX}, v{MX}, v{T0}
  v_max_f32 v{MX}, v{MX}, v{MRUN}      ; m_new
  v_sub_f32 v{T0}, v{MRUN}, v{MX}
  v_mul_f32 v{T0}, s42, v{T0}
  v_exp_f32 v{AL}, v{T0}
  v_mov_b32 v{MRUN}, v{MX}
  v_mul_f32 v{MC}, s42, v{MX}
  v_mul_f32 v{L}, v{L}, v{AL}""")
        for i in range(32):
            a(f"  v_mul_f32 v{O0+i}, v{O0+i}, v{AL}")
        a(f"L_fast_{tag}:")
        for i in range(8):
            a(f"  v_fma_f32 v{S0+i}, v{S0+i}, s42, -v{MC}")
        for i in range(8):
            a(f"  v_exp_f32 v{S0+i}, v{S0+i}")
        a(f"""  s_nop 0
  v_add_f32 v{T0}, v{S0}, v{S0+1}
  v_add_f32 v{T1}, v{S0+2}, v{S0+3}
  v_add_f32 v{L}, v{L}, v{T0}
  v_add_f32 v{L}, v{L}, v{T1}
  v_add_f32 v{T0}, v{S0+4}, v{S0+5}
  v_add_f32 v{T1}, v{S0+6}, v{S0+7}
  v_add_f32 v{L}, v{L}, v{T0}
  v_add_f32 v{L}, v{L}, v{T1}""")
        for q in range(4):
            a(f"  v_cvt_pk_bf16_f32 v{P0+q}, v{S0+2*q}, v{S0+2*q+1}")
        a(f"  s_waitcnt vmcnt({wv})")
        def perms(e):
            sel = "s40" if (e & 1) == 0 else "s41"
            base = A0 + 4 * (e % 3)
            for q in range(4):
                lo = V0 + 4 * (2 * q) + (e >> 1)
                hi = V0 + 4 * (2 * q + 1) + (e >> 1)
                a(f"  v_perm_b32 v{base+q}, v{hi}, v{lo}, {sel}")
        def pv(e):
            base = A0 + 4 * (e % 3)
            o = O0 + 4 * e
            a(f"  v_mfma_f32_16x16x32_bf16 v[{o}:{o+3}], v[{base}:{base+3}], v[{P0}:{P0+3}], v[{o}:{o+3}]")
        perms(0)
        for e in range(8):
            if e + 1 < 8:
                perms(e + 1)
            else:
                a("  s_nop 1")
            pv(e)
        if issue:
            vloads(st)

    a(f"""  s_cmp_lg_u32 s30, 0
  s_cbranch_scc1 L_first_grab""")
    grab(); grab_read("s35")
    a(f"""  s_cmp_ge_u32 s35, 128
  s_cbranch_scc1 L_loop_done""")
    setaddr("s35"); kloads(0); vloads(0)
    grab(); grab_read("s35")
    a(f"""  s_cmp_ge_u32 s35, 128
  s_cbranch_scc1 L_single""")
    setaddr("s35"); kloads(1); vloads(1)
    a("L_first_grab:")
    grab(); grab_read("s35")
    a("L_a_loop:")
    for st in range(2):
        a(f"""  s_cmp_ge_u32 s35, 128
  s_cbranch_scc1 L_drain_{st}""")
        grab()
        body(st, True, 24, 24, f"m{st}")
        a("  s_mov_b32 s35, s44")
    a("  s_branch L_a_loop")
    for st in range(2):
        a(f"L_drain_{st}:")
        body(st, False, 24, 16, f"d{st}a")
        body(1 - st, False, 8, 0, f"d{st}b")
        a("  s_branch L_loop_done")
    a("L_single:")
    body(0, False, 8, 0, "sg")
    a("L_loop_done:")
    stamp(5)
    WOR = KV0
    DO = KV0 + 16
    a(f"""  ; wo loads: rows hkv*512 + ksl*256 + w*32 + g*8 + i ; cols slab*64 + n*4 ; ksl = mem>>3, slab = mem&7
  v_lshlrev_b32 v{E0}, 13, v{GR}
  v_lshl_add_u32 v{E0}, v{NR}, 3, v{E0}    ; g*8192 + n*8
  s_lshr_b32 s69, s47, 3          ; ksl
  s_and_b32 s70, s47, 7           ; slab
  s_lshl_b32 s31, s29, 19         ; hkv*512*1024
  s_lshl_b32 s32, s69, 18
  s_add_u32 s31, s31, s32
  s_lshl_b32 s32, s30, 15
  s_add_u32 s31, s31, s32
  s_lshl_b32 s32, s70, 7
  s_add_u32 s31, s31, s32
  s_add_u32 s32, s31, 4096""")
    for i in range(8):
        a(f"  buffer_load_dwordx2 v[{WOR+2*i}:{WOR+2*i+1}], v{E0}, s[56:59], s{31+(i>>2)} offen offset:{(i&3)*1024}")
    a(f"""  s_nop 3
  ; vaddr = w*2048 + h*512 + g*128
  v_lshlrev_b32 v{E0}, 11, v3
  v_lshl_add_u32 v{E0}, v{NR}, 9, v{E0}
  v_lshl_add_u32 v{E0}, v{GR}, 7, v{E0}
  v_lshlrev_b32 v{E1}, 6, v3
  v_lshl_add_u32 v{E1}, v{NR}, 4, v{E1}
  v_lshl_add_u32 v{E1}, v{GR}, 2, v{E1}
  v_lshlrev_b32 v{E2}, 4, v3
  v_lshl_add_u32 v{E2}, v{NR}, 2, v{E2}
  v_cmp_gt_u32 vcc, 4, v{NR}
  s_and_saveexec_b64 s[36:37], vcc""")
    for e in range(8):
        for r in range(4):
            a(f"  ds_write_b32 v{E0}, v{O0+4*e+r} offset:{r*32+e*4}")
    a(f"""  ds_write_b32 v{E1}, v{L} offset:16384
  ds_write_b32 v{E2}, v{MRUN} offset:16896
  s_mov_b64 exec, s[36:37]
  s_waitcnt lgkmcnt(0)
  s_barrier
  v_lshrrev_b32 v4, 7, v0         ; h
  v_lshlrev_b32 v5, 2, v4         ; h*4
  v_lshlrev_b32 v6, 4, v4         ; h*16
  v_lshlrev_b32 v7, 2, v0         ; t*4 = h*512+dim*4""")
    for w in range(8):
        a(f"  ds_read_b32 v{20+w}, v5 offset:{16896+w*16}")
    for w in range(8):
        a(f"  ds_read_b128 v[{32+4*w}:{35+4*w}], v6 offset:{16384+w*64}")
    for w in range(8):
        a(f"  ds_read_b32 v{64+w}, v7 offset:{w*2048}")
    a(f"""  s_waitcnt lgkmcnt(0)
  v_max3_f32 v8, v20, v21, v22
  v_max3_f32 v8, v8, v23, v24
  v_max3_f32 v8, v8, v25, v26
  v_max_f32 v8, v8, v27""")
    for w in range(8):
        a(f"  v_sub_f32 v{20+w}, v{20+w}, v8")
    for w in range(8):
        a(f"  v_mul_f32 v{20+w}, s42, v{20+w}")
    for w in range(8):
        a(f"  v_exp_f32 v{20+w}, v{20+w}")
    a("""  s_nop 0
  v_mov_b32 v9, 0
  v_mov_b32 v10, 0""")
    for w in range(8):
        b = 32 + 4 * w
        a(f"""  v_add_f32 v{b}, v{b}, v{b+1}
  v_add_f32 v{b+2}, v{b+2}, v{b+3}
  v_add_f32 v{b}, v{b}, v{b+2}
  v_fmac_f32 v9, v{20+w}, v{b}
  v_fmac_f32 v10, v{20+w}, v{64+w}""")
    a(f"""  ; store O: WS_PO + wg*2048 + t*4
  s_lshl_b32 s31, s89, 11
  s_add_u32 s31, s31, {WS_PO:#x}
  buffer_store_dword v10, v7, s[24:27], s31 offen sc1
  v_and_b32 v11, 127, v0
  v_cmp_eq_u32 vcc, 0, v11
  v_lshlrev_b32 v12, 3, v4
  s_lshl_b32 s31, s89, 5
  s_add_u32 s31, s31, {WS_PML:#x}
  s_and_saveexec_b64 s[36:37], vcc
  buffer_store_dwordx2 v[8:9], v12, s[24:27], s31 offen sc1
  s_mov_b64 exec, s[36:37]
{'' if TAIL else '  s_branch L_fin'}
  s_waitcnt vmcnt(0)
  s_barrier""")
    stamp(6)
    a(f"""  s_cmp_lg_u32 s30, 0
  s_cbranch_scc1 L_p_wait
  s_lshl_b32 s31, s68, 8
  s_add_u32 s31, s31, {WS_CNT + 4096:#x}          ; S2 counter
  v_mov_b32 v{E1}, 1
  s_mov_b64 s[36:37], exec
  s_mov_b64 exec, 1
  buffer_atomic_add v{E1}, v{VZ}, s[24:27], s31 offen sc1
  s_mov_b32 s38, {SPIN}
L_p_poll:
  buffer_load_dword v{E1}, v{VZ}, s[24:27], s31 offen sc1
  s_waitcnt vmcnt(0)
  v_readfirstlane_b32 s39, v{E1}
  s_cmp_ge_u32 s39, 16
  s_cbranch_scc1 L_p_done
  s_sleep {PSLEEP}
  s_sub_u32 s38, s38, 1
  s_cmp_lg_u32 s38, 0
  s_cbranch_scc1 L_p_poll
L_p_done:
  s_mov_b64 exec, s[36:37]""")
    stamp(7)
    a(f"""L_p_wait:
  s_barrier
  v_lshrrev_b32 v7, 5, v{LANE}
  v_and_b32 v8, 31, v{LANE}
  v_lshlrev_b32 v9, 9, v7
  v_lshl_add_u32 v9, v8, 4, v9
  v_lshlrev_b32 v10, 3, v7         ; hi*8
  s_lshl_b32 s33, s68, 4
  s_lshl_b32 s34, s30, 1
  s_add_u32 s33, s33, s34          ; grp*16 + b'*2
  s_lshl_b32 s36, s33, 11
  s_lshl_b32 s37, s69, 10
  s_add_u32 s36, s36, s37
  s_add_u32 s36, s36, {WS_PO:#x}
  s_lshl_b32 s38, s33, 5
  s_lshl_b32 s37, s69, 4
  s_add_u32 s38, s38, s37
  s_add_u32 s38, s38, {WS_PML:#x}
  buffer_load_dwordx4 v[32:35], v9, s[24:27], s36 offen sc1
  buffer_load_dwordx4 v[36:39], v9, s[24:27], s36 offen offset:2048 sc1
  buffer_load_dwordx2 v[40:41], v10, s[24:27], s38 offen sc1
  buffer_load_dwordx2 v[42:43], v10, s[24:27], s38 offen offset:32 sc1""")
    for e in range(4):
        sel = "s40" if (e & 1) == 0 else "s41"
        for q in range(4):
            lo = WOR + 2 * (2 * q) + (e >> 1)
            hi = WOR + 2 * (2 * q + 1) + (e >> 1)
            a(f"  v_perm_b32 v{56+4*e+q}, v{hi}, v{lo}, {sel}")
    a(f"""  s_waitcnt vmcnt(0)
  v_max_f32 v44, v40, v42
  v_sub_f32 v40, v40, v44
  v_sub_f32 v42, v42, v44
  v_mul_f32 v40, s42, v40
  v_mul_f32 v42, s42, v42
  v_exp_f32 v40, v40
  v_exp_f32 v42, v42
  s_nop 0
  v_mul_f32 v45, v40, v41
  v_fmac_f32 v45, v42, v43
  v_rcp_f32 v45, v45
  s_nop 0
  v_mul_f32 v40, v40, v45
  v_mul_f32 v42, v42, v45""")
    for i in range(4):
        a(f"""  v_mul_f32 v{32+i}, v{32+i}, v40
  v_fmac_f32 v{32+i}, v{36+i}, v42""")
    a(f"""  v_cvt_pk_bf16_f32 v32, v32, v33
  v_cvt_pk_bf16_f32 v33, v34, v35
  v_lshlrev_b32 v11, 9, v3
  v_lshl_add_u32 v11, v{LANE}, 3, v11     ; b'*512 + lane*8
  ds_write_b64 v11, v[32:33] offset:{L_R1}
  s_waitcnt lgkmcnt(0)
  s_barrier
  v_lshlrev_b32 v11, 9, v{NR}
  v_lshl_add_u32 v11, v3, 6, v11
  v_lshl_add_u32 v11, v{GR}, 4, v11       ; n*512 + w*64 + g*16
  ds_read_b128 v[48:51], v11 offset:{L_R1}
  s_waitcnt lgkmcnt(0)
  s_nop 1""")
    for e in range(4):
        a(f"  v_mfma_f32_16x16x32_bf16 v[{DO+4*e}:{DO+4*e+3}], v[48:51], v[{56+4*e}:{59+4*e}], 0")
    a(f"""  v_lshlrev_b32 v8, 10, v{GR}
  v_lshl_add_u32 v8, v{NR}, 4, v8
  v_lshl_add_u32 v8, v3, 11, v8    ; w*2048 + g*1024 + n*16
  v_cmp_gt_u32 vcc, 32, v{LANE}
  s_nop 7
  s_nop 3
  s_and_saveexec_b64 s[36:37], vcc""")
    for e in range(4):
        for r in range(4):
            a(f"  ds_write_b32 v8, v{DO+4*e+r} offset:{L_R2+r*256+e*4}")
    a(f"""  s_mov_b64 exec, s[36:37]
  s_waitcnt lgkmcnt(0)
  s_barrier
  v_lshlrev_b32 v9, 2, v0""")
    for w in range(8):
        a(f"  ds_read_b32 v{16+w}, v9 offset:{L_R2+w*2048}")
    a(f"""  s_waitcnt lgkmcnt(0)
  v_add_f32 v16, v16, v17
  v_add_f32 v18, v18, v19
  v_add_f32 v20, v20, v21
  v_add_f32 v22, v22, v23
  v_add_f32 v16, v16, v18
  v_add_f32 v20, v20, v22
  v_add_f32 v16, v16, v20
  s_lshl_b32 s33, s28, 3
  s_add_u32 s33, s33, s70          ; p*8+slab
  s_lshl_b32 s34, s33, 15
  s_add_u32 s34, s34, {WS_POUT:#x}
  s_lshl_b32 s35, s29, 1
  s_add_u32 s35, s35, s69
  s_lshl_b32 s35, s35, 11
  s_add_u32 s35, s35, s34
  buffer_store_dword v16, v9, s[24:27], s35 offen sc1
  s_waitcnt vmcnt(0)
  s_barrier""")
    stamp(8)
    a(f"""
  s_cmp_lg_u32 s30, 0
  s_cbranch_scc1 L_o_wait
  s_lshl_b32 s31, s33, 8
  s_add_u32 s31, s31, {WS_CNT:#x}          ; S3 counter
  v_mov_b32 v{E1}, 1
  s_mov_b64 s[36:37], exec
  s_mov_b64 exec, 1
  buffer_atomic_add v{E1}, v{VZ}, s[24:27], s31 offen sc0 sc1
  s_waitcnt vmcnt(0)
  v_mov_b32 v{E2}, {L_R3}
  ds_write_b32 v{E2}, v{E1}
  s_waitcnt lgkmcnt(0)
  s_mov_b64 exec, s[36:37]
L_o_wait:
  s_barrier
  v_mov_b32 v{E2}, {L_R3}
  ds_read_b32 v{E1}, v{E2}
  s_waitcnt lgkmcnt(0)
  v_readfirstlane_b32 s39, v{E1}
  s_cmp_lg_u32 s39, 15
  s_cbranch_scc1 L_fin
  ; last arriver: reduce the 16 partials of (p,slab)""")
    for ks in range(16):
        a(f"""  s_add_u32 s35, s34, {ks*2048}
  buffer_load_dword v{16+ks}, v9, s[24:27], s35 offen sc1""")
    a(f"""  ; out byte = b'*2048 + p*1024 + slab*128 + col*2
  v_lshlrev_b32 v10, 11, v3
  v_lshl_add_u32 v10, v{LANE}, 1, v10
  s_lshl_b32 s35, s33, 7
  s_waitcnt vmcnt(0)""")
    for st in (1, 2, 4, 8):
        for i in range(0, 16, 2 * st):
            a(f"  v_add_f32 v{16+i}, v{16+i}, v{16+i+st}")
    a(f"""  v_cvt_pk_bf16_f32 v16, v16, v16
  buffer_store_short v16, v10, s[60:63], s35 offen
  s_waitcnt vmcnt(0)
L_fin:""")
    stamp(9)
    if STAMP:
        a(f"""  s_cmp_lg_u32 s30, 0
  s_cbranch_scc1 L_end
  v_lshlrev_b32 v10, 2, v{LANE}
  s_lshl_b32 s35, s2, 6
  s_add_u32 s35, s35, 0x180000
  v_cmp_gt_u32 vcc, 16, v{LANE}
  s_and_saveexec_b64 s[36:37], vcc
  buffer_store_dword v91, v10, s[24:27], s35 offen
  s_mov_b64 exec, s[36:37]""")
        if STAMP == 2:
            a(f"""  v_cmp_gt_u32 vcc, 11, v{LANE}
  s_and_saveexec_b64 s[36:37], vcc
  buffer_atomic_umax v91, v10, s[64:67], 0 offen offset:16 sc1
  s_mov_b64 exec, s[36:37]""")
    a(f"""L_end:
  s_endpgm""")
    acc = (nvgpr + 3) // 4 * 4
    a('.section .rodata,"a"')
    a(f""".p2align 6
.amdhsa_kernel {name}
  .amdhsa_next_free_vgpr {max(nvgpr,160)}
  .amdhsa_next_free_sgpr 96
  .amdhsa_accum_offset {max(acc,160)}
  .amdhsa_group_segment_fixed_size 0
  .amdhsa_kernarg_size 104
  .amdhsa_user_sgpr_count 2
  .amdhsa_user_sgpr_kernarg_segment_ptr 1
  .amdhsa_system_sgpr_workgroup_id_x 1
.end_amdhsa_kernel""")

TAILL = '''
; @launch kernel=oproj_kernel grid=(256,1,1) block=(512,1,1) lds=24576
; @launch kernel=final_kernel grid=(32,1,1) block=(256,1,1) lds=0'''
TAILM = '''
; @launch kernel=oproj_kernel grid=(256,1,1) block=(512,1,1) lds=24576'''
def main():
    out = sys.argv[1] if len(sys.argv) > 1 else f"cdna_kernels/{NAME}.s"
    opts = {}
    for kv in sys.argv[2:]:
        k, v = kv.split("=", 1)
        opts[k] = v
    a = Asm()
    a(f"""; concat_heads gqa decode: fused q-proj -> flash-decode -> combine -> out-proj (16-workgroup group hand-offs)
; @launch grid=(256,1,1) block=(512,1,1) lds={LDS_BYTES}
.amdgcn_target "amdgcn-amd-amdhsa--gfx950"
.text""")
    gen(a, opts)
    open(out, "w").write(a.text())

main()
```

```python
import math, struct, sys

NAME = "concat_heads__gqa_block_cached__gqa_block_cached__decode"

def f32bits(x):
    return struct.unpack("<I", struct.pack("<f", x))[0]

C_SCALE = (128.0 ** -0.5) * math.log2(math.e)
C_BITS = f32bits(C_SCALE)

WS_Q = 0
WS_PO = 0x40000
WS_PML = 0xC0000
WS_POUT = 0x100000
WS_CNT = 0x1C0000
WS_SIZE = 0x200000

L_R1 = 17408
L_R2 = 25600
L_R3 = 41984
L_Q = 42240
L_T3 = 43264
LDS_BYTES = 43264 + 7 * 16384

SEL_LO = 0x05040100
SEL_HI = 0x07060302

class Asm:
    def __init__(self):
        self.lines = []
    def __call__(self, s):
        for ln in s.strip("\n").split("\n"):
            self.lines.append(ln)
    def text(self):
        return "\n".join(self.lines) + "\n"

def srd(a, d, lo, hi, size):
    a(f"""  s_mov_b32 s{d}, s{lo}
  s_and_b32 s{d+1}, s{hi}, 0xffff
  s_mov_b32 s{d+2}, {size:#x}
  s_mov_b32 s{d+3}, 0x00020000""")

def kernel_header(a, name):
    a(f""".globl {name}
.p2align 8
.type {name},@function
{name}:""")

def kernel_desc(a, name, vgpr, sgpr=96):
    acc = (vgpr + 3) // 4 * 4
    a(f""".p2align 6
.amdhsa_kernel {name}
  .amdhsa_next_free_vgpr {vgpr}
  .amdhsa_next_free_sgpr {sgpr}
  .amdhsa_accum_offset {acc}
  .amdhsa_group_segment_fixed_size 0
  .amdhsa_kernarg_size 104
  .amdhsa_user_sgpr_count 2
  .amdhsa_user_sgpr_kernarg_segment_ptr 1
  .amdhsa_system_sgpr_workgroup_id_x 1
.end_amdhsa_kernel""")

def gen_qproj(a, PF=0):
    name = "qproj_kernel"
    kernel_header(a, name)
    a(f"""  s_cmp_ge_u32 s2, 128
  s_cbranch_scc1 {'L_pf' if PF else 'L_q_end'}
  s_load_dwordx2 s[4:5], s[0:1], 0
  s_load_dwordx2 s[6:7], s[0:1], 24
  s_load_dwordx2 s[8:9], s[0:1], 40
  s_load_dwordx2 s[10:11], s[0:1], 64
  s_load_dwordx2 s[12:13], s[0:1], 96
  v_and_b32 v1, 63, v0
  v_lshrrev_b32 v5, 6, v0
  v_and_b32 v2, 15, v1            ; n
  v_lshrrev_b32 v3, 4, v1         ; g
  v_readfirstlane_b32 s30, v5
  s_lshr_b32 s28, s2, 6           ; p
  s_and_b32 s29, s2, 63           ; slab
  s_mov_b32 s40, {SEL_LO:#x}
  s_mov_b32 s41, {SEL_HI:#x}
  v_lshlrev_b32 v6, 16, v3        ; g*65536
  v_lshl_add_u32 v6, v2, 3, v6    ; + n*8  -> voffset W
  v_lshlrev_b32 v7, 10, v2        ; n*1024
  v_lshl_add_u32 v7, v3, 4, v7    ; + g*16 -> voffset x
  s_waitcnt lgkmcnt(0)
  s_cmp_eq_u32 s28, 0
  s_cselect_b32 s4, s4, s8
  s_cselect_b32 s5, s5, s9
  s_cselect_b32 s6, s6, s10
  s_cselect_b32 s7, s7, s11""")
    srd(a, 16, 4, 5, 8192)
    srd(a, 20, 6, 7, 512 * 4096 * 2)
    srd(a, 24, 12, 13, WS_SIZE)
    a(f"""  s_cmp_ge_u32 s2, 32
  s_cbranch_scc1 L_q_nocnt
  s_cmp_lg_u32 s30, 0
  s_cbranch_scc1 L_q_nocnt
  s_lshl_b32 s31, s2, 8
  s_add_u32 s31, s31, {WS_CNT:#x}
  v_mov_b32 v8, 0
  s_mov_b64 exec, 1
  buffer_store_dword v8, v8, s[24:27], s31 offen
  s_mov_b64 exec, -1
L_q_nocnt:""")
    a(f"""  s_lshl_b32 s31, s30, 19
  s_lshl_b32 s32, s29, 7
  s_add_u32 s31, s31, s32
  s_lshl_b32 s33, s30, 7          ; x soffset = w*64*2""")
    for i in range(16):
        a(f"""  s_add_u32 s34, s31, {((i>>3)*32+(i&7))*8192:#x}
  buffer_load_dwordx2 v[{16+2*i}:{17+2*i}], v6, s[20:23], s34 offen""")
    a(f"""  buffer_load_dwordx4 v[48:51], v7, s[16:19], s33 offen
  buffer_load_dwordx4 v[52:55], v7, s[16:19], s33 offen offset:64
  s_waitcnt vmcnt(0)""")
    for grp in range(2):
        wb = 16 + 16 * grp
        for e in range(4):
            sel = "s40" if (e & 1) == 0 else "s41"
            for q in range(4):
                lo = wb + 2 * (2 * q) + (e >> 1)
                hi = wb + 2 * (2 * q + 1) + (e >> 1)
                a(f"  v_perm_b32 v{56+4*e+q}, v{hi}, v{lo}, {sel}")
        a("  s_nop 1")
        for e in range(4):
            c = "0" if grp == 0 else f"v[{72+4*e}:{75+4*e}]"
            a(f"  v_mfma_f32_16x16x32_bf16 v[{72+4*e}:{75+4*e}], v[{48+4*grp}:{51+4*grp}], v[{56+4*e}:{59+4*e}], {c}")
    a(f"""  s_nop 7
  s_nop 7
  v_lshlrev_b32 v8, 10, v3        ; g*1024
  v_lshl_add_u32 v8, v2, 4, v8    ; + n*16
  v_lshl_add_u32 v8, v5, 11, v8   ; + w*2048
  v_cmp_gt_u32 vcc, 32, v1
  s_and_saveexec_b64 s[36:37], vcc""")
    for e in range(4):
        for r in range(4):
            a(f"  ds_write_b32 v8, v{72+4*e+r} offset:{r*256+e*4}")
    a(f"""  s_mov_b64 exec, s[36:37]
  s_waitcnt lgkmcnt(0)
  s_barrier
  v_lshlrev_b32 v9, 2, v0         ; t*4 = b*256 + col*4""")
    for w in range(8):
        a(f"  ds_read_b32 v{16+w}, v9 offset:{w*2048}")
    a(f"""  s_waitcnt lgkmcnt(0)
  v_add_f32 v16, v16, v17
  v_add_f32 v18, v18, v19
  v_add_f32 v20, v20, v21
  v_add_f32 v22, v22, v23
  v_add_f32 v16, v16, v18
  v_add_f32 v20, v20, v22
  v_add_f32 v16, v16, v20
  v_cvt_pk_bf16_f32 v16, v16, v16
  v_lshlrev_b32 v10, 13, v5
  v_lshl_add_u32 v10, v1, 1, v10
  s_lshl_b32 s34, s28, 16
  s_lshl_b32 s35, s29, 7
  s_add_u32 s34, s34, s35
  buffer_store_short v16, v10, s[24:27], s34 offen
L_q_end:
  s_endpgm""")
    if PF:
        a(f"""L_pf:
  s_cmp_ge_u32 s2, 384
  s_cbranch_scc1 L_q_end
  s_load_dwordx4 s[4:7], s[0:1], 8      ; A_k, A_v
  s_load_dwordx4 s[8:11], s[0:1], 48    ; B_k, B_v
  s_sub_u32 s3, s2, 128
  s_and_b32 s29, s3, 7            ; hkv
  s_lshr_b32 s28, s3, 7           ; p
  s_lshr_b32 s47, s3, 3
  s_and_b32 s47, s47, 15          ; mem
  s_lshr_b32 s46, s47, 1          ; b
  s_and_b32 s43, s47, 1           ; split
  s_lshl_b32 s31, s46, 3
  s_add_u32 s31, s31, s29
  s_lshl_b32 s31, s31, 21
  s_lshl_b32 s32, s43, 20
  s_add_u32 s31, s31, s32
  v_lshlrev_b32 v1, 4, v0
  s_waitcnt lgkmcnt(0)
  s_cmp_eq_u32 s28, 0
  s_cselect_b32 s4, s4, s8
  s_cselect_b32 s5, s5, s9
  s_cselect_b32 s6, s6, s10
  s_cselect_b32 s7, s7, s11""")
        srd(a, 16, 4, 5, 0x8000000)
        srd(a, 20, 6, 7, 0x8000000)
        for i in range(PF):
            a(f"""  s_add_u32 s32, s31, {i*8192}
  buffer_load_dwordx4 v[{8+8*(i%8)}:{11+8*(i%8)}], v1, s[16:19], s32 offen
  buffer_load_dwordx4 v[{12+8*(i%8)}:{15+8*(i%8)}], v1, s[20:23], s32 offen""")
            if i % 8 == 7:
                a("  s_waitcnt vmcnt(0)")
        a("""  s_waitcnt vmcnt(0)
  s_endpgm""")
    return name, 96

def gen_oproj(a, merge=False):
    name = "oproj_kernel"
    TAILA = f"""  ; POUT addr = WS_POUT + ((p*16+ks)*8 + b)*2048 + (slab*64+col)*4
  v_lshlrev_b32 v10, 11, v5
  v_lshl_add_u32 v10, v1, 2, v10
  s_lshl_b32 s33, s28, 4
  s_add_u32 s33, s33, s29
  s_lshl_b32 s33, s33, 14
  s_lshl_b32 s34, s43, 8
  s_add_u32 s33, s33, s34
  s_add_u32 s33, s33, {WS_POUT:#x}
  buffer_store_dword v16, v10, s[24:27], s33 offen"""
    sums = "\n".join(f"  v_add_f32 v{16+i}, v{16+i}, v{16+i+st}" for st in (1, 2, 4, 8) for i in range(0, 16, 2 * st))
    lds_ = "\n".join(f"  s_add_u32 s35, s34, {ks*2048}\n  buffer_load_dword v{16+ks}, v9, s[24:27], s35 offen sc1" for ks in range(16))
    TAILB = f"""  ; POUT byte = WS_POUT + ((p*8+slab)*16 + ks)*2048 + t*4
  s_lshl_b32 s33, s28, 3
  s_add_u32 s33, s33, s43          ; p*8+slab
  s_lshl_b32 s34, s33, 15
  s_add_u32 s34, s34, {WS_POUT:#x}
  s_lshl_b32 s35, s29, 11
  s_add_u32 s35, s35, s34
  buffer_store_dword v16, v9, s[24:27], s35 offen sc1
  s_waitcnt vmcnt(0)
  s_barrier
  s_cmp_lg_u32 s30, 0
  s_cbranch_scc1 L_oo_wait
  s_lshl_b32 s31, s33, 8
  s_add_u32 s31, s31, {WS_CNT:#x}
  v_mov_b32 v12, 1
  v_mov_b32 v13, 0
  s_mov_b64 exec, 1
  buffer_atomic_add v12, v13, s[24:27], s31 offen sc0 sc1
  s_waitcnt vmcnt(0)
  ds_write_b32 v13, v12
  s_waitcnt lgkmcnt(0)
  s_mov_b64 exec, -1
L_oo_wait:
  s_barrier
  v_mov_b32 v13, 0
  ds_read_b32 v12, v13
  s_waitcnt lgkmcnt(0)
  v_readfirstlane_b32 s39, v12
  s_cmp_lg_u32 s39, 15
  s_cbranch_scc1 L_o_end
{lds_}
  v_lshlrev_b32 v10, 11, v5
  v_lshl_add_u32 v10, v1, 1, v10
  s_lshl_b32 s35, s33, 7
  s_waitcnt vmcnt(0)
{sums}
  v_cvt_pk_bf16_f32 v16, v16, v16
  buffer_store_short v16, v10, s[60:63], s35 offen"""
    kernel_header(a, name)
    a(f"""  s_cmp_ge_u32 s2, 256
  s_cbranch_scc1 L_o_end
  s_load_dwordx2 s[4:5], s[0:1], 32     ; A_wo
  s_load_dwordx2 s[8:9], s[0:1], 72     ; B_wo
  s_load_dwordx2 s[12:13], s[0:1], 96   ; ws
  s_load_dwordx4 s[84:87], s[0:1], 80
  v_and_b32 v1, 63, v0
  v_lshrrev_b32 v5, 6, v0
  v_and_b32 v2, 15, v1            ; n
  v_lshrrev_b32 v3, 4, v1         ; g
  v_readfirstlane_b32 s30, v5
  s_lshr_b32 s28, s2, 7           ; p
  s_lshr_b32 s29, s2, 3
  s_and_b32 s29, s29, 15          ; ks
  s_and_b32 s43, s2, 7            ; slab
  s_mov_b32 s40, {SEL_LO:#x}
  s_mov_b32 s41, {SEL_HI:#x}
  s_mov_b32 s42, {C_BITS:#x}
  v_lshlrev_b32 v6, 13, v3        ; g*8192
  v_lshl_add_u32 v6, v2, 3, v6    ; + n*8
  s_waitcnt lgkmcnt(0)
  s_cmp_eq_u32 s28, 0
  s_cselect_b32 s4, s4, s8
  s_cselect_b32 s5, s5, s9""")
    srd(a, 20, 4, 5, 4096 * 512 * 2)
    srd(a, 24, 12, 13, WS_SIZE)
    srd(a, 60, 84, 85, 8192 * 2)
    srd(a, 64, 86, 87, 256)
    a(f"""  ; wo soffset = (ks*256 + w*32)*1024 + slab*128
  s_lshl_b32 s31, s29, 18
  s_lshl_b32 s32, s30, 15
  s_add_u32 s31, s31, s32
  s_lshl_b32 s32, s43, 7
  s_add_u32 s31, s31, s32
  s_add_u32 s32, s31, 4096""")
    for i in range(8):
        a(f"  buffer_load_dwordx2 v[{16+2*i}:{17+2*i}], v6, s[20:23], s{31+(i>>2)} offen offset:{(i&3)*1024}")
    a(f"""  v_lshrrev_b32 v7, 5, v1         ; hi
  v_and_b32 v8, 31, v1
  v_lshlrev_b32 v9, 9, v7         ; hi*512
  v_lshl_add_u32 v9, v8, 4, v9
  v_lshlrev_b32 v10, 3, v7        ; hi*8
  s_lshl_b32 s33, s28, 6
  s_lshl_b32 s34, s30, 3
  s_add_u32 s33, s33, s34
  s_lshr_b32 s34, s29, 1
  s_add_u32 s33, s33, s34         ; unit
  s_and_b32 s35, s29, 1           ; ks&1
  s_lshl_b32 s36, s33, 12         ; unit*2*2048
  s_lshl_b32 s37, s35, 10         ; (ks&1)*2*512
  s_add_u32 s36, s36, s37
  s_add_u32 s36, s36, {WS_PO:#x}
  s_lshl_b32 s38, s33, 6          ; unit*2*32
  s_lshl_b32 s37, s35, 4
  s_add_u32 s38, s38, s37
  s_add_u32 s38, s38, {WS_PML:#x}
  buffer_load_dwordx4 v[32:35], v9, s[24:27], s36 offen
  buffer_load_dwordx4 v[36:39], v9, s[24:27], s36 offen offset:2048
  buffer_load_dwordx2 v[40:41], v10, s[24:27], s38 offen
  buffer_load_dwordx2 v[42:43], v10, s[24:27], s38 offen offset:32
  s_waitcnt vmcnt(0)
  v_max_f32 v44, v40, v42
  v_sub_f32 v40, v40, v44
  v_sub_f32 v42, v42, v44
  v_mul_f32 v40, s42, v40
  v_mul_f32 v42, s42, v42
  v_exp_f32 v40, v40
  v_exp_f32 v42, v42
  s_nop 0
  v_mul_f32 v45, v40, v41
  v_fmac_f32 v45, v42, v43
  v_rcp_f32 v45, v45
  s_nop 0
  v_mul_f32 v40, v40, v45
  v_mul_f32 v42, v42, v45""")
    for i in range(4):
        a(f"""  v_mul_f32 v{32+i}, v{32+i}, v40
  v_fmac_f32 v{32+i}, v{36+i}, v42""")
    a(f"""  v_cvt_pk_bf16_f32 v32, v32, v33
  v_cvt_pk_bf16_f32 v33, v34, v35
  v_lshlrev_b32 v11, 9, v5
  v_lshl_add_u32 v11, v1, 3, v11
  ds_write_b64 v11, v[32:33]
  s_waitcnt lgkmcnt(0)
  s_barrier
  v_lshlrev_b32 v11, 9, v2
  v_lshl_add_u32 v11, v5, 6, v11
  v_lshl_add_u32 v11, v3, 4, v11
  ds_read_b128 v[48:51], v11""")
    for e in range(4):
        sel = "s40" if (e & 1) == 0 else "s41"
        for q in range(4):
            lo = 16 + 2 * (2 * q) + (e >> 1)
            hi = 16 + 2 * (2 * q + 1) + (e >> 1)
            a(f"  v_perm_b32 v{56+4*e+q}, v{hi}, v{lo}, {sel}")
    a("  s_waitcnt lgkmcnt(0)")
    a("  s_nop 1")
    for e in range(4):
        a(f"  v_mfma_f32_16x16x32_bf16 v[{72+4*e}:{75+4*e}], v[48:51], v[{56+4*e}:{59+4*e}], 0")
    a(f"""  s_nop 7
  s_nop 7
  v_lshlrev_b32 v8, 10, v3        ; g*1024
  v_lshl_add_u32 v8, v2, 4, v8    ; + n*16
  v_lshl_add_u32 v8, v5, 11, v8   ; + w*2048
  v_cmp_gt_u32 vcc, 32, v1
  s_and_saveexec_b64 s[44:45], vcc""")
    for e in range(4):
        for r in range(4):
            a(f"  ds_write_b32 v8, v{72+4*e+r} offset:{8192+r*256+e*4}")
    a(f"""  s_mov_b64 exec, s[44:45]
  s_waitcnt lgkmcnt(0)
  s_barrier
  v_lshlrev_b32 v9, 2, v0""")
    for w in range(8):
        a(f"  ds_read_b32 v{16+w}, v9 offset:{8192+w*2048}")
    a(f"""  s_waitcnt lgkmcnt(0)
  v_add_f32 v16, v16, v17
  v_add_f32 v18, v18, v19
  v_add_f32 v20, v20, v21
  v_add_f32 v22, v22, v23
  v_add_f32 v16, v16, v18
  v_add_f32 v20, v20, v22
  v_add_f32 v16, v16, v20
{TAILA if not merge else TAILB}
L_o_end:
  s_endpgm""")
    return name, 96

def gen_final(a):
    name = "final_kernel"
    kernel_header(a, name)
    a(f"""  s_cmp_ge_u32 s2, 32
  s_cbranch_scc1 L_f_end
  s_load_dwordx2 s[4:5], s[0:1], 80     ; out
  s_load_dwordx2 s[12:13], s[0:1], 96   ; ws
  s_lshl_b32 s3, s2, 8
  v_add_u32 v1, s3, v0            ; o = b*1024 + p*512 + n
  v_lshrrev_b32 v2, 10, v1        ; b
  v_bfe_u32 v3, v1, 9, 1          ; p
  v_and_b32 v4, 511, v1           ; n
  v_lshlrev_b32 v5, 18, v3
  v_lshl_add_u32 v5, v2, 11, v5
  v_lshl_add_u32 v5, v4, 2, v5
  v_lshlrev_b32 v6, 1, v1
  s_waitcnt lgkmcnt(0)""")
    srd(a, 16, 4, 5, 8192 * 2)
    srd(a, 24, 12, 13, WS_SIZE)
    for ks in range(16):
        a(f"""  s_mov_b32 s30, {WS_POUT + ks*16384:#x}
  buffer_load_dword v{16+ks}, v5, s[24:27], s30 offen""")
    a("  s_waitcnt vmcnt(0)")
    for st in (1, 2, 4, 8):
        for i in range(0, 16, 2 * st):
            a(f"  v_add_f32 v{16+i}, v{16+i}, v{16+i+st}")
    a(f"""  v_cvt_pk_bf16_f32 v16, v16, v16
  buffer_store_short v16, v6, s[16:19], 0 offen
L_f_end:
  s_endpgm""")
    return name, 40

def gen(a, opts):
    TAIL = 1
    GOEARLY = int(opts.get('goearly','1'))
    WFIRST = 0
    WIN = int(opts.get('win','4'))
    STAMP = int(opts.get("stamp", "0"))
    def stamp(idx):
        if not STAMP:
            return
        a(f"""  s_memrealtime s[90:91]
  s_waitcnt lgkmcnt(0)
  s_mov_b32 s{92 if False else 88}, s90
  v_writelane_b32 v{91}, s90, {idx}""")
        if idx == 0:
            a(f"""  s_not_b32 s90, s90
  v_writelane_b32 v91, s90, 10""")
    name = NAME + "_kernel"
    NIT = 16
    ldflags = opts.get("ldflags", "nt")
    depth = 2
    PSLEEP = int(opts.get("psleep", "1"))
    SPIN = int(opts.get("spin", "400000"))
    Q0 = 4; O0 = 20; S0 = 52; S1 = 56; P0 = 60; A0 = 64
    MRUN = 76; MC = 77; L = 78; T0 = 79; T1 = 80; MX = 81; AL = 82
    NR = 83; GR = 84; VQ = 85; E0 = 86; E1 = 87; E2 = 88; LANE = 89; VZ = 90; GRB = 85; CADDR = 92; ONE = 93
    KV0 = 96
    nvgpr = KV0 + 64 * depth
    STEP = 8192 * 8
    W0 = 20; X0 = 36; B0 = 44; D0 = 52
    a(f""".globl {name}
.p2align 8
.type {name},@function
{name}:
  s_cmp_ge_u32 s2, 256
  s_cbranch_scc1 L_end
  s_load_dwordx8 s[4:11], s[0:1], 0     ; A_x, A_k, A_v, A_wq
  s_load_dwordx8 s[72:79], s[0:1], 32   ; A_wo, B_x, B_k, B_v
  s_load_dwordx8 s[80:87], s[0:1], 64
  s_load_dwordx2 s[12:13], s[0:1], 96   ; ws
  v_and_b32 v{LANE}, 63, v0
  v_lshrrev_b32 v3, 6, v0
  v_and_b32 v{NR}, 15, v{LANE}          ; n / h
  v_lshrrev_b32 v{GR}, 4, v{LANE}       ; g
  v_readfirstlane_b32 s30, v3
  s_and_b32 s29, s2, 7            ; hkv
  s_lshr_b32 s28, s2, 7           ; p
  s_lshr_b32 s47, s2, 3
  s_and_b32 s47, s47, 15          ; mem
  s_lshl_b32 s68, s28, 3
  s_add_u32 s68, s68, s29
  s_lshl_b32 s89, s68, 4
  s_add_u32 s89, s89, s47         ; grp*16+mem
  s_lshr_b32 s46, s47, 1          ; b
  s_and_b32 s43, s47, 1           ; split
{'' if TAIL else '''  s_lshl_b32 s89, s28, 6
  s_lshl_b32 s31, s46, 3
  s_add_u32 s89, s89, s31
  s_add_u32 s89, s89, s29
  s_lshl_b32 s89, s89, 1
  s_add_u32 s89, s89, s43'''}
  s_mov_b32 s40, {SEL_LO:#x}
  s_mov_b32 s41, {SEL_HI:#x}
  s_mov_b32 s42, {C_BITS:#x}
  v_lshlrev_b32 v1, 8, v{NR}
  v_lshl_add_u32 v1, v{GR}, 4, v1
  v_lshlrev_b32 v2, 10, v{GR}
  v_lshl_add_u32 v2, v{NR}, 4, v2  ; voffV = g*1024 + n*16
  v_lshlrev_b32 v{E0}, 16, v{GR}
  v_lshl_add_u32 v{E0}, v{NR}, 2, v{E0}   ; voffW = g*65536 + n*4
  v_lshlrev_b32 v{E1}, 10, v{NR}
  v_lshl_add_u32 v{E1}, v{GR}, 4, v{E1}   ; voffX = n*1024 + g*16
  v_mov_b32 v{VZ}, 0
  s_waitcnt lgkmcnt(0)
  s_cmp_eq_u32 s28, 0
  s_cselect_b32 s4, s4, s74       ; x
  s_cselect_b32 s5, s5, s75
  s_cselect_b32 s6, s6, s76       ; k
  s_cselect_b32 s7, s7, s77
  s_cselect_b32 s8, s8, s78       ; v
  s_cselect_b32 s9, s9, s79
  s_cselect_b32 s10, s10, s80     ; wq
  s_cselect_b32 s11, s11, s81
  s_cselect_b32 s72, s72, s82     ; wo
  s_cselect_b32 s73, s73, s83""")
    srd(a, 48, 10, 11, 512 * 4096 * 2)
    srd(a, 52, 4, 5, 8192)
    srd(a, 16, 6, 7, 0x8000000)
    srd(a, 20, 8, 9, 0x8000000)
    srd(a, 24, 12, 13, WS_SIZE)
    srd(a, 56, 72, 73, 4096 * 512 * 2)
    srd(a, 60, 84, 85, 8192 * 2)
    srd(a, 64, 86, 87, 256)
    stamp(0)
    a(f"""  ; K/V byte base = (b*8+hkv)*2MiB + split*1MiB
  s_lshl_b32 s71, s46, 3
  s_add_u32 s71, s71, s29
  s_lshl_b32 s71, s71, 21
  s_lshl_b32 s34, s43, 20
  s_add_u32 s71, s71, s34""")

    ROT = int(opts.get('rot', '0'))
    if ROT:
        a(f"""  s_mul_i32 s45, s2, {ROT}
  s_and_b32 s45, s45, 127""")
    def setaddr(tile_sreg):
        if ROT:
            a(f"""  s_add_u32 s33, {tile_sreg}, s45
  s_and_b32 s33, s33, 127
  s_lshl_b32 s33, s33, 13
  s_add_u32 s33, s33, s71
  s_add_u32 s34, s33, 4096""")
            return
        a(f"""  s_lshl_b32 s33, {tile_sreg}, 13
  s_add_u32 s33, s33, s71
  s_add_u32 s34, s33, 4096""")
    def kloads(st):
        K0 = KV0 + 64 * st
        for t in range(2):
            for j in range(4):
                r = K0 + (t * 4 + j) * 4
                a(f"  buffer_load_dwordx4 v[{r}:{r+3}], v1, s[16:19], s{33+t} offen offset:{j*64} {ldflags}")
    def vloads(st):
        V0 = KV0 + 64 * st + 32
        for i in range(8):
            r = V0 + i * 4
            a(f"  buffer_load_dwordx4 v[{r}:{r+3}], v2, s[20:23], s{33+(i>>2)} offen offset:{(i&3)*256} {ldflags}")
    def grab():
        a(f"""  s_mov_b64 exec, 1
  ds_add_rtn_u32 v{GRB}, v{CADDR}, v{ONE}
  s_mov_b64 exec, -1""")
    def grab_read(sreg):
        a(f"""  s_waitcnt lgkmcnt(0)
  v_readfirstlane_b32 {sreg}, v{GRB}""")

    a(f"""  v_mov_b32 v{CADDR}, {L_R3+16}
  v_mov_b32 v{ONE}, 1
  s_or_b32 s31, s2, s30
  s_cmp_lg_u32 s31, 0
  s_cbranch_scc1 L_nozero
  v_lshlrev_b32 v{E2}, 8, v{LANE}
  v_cmp_gt_u32 vcc, 48, v{LANE}
  s_mov_b32 s31, {WS_CNT:#x}
  s_and_saveexec_b64 s[36:37], vcc
  buffer_store_dword v{VZ}, v{E2}, s[24:27], s31 offen sc1
  s_mov_b64 exec, s[36:37]
L_nozero:
  s_lshl_b32 s31, s30, 19         ; w*64*8192
  s_lshl_b32 s32, s29, 10         ; hkv*1024
  s_add_u32 s31, s31, s32
  s_lshl_b32 s32, s47, 6          ; mem*64
  s_add_u32 s31, s31, s32
  s_lshl_b32 s33, s30, 7          ; x soffset""")
    for i in range(16):
        a(f"""  s_add_u32 s34, s31, {((i>>3)*32+(i&7))*8192:#x}
  buffer_load_dword v{W0+i}, v{E0}, s[48:51], s34 offen""")
    a(f"""  buffer_load_dwordx4 v[{X0}:{X0+3}], v{E1}, s[52:55], s33 offen
  buffer_load_dwordx4 v[{X0+4}:{X0+7}], v{E1}, s[52:55], s33 offen offset:64
  s_cmp_eq_u32 s30, 0
  s_cbranch_scc1 L_w0_nopf
  s_sub_u32 s35, s30, 1
  s_sub_u32 s94, s30, 1
  s_lshl_b32 s94, s94, 14
  s_add_u32 s94, s94, {L_T3}""")
    setaddr("s35")
    a(f"""  s_waitcnt vmcnt(0)
  s_cmp_gt_u32 s30, {WIN}
  s_cbranch_scc1 L_w_join""")
    kloads(0); vloads(0)
    a(f"""  s_branch L_w_join
L_w0_nopf:
  v_mov_b32 v{GRB}, 21
  s_mov_b64 exec, 1
  ds_write_b32 v{CADDR}, v{GRB}
  ds_write_b32 v{CADDR}, v{VZ} offset:8       ; completed = 0
  ds_write_b32 v{CADDR}, v{VZ} offset:12      ; q ready = 0
  s_mov_b64 exec, -1
  s_cmp_lg_u32 s2, 0
  s_cbranch_scc1 L_w0_noflag
  s_waitcnt vmcnt(18)
  s_mov_b64 exec, 1
  buffer_store_dword v{ONE}, v{VZ}, s[64:67], 0 offen sc1
  s_mov_b64 exec, -1
L_w0_noflag:
  s_waitcnt vmcnt(0)
L_w_join:""")
    stamp(1)
    for g32 in range(2):
        wb = W0 + 8 * g32
        for e in range(2):
            sel = "s40" if e == 0 else "s41"
            for q in range(4):
                a(f"  v_perm_b32 v{B0+4*e+q}, v{wb+2*q+1}, v{wb+2*q}, {sel}")
        a("  s_nop 1")
        for e in range(2):
            c = "0" if g32 == 0 else f"v[{D0+4*e}:{D0+4*e+3}]"
            a(f"  v_mfma_f32_16x16x32_bf16 v[{D0+4*e}:{D0+4*e+3}], v[{X0+4*g32}:{X0+4*g32+3}], v[{B0+4*e}:{B0+4*e+3}], {c}")
    a(f"""  s_nop 7
  s_nop 3
  v_lshlrev_b32 v{E2}, 10, v3          ; w*1024
  v_lshl_add_u32 v{E2}, v{GR}, 9, v{E2}   ; + g*512
  v_lshl_add_u32 v{E2}, v{NR}, 3, v{E2}   ; + n*8
  v_cmp_gt_u32 vcc, 32, v{LANE}
  s_and_saveexec_b64 s[36:37], vcc""")
    for e in range(2):
        for r in range(4):
            a(f"  ds_write_b32 v{E2}, v{D0+4*e+r} offset:{r*128+e*4}")
    a(f"""  s_mov_b64 exec, s[36:37]
  s_waitcnt lgkmcnt(0)
  s_barrier
  s_cmp_lg_u32 s30, 0
  s_cbranch_scc1 L_q_others
  ; wave 0: reduce + publish q slice ; lane l: b' = l>>3, c4 = l&7 -> lds addr l*16
  v_lshlrev_b32 v{E2}, 4, v{LANE}""")
    for w in range(8):
        a(f"  ds_read_b128 v[{W0+4*w}:{W0+4*w+3}], v{E2} offset:{w*1024}")
    a("  s_waitcnt lgkmcnt(0)")
    for st in (1, 2, 4):
        for w in range(0, 8, 2 * st):
            for c in range(4):
                a(f"  v_add_f32 v{W0+4*w+c}, v{W0+4*w+c}, v{W0+4*(w+st)+c}")
    GO = "ds_write_b32 v%d, v%d offset:4" % (CADDR, ONE)
    a(f"""  v_cvt_pk_bf16_f32 v{W0}, v{W0}, v{W0+1}
  v_cvt_pk_bf16_f32 v{W0+1}, v{W0+2}, v{W0+3}
  v_lshrrev_b32 v{E2}, 3, v{LANE}
  v_lshlrev_b32 v{E2}, 10, v{E2}
  v_and_b32 v{E1}, 7, v{LANE}
  v_lshl_add_u32 v{E2}, v{E1}, 3, v{E2}
  s_lshl_b32 s31, s68, 13
  s_lshl_b32 s32, s47, 6
  s_add_u32 s31, s31, s32
  buffer_store_dwordx2 v[{W0}:{W0+1}], v{E2}, s[24:27], s31 offen sc1
  s_mov_b64 exec, 1
  s_mov_b32 s38, {SPIN}
L_f_poll:
  buffer_load_dword v{E1}, v{VZ}, s[64:67], 0 offen sc1
  s_waitcnt vmcnt(0)
  v_readfirstlane_b32 s39, v{E1}
  s_cmp_lg_u32 s39, 0
  s_cbranch_scc1 L_f_done
  s_sleep 2
  s_sub_u32 s38, s38, 1
  s_cmp_lg_u32 s38, 0
  s_cbranch_scc1 L_f_poll
L_f_done:""")
    stamp(2)
    a(f"""  s_lshl_b32 s31, s68, 8
  s_add_u32 s31, s31, {WS_CNT + 8192:#x}          ; S1 counter
  buffer_atomic_add v{ONE}, v{VZ}, s[24:27], s31 offen sc1
  s_mov_b32 s38, {SPIN}
L_q_poll:
  buffer_load_dword v{E1}, v{VZ}, s[24:27], s31 offen sc1
  s_waitcnt vmcnt(0)
  v_readfirstlane_b32 s39, v{E1}
  s_cmp_ge_u32 s39, 16
  s_cbranch_scc1 L_q_done
  s_sleep 2
  s_sub_u32 s38, s38, 1
  s_cmp_lg_u32 s38, 0
  s_cbranch_scc1 L_q_poll
L_q_done:
  s_mov_b64 exec, -1""")
    stamp(3)
    a(f"""  ; wave 0 fetches q[grp][b][512] (1 KB) and puts it into LDS
  s_lshl_b32 s31, s68, 13
  s_lshl_b32 s32, s46, 10
  s_add_u32 s31, s31, s32
  v_lshlrev_b32 v{E2}, 4, v{LANE}
  buffer_load_dwordx4 v[{W0}:{W0+3}], v{E2}, s[24:27], s31 offen sc1
  s_waitcnt vmcnt(0)
  ds_write_b128 v{E2}, v[{W0}:{W0+3}] offset:{L_Q}
  ds_write_b32 v{CADDR}, v{ONE} offset:12
  s_waitcnt lgkmcnt(0)
  s_branch L_q_wait
L_q_others:""")
    def token(tag, need_expr):
        a(f"""  {need_expr}
  s_mov_b32 s38, {SPIN}
L_tok{tag}:
  ds_read_b64 v[{T1}:{T1+1}], v{CADDR} offset:8
  s_waitcnt lgkmcnt(0)
  v_readfirstlane_b32 s39, v{T1}
  v_readfirstlane_b32 s95, v{T1+1}
  s_cmp_lg_u32 s95, 0
  s_cbranch_scc1 L_tok{tag}_ok
  s_cmp_ge_u32 s39, s32
  s_cbranch_scc1 L_tok{tag}_ok
  s_sleep 1
  s_sub_u32 s38, s38, 1
  s_cmp_lg_u32 s38, 0
  s_cbranch_scc1 L_tok{tag}
L_tok{tag}_ok:""")
    def landed(tag):
        a(f"""  s_cmp_lg_u32 s95, 0
  s_cbranch_scc1 L_land{tag}
  s_waitcnt vmcnt(0)
  s_mov_b64 exec, 1
  ds_add_u32 v{CADDR}, v{ONE} offset:8
  s_mov_b64 exec, -1
L_land{tag}:""")
    a(f"""  s_mov_b32 s95, 0
  s_cmp_le_u32 s30, {WIN}
  s_cbranch_scc1 L_slot0_issued""")
    token(0, f"s_sub_u32 s32, s30, {WIN}")
    kloads(0); vloads(0)
    a("L_slot0_issued:")
    landed(0)
    token(1, f"s_add_u32 s32, s30, {7 - WIN}")
    a("  s_add_u32 s35, s30, 13")
    setaddr("s35")
    for t in range(2):
        for j in range(4):
            i = t * 4 + j
            a(f"""  s_add_u32 m0, s94, {i*1024 - j*64}
  s_nop 0
  buffer_load_dwordx4 v1, s[16:19], s{33+t} offen offset:{j*64} {ldflags} lds""")
    for i in range(8):
        a(f"""  s_add_u32 m0, s94, {8192 + i*1024 - (i&3)*256}
  s_nop 0
  buffer_load_dwordx4 v2, s[20:23], s{33+(i>>2)} offen offset:{(i&3)*256} {ldflags} lds""")
    landed(1)
    token(2, f"s_add_u32 s32, s30, {14 - WIN}")
    a("  s_add_u32 s35, s30, 6")
    setaddr("s35")
    kloads(1); vloads(1)
    landed(2)
    a("  s_waitcnt lgkmcnt(0)")
    a(f"""L_q_wait:
  s_barrier""")
    for i in range(16):
        a(f"  v_mov_b32 v{Q0+i}, 0")
    a(f"""  v_cmp_gt_u32 vcc, 4, v{NR}
  s_and_saveexec_b64 s[36:37], vcc""")
    for j in range(4):
        a(f"  ds_read_b128 v[{Q0+4*j}:{Q0+4*j+3}], v1 offset:{L_Q+j*64}")
    a("  s_mov_b64 exec, s[36:37]")
    for i in range(32):
        a(f"  v_mov_b32 v{O0+i}, 0")
    a(f"""  v_mov_b32 v{MRUN}, 0xff800000
  v_mov_b32 v{MC}, 0xff800000
  v_mov_b32 v{L}, 0
  s_waitcnt lgkmcnt(0)""")
    stamp(4)

    def body(st, issue, wk, wv, tag):
        K0 = KV0 + 64 * st
        V0 = K0 + 32
        a(f"  s_waitcnt vmcnt({wk})")
        for t in range(2):
            sreg = S0 if t == 0 else S1
            for j in range(4):
                r = K0 + (t * 4 + j) * 4
                c = "0" if j == 0 else f"v[{sreg}:{sreg+3}]"
                a(f"  v_mfma_f32_16x16x32_bf16 v[{sreg}:{sreg+3}], v[{r}:{r+3}], v[{Q0+4*j}:{Q0+4*j+3}], {c}")
        if issue == "lds":
            for i in range(8):
                a(f"  ds_read_b128 v[{K0+4*i}:{K0+4*i+3}], v{E2} offset:{i*1024}")
        elif issue:
            setaddr("s35")
            kloads(st)
            grab_read("s44")
        else:
            a("  s_nop 7")
        a(f"""  s_nop 1
  v_max3_f32 v{MX}, v{S0}, v{S0+1}, v{S0+2}
  v_max3_f32 v{MX}, v{MX}, v{S0+3}, v{S1}
  v_max3_f32 v{MX}, v{MX}, v{S1+1}, v{S1+2}
  v_max_f32 v{MX}, v{MX}, v{S1+3}
  v_cmp_gt_f32 vcc, v{MX}, v{MRUN}
  s_cbranch_vccz L_fast_{tag}
  v_mov_b32 v{T0}, v{MX}
  s_nop 1
  v_permlane16_swap_b32 v{MX}, v{T0}
  v_max_f32 v{MX}, v{MX}, v{T0}
  v_mov_b32 v{T0}, v{MX}
  s_nop 1
  v_permlane32_swap_b32 v{MX}, v{T0}
  v_max_f32 v{MX}, v{MX}, v{T0}
  v_max_f32 v{MX}, v{MX}, v{MRUN}      ; m_new
  v_sub_f32 v{T0}, v{MRUN}, v{MX}
  v_mul_f32 v{T0}, s42, v{T0}
  v_exp_f32 v{AL}, v{T0}
  v_mov_b32 v{MRUN}, v{MX}
  v_mul_f32 v{MC}, s42, v{MX}
  v_mul_f32 v{L}, v{L}, v{AL}""")
        for i in range(32):
            a(f"  v_mul_f32 v{O0+i}, v{O0+i}, v{AL}")
        a(f"L_fast_{tag}:")
        for i in range(8):
            a(f"  v_fma_f32 v{S0+i}, v{S0+i}, s42, -v{MC}")
        for i in range(8):
            a(f"  v_exp_f32 v{S0+i}, v{S0+i}")
        a(f"""  s_nop 0
  v_add_f32 v{T0}, v{S0}, v{S0+1}
  v_add_f32 v{T1}, v{S0+2}, v{S0+3}
  v_add_f32 v{L}, v{L}, v{T0}
  v_add_f32 v{L}, v{L}, v{T1}
  v_add_f32 v{T0}, v{S0+4}, v{S0+5}
  v_add_f32 v{T1}, v{S0+6}, v{S0+7}
  v_add_f32 v{L}, v{L}, v{T0}
  v_add_f32 v{L}, v{L}, v{T1}""")
        for q in range(4):
            a(f"  v_cvt_pk_bf16_f32 v{P0+q}, v{S0+2*q}, v{S0+2*q+1}")
        a(f"  s_waitcnt vmcnt({wv})")
        def perms(e):
            sel = "s40" if (e & 1) == 0 else "s41"
            base = A0 + 4 * (e % 3)
            for q in range(4):
                lo = V0 + 4 * (2 * q) + (e >> 1)
                hi = V0 + 4 * (2 * q + 1) + (e >> 1)
                a(f"  v_perm_b32 v{base+q}, v{hi}, v{lo}, {sel}")
        def pv(e):
            base = A0 + 4 * (e % 3)
            o = O0 + 4 * e
            a(f"  v_mfma_f32_16x16x32_bf16 v[{o}:{o+3}], v[{base}:{base+3}], v[{P0}:{P0+3}], v[{o}:{o+3}]")
        perms(0)
        for e in range(8):
            if e + 1 < 8:
                perms(e + 1)
            else:
                a("  s_nop 1")
            pv(e)
        if issue == "lds":
            for i in range(8):
                a(f"  ds_read_b128 v[{V0+4*i}:{V0+4*i+3}], v{E2} offset:{8192+i*1024}")
            a("  s_waitcnt vmcnt(0) lgkmcnt(0)")
        elif issue:
            vloads(st)

    a(f"""  s_cmp_lg_u32 s30, 0
  s_cbranch_scc1 L_first_grab""")
    grab(); grab_read("s35")
    a(f"""  s_cmp_ge_u32 s35, 128
  s_cbranch_scc1 L_loop_done""")
    setaddr("s35"); kloads(0); vloads(0)
    grab(); grab_read("s35")
    a(f"""  s_cmp_ge_u32 s35, 128
  s_cbranch_scc1 L_single""")
    setaddr("s35"); kloads(1); vloads(1)
    a("L_first_grab:")
    grab(); grab_read("s35")
    a(f"""  s_cmp_eq_u32 s30, 0
  s_cbranch_scc1 L_a_loop
  v_lshlrev_b32 v{E2}, 4, v{LANE}
  v_add_u32 v{E2}, s94, v{E2}""")
    body(0, "lds", 16, 16, "lds")
    a("  s_branch L_a_loop1")
    a("L_a_loop:")
    for st in range(2):
        if st == 1:
            a("L_a_loop1:")
        a(f"""  s_cmp_ge_u32 s35, 128
  s_cbranch_scc1 L_drain_{st}""")
        grab()
        body(st, True, 24, 24, f"m{st}")
        a("  s_mov_b32 s35, s44")
    a("  s_branch L_a_loop")
    for st in range(2):
        a(f"L_drain_{st}:")
        body(st, False, 24, 16, f"d{st}a")
        body(1 - st, False, 8, 0, f"d{st}b")
        a("  s_branch L_loop_done")
    a("L_single:")
    body(0, False, 8, 0, "sg")
    a("L_loop_done:")
    stamp(5)
    WOR = KV0
    DO = KV0 + 16
    a(f"""  ; wo loads: rows hkv*512 + ksl*256 + w*32 + g*8 + i ; cols slab*64 + n*4 ; ksl = mem>>3, slab = mem&7
  v_lshlrev_b32 v{E0}, 13, v{GR}
  v_lshl_add_u32 v{E0}, v{NR}, 3, v{E0}    ; g*8192 + n*8
  s_lshr_b32 s69, s47, 3          ; ksl
  s_and_b32 s70, s47, 7           ; slab
  s_lshl_b32 s31, s29, 19         ; hkv*512*1024
  s_lshl_b32 s32, s69, 18
  s_add_u32 s31, s31, s32
  s_lshl_b32 s32, s30, 15
  s_add_u32 s31, s31, s32
  s_lshl_b32 s32, s70, 7
  s_add_u32 s31, s31, s32
  s_add_u32 s32, s31, 4096""")
    for i in range(8):
        a(f"  buffer_load_dwordx2 v[{WOR+2*i}:{WOR+2*i+1}], v{E0}, s[56:59], s{31+(i>>2)} offen offset:{(i&3)*1024}")
    a(f"""  s_nop 3
  ; vaddr = w*2048 + h*512 + g*128
  v_lshlrev_b32 v{E0}, 11, v3
  v_lshl_add_u32 v{E0}, v{NR}, 9, v{E0}
  v_lshl_add_u32 v{E0}, v{GR}, 7, v{E0}
  v_lshlrev_b32 v{E1}, 6, v3
  v_lshl_add_u32 v{E1}, v{NR}, 4, v{E1}
  v_lshl_add_u32 v{E1}, v{GR}, 2, v{E1}
  v_lshlrev_b32 v{E2}, 4, v3
  v_lshl_add_u32 v{E2}, v{NR}, 2, v{E2}
  v_cmp_gt_u32 vcc, 4, v{NR}
  s_and_saveexec_b64 s[36:37], vcc""")
    for e in range(8):
        for r in range(4):
            a(f"  ds_write_b32 v{E0}, v{O0+4*e+r} offset:{r*32+e*4}")
    a(f"""  ds_write_b32 v{E1}, v{L} offset:16384
  ds_write_b32 v{E2}, v{MRUN} offset:16896
  s_mov_b64 exec, s[36:37]
  s_waitcnt lgkmcnt(0)
  s_barrier
  v_lshrrev_b32 v4, 7, v0         ; h
  v_lshlrev_b32 v5, 2, v4         ; h*4
  v_lshlrev_b32 v6, 4, v4         ; h*16
  v_lshlrev_b32 v7, 2, v0         ; t*4 = h*512+dim*4""")
    for w in range(8):
        a(f"  ds_read_b32 v{20+w}, v5 offset:{16896+w*16}")
    for w in range(8):
        a(f"  ds_read_b128 v[{32+4*w}:{35+4*w}], v6 offset:{16384+w*64}")
    for w in range(8):
        a(f"  ds_read_b32 v{64+w}, v7 offset:{w*2048}")
    a(f"""  s_waitcnt lgkmcnt(0)
  v_max3_f32 v8, v20, v21, v22
  v_max3_f32 v8, v8, v23, v24
  v_max3_f32 v8, v8, v25, v26
  v_max_f32 v8, v8, v27""")
    for w in range(8):
        a(f"  v_sub_f32 v{20+w}, v{20+w}, v8")
    for w in range(8):
        a(f"  v_mul_f32 v{20+w}, s42, v{20+w}")
    for w in range(8):
        a(f"  v_exp_f32 v{20+w}, v{20+w}")
    a("""  s_nop 0
  v_mov_b32 v9, 0
  v_mov_b32 v10, 0""")
    for w in range(8):
        b = 32 + 4 * w
        a(f"""  v_add_f32 v{b}, v{b}, v{b+1}
  v_add_f32 v{b+2}, v{b+2}, v{b+3}
  v_add_f32 v{b}, v{b}, v{b+2}
  v_fmac_f32 v9, v{20+w}, v{b}
  v_fmac_f32 v10, v{20+w}, v{64+w}""")
    a(f"""  ; store O: WS_PO + wg*2048 + t*4
  s_lshl_b32 s31, s89, 11
  s_add_u32 s31, s31, {WS_PO:#x}
  buffer_store_dword v10, v7, s[24:27], s31 offen sc1
  v_and_b32 v11, 127, v0
  v_cmp_eq_u32 vcc, 0, v11
  v_lshlrev_b32 v12, 3, v4
  s_lshl_b32 s31, s89, 5
  s_add_u32 s31, s31, {WS_PML:#x}
  s_and_saveexec_b64 s[36:37], vcc
  buffer_store_dwordx2 v[8:9], v12, s[24:27], s31 offen sc1
  s_mov_b64 exec, s[36:37]
{'' if TAIL else '  s_branch L_fin'}
  s_waitcnt vmcnt(0)
  s_barrier""")
    stamp(6)
    a(f"""  s_cmp_lg_u32 s30, 0
  s_cbranch_scc1 L_p_wait
  s_lshl_b32 s31, s68, 8
  s_add_u32 s31, s31, {WS_CNT + 4096:#x}          ; S2 counter
  v_mov_b32 v{E1}, 1
  s_mov_b64 s[36:37], exec
  s_mov_b64 exec, 1
  buffer_atomic_add v{E1}, v{VZ}, s[24:27], s31 offen sc1
  s_mov_b32 s38, {SPIN}
L_p_poll:
  buffer_load_dword v{E1}, v{VZ}, s[24:27], s31 offen sc1
  s_waitcnt vmcnt(0)
  v_readfirstlane_b32 s39, v{E1}
  s_cmp_ge_u32 s39, 16
  s_cbranch_scc1 L_p_done
  s_sleep {PSLEEP}
  s_sub_u32 s38, s38, 1
  s_cmp_lg_u32 s38, 0
  s_cbranch_scc1 L_p_poll
L_p_done:
  s_mov_b64 exec, s[36:37]""")
    stamp(7)
    a(f"""L_p_wait:
  s_barrier
  v_lshrrev_b32 v7, 5, v{LANE}
  v_and_b32 v8, 31, v{LANE}
  v_lshlrev_b32 v9, 9, v7
  v_lshl_add_u32 v9, v8, 4, v9
  v_lshlrev_b32 v10, 3, v7         ; hi*8
  s_lshl_b32 s33, s68, 4
  s_lshl_b32 s34, s30, 1
  s_add_u32 s33, s33, s34          ; grp*16 + b'*2
  s_lshl_b32 s36, s33, 11
  s_lshl_b32 s37, s69, 10
  s_add_u32 s36, s36, s37
  s_add_u32 s36, s36, {WS_PO:#x}
  s_lshl_b32 s38, s33, 5
  s_lshl_b32 s37, s69, 4
  s_add_u32 s38, s38, s37
  s_add_u32 s38, s38, {WS_PML:#x}
  buffer_load_dwordx4 v[32:35], v9, s[24:27], s36 offen sc1
  buffer_load_dwordx4 v[36:39], v9, s[24:27], s36 offen offset:2048 sc1
  buffer_load_dwordx2 v[40:41], v10, s[24:27], s38 offen sc1
  buffer_load_dwordx2 v[42:43], v10, s[24:27], s38 offen offset:32 sc1""")
    for e in range(4):
        sel = "s40" if (e & 1) == 0 else "s41"
        for q in range(4):
            lo = WOR + 2 * (2 * q) + (e >> 1)
            hi = WOR + 2 * (2 * q + 1) + (e >> 1)
            a(f"  v_perm_b32 v{56+4*e+q}, v{hi}, v{lo}, {sel}")
    a(f"""  s_waitcnt vmcnt(0)
  v_max_f32 v44, v40, v42
  v_sub_f32 v40, v40, v44
  v_sub_f32 v42, v42, v44
  v_mul_f32 v40, s42, v40
  v_mul_f32 v42, s42, v42
  v_exp_f32 v40, v40
  v_exp_f32 v42, v42
  s_nop 0
  v_mul_f32 v45, v40, v41
  v_fmac_f32 v45, v42, v43
  v_rcp_f32 v45, v45
  s_nop 0
  v_mul_f32 v40, v40, v45
  v_mul_f32 v42, v42, v45""")
    for i in range(4):
        a(f"""  v_mul_f32 v{32+i}, v{32+i}, v40
  v_fmac_f32 v{32+i}, v{36+i}, v42""")
    a(f"""  v_cvt_pk_bf16_f32 v32, v32, v33
  v_cvt_pk_bf16_f32 v33, v34, v35
  v_lshlrev_b32 v11, 9, v3
  v_lshl_add_u32 v11, v{LANE}, 3, v11     ; b'*512 + lane*8
  ds_write_b64 v11, v[32:33] offset:{L_R1}
  s_waitcnt lgkmcnt(0)
  s_barrier
  v_lshlrev_b32 v11, 9, v{NR}
  v_lshl_add_u32 v11, v3, 6, v11
  v_lshl_add_u32 v11, v{GR}, 4, v11       ; n*512 + w*64 + g*16
  ds_read_b128 v[48:51], v11 offset:{L_R1}
  s_waitcnt lgkmcnt(0)
  s_nop 1""")
    for e in range(4):
        a(f"  v_mfma_f32_16x16x32_bf16 v[{DO+4*e}:{DO+4*e+3}], v[48:51], v[{56+4*e}:{59+4*e}], 0")
    a(f"""  v_lshlrev_b32 v8, 10, v{GR}
  v_lshl_add_u32 v8, v{NR}, 4, v8
  v_lshl_add_u32 v8, v3, 11, v8    ; w*2048 + g*1024 + n*16
  v_cmp_gt_u32 vcc, 32, v{LANE}
  s_nop 7
  s_nop 3
  s_and_saveexec_b64 s[36:37], vcc""")
    for e in range(4):
        for r in range(4):
            a(f"  ds_write_b32 v8, v{DO+4*e+r} offset:{L_R2+r*256+e*4}")
    a(f"""  s_mov_b64 exec, s[36:37]
  s_waitcnt lgkmcnt(0)
  s_barrier
  v_lshlrev_b32 v9, 2, v0""")
    for w in range(8):
        a(f"  ds_read_b32 v{16+w}, v9 offset:{L_R2+w*2048}")
    a(f"""  s_waitcnt lgkmcnt(0)
  v_add_f32 v16, v16, v17
  v_add_f32 v18, v18, v19
  v_add_f32 v20, v20, v21
  v_add_f32 v22, v22, v23
  v_add_f32 v16, v16, v18
  v_add_f32 v20, v20, v22
  v_add_f32 v16, v16, v20
  s_lshl_b32 s33, s28, 3
  s_add_u32 s33, s33, s70          ; p*8+slab
  s_lshl_b32 s34, s33, 15
  s_add_u32 s34, s34, {WS_POUT:#x}
  s_lshl_b32 s35, s29, 1
  s_add_u32 s35, s35, s69
  s_lshl_b32 s35, s35, 11
  s_add_u32 s35, s35, s34
  buffer_store_dword v16, v9, s[24:27], s35 offen sc1
  s_waitcnt vmcnt(0)
  s_barrier""")
    stamp(8)
    a(f"""
  s_cmp_lg_u32 s30, 0
  s_cbranch_scc1 L_o_wait
  s_lshl_b32 s31, s33, 8
  s_add_u32 s31, s31, {WS_CNT:#x}          ; S3 counter
  v_mov_b32 v{E1}, 1
  s_mov_b64 s[36:37], exec
  s_mov_b64 exec, 1
  buffer_atomic_add v{E1}, v{VZ}, s[24:27], s31 offen sc0 sc1
  s_waitcnt vmcnt(0)
  v_mov_b32 v{E2}, {L_R3}
  ds_write_b32 v{E2}, v{E1}
  s_waitcnt lgkmcnt(0)
  s_mov_b64 exec, s[36:37]
L_o_wait:
  s_barrier
  v_mov_b32 v{E2}, {L_R3}
  ds_read_b32 v{E1}, v{E2}
  s_waitcnt lgkmcnt(0)
  v_readfirstlane_b32 s39, v{E1}
  s_cmp_lg_u32 s39, 15
  s_cbranch_scc1 L_fin
  ; last arriver: reduce the 16 partials of (p,slab)""")
    for ks in range(16):
        a(f"""  s_add_u32 s35, s34, {ks*2048}
  buffer_load_dword v{16+ks}, v9, s[24:27], s35 offen sc1""")
    a(f"""  ; out byte = b'*2048 + p*1024 + slab*128 + col*2
  v_lshlrev_b32 v10, 11, v3
  v_lshl_add_u32 v10, v{LANE}, 1, v10
  s_lshl_b32 s35, s33, 7
  s_waitcnt vmcnt(0)""")
    for st in (1, 2, 4, 8):
        for i in range(0, 16, 2 * st):
            a(f"  v_add_f32 v{16+i}, v{16+i}, v{16+i+st}")
    a(f"""  v_cvt_pk_bf16_f32 v16, v16, v16
  buffer_store_short v16, v10, s[60:63], s35 offen
  s_waitcnt vmcnt(0)
L_fin:""")
    stamp(9)
    if STAMP:
        a(f"""  s_cmp_lg_u32 s30, 0
  s_cbranch_scc1 L_end
  v_lshlrev_b32 v10, 2, v{LANE}
  s_lshl_b32 s35, s2, 6
  s_add_u32 s35, s35, 0x180000
  v_cmp_gt_u32 vcc, 16, v{LANE}
  s_and_saveexec_b64 s[36:37], vcc
  buffer_store_dword v91, v10, s[24:27], s35 offen
  s_mov_b64 exec, s[36:37]""")
        if STAMP == 2:
            a(f"""  v_cmp_gt_u32 vcc, 11, v{LANE}
  s_and_saveexec_b64 s[36:37], vcc
  buffer_atomic_umax v91, v10, s[64:67], 0 offen offset:16 sc1
  s_mov_b64 exec, s[36:37]""")
    a(f"""L_end:
  s_endpgm""")
    acc = (nvgpr + 3) // 4 * 4
    a('.section .rodata,"a"')
    a(f""".p2align 6
.amdhsa_kernel {name}
  .amdhsa_next_free_vgpr {max(nvgpr,160)}
  .amdhsa_next_free_sgpr 96
  .amdhsa_accum_offset {max(acc,160)}
  .amdhsa_group_segment_fixed_size 0
  .amdhsa_kernarg_size 104
  .amdhsa_user_sgpr_count 2
  .amdhsa_user_sgpr_kernarg_segment_ptr 1
  .amdhsa_system_sgpr_workgroup_id_x 1
.end_amdhsa_kernel""")

TAILL = '''
; @launch kernel=oproj_kernel grid=(256,1,1) block=(512,1,1) lds=24576
; @launch kernel=final_kernel grid=(32,1,1) block=(256,1,1) lds=0'''
TAILM = '''
; @launch kernel=oproj_kernel grid=(256,1,1) block=(512,1,1) lds=24576'''
def main():
    out = sys.argv[1] if len(sys.argv) > 1 else f"cdna_kernels/{NAME}.s"
    opts = {}
    for kv in sys.argv[2:]:
        k, v = kv.split("=", 1)
        opts[k] = v
    a = Asm()
    a(f"""; concat_heads gqa decode: fused q-proj -> flash-decode -> combine -> out-proj (16-workgroup group hand-offs)
; @launch grid=(256,1,1) block=(512,1,1) lds={LDS_BYTES}
.amdgcn_target "amdgcn-amd-amdhsa--gfx950"
.text""")
    gen(a, opts)
    open(out, "w").write(a.text())

main()
```
